```python
import torch

def _softmax(x, axis=-1):
    return torch.softmax(x, dim=axis)
def _gelu(x):
    return torch.nn.functional.gelu(x, approximate="tanh")
def _silu(x):
    return torch.nn.functional.silu(x)
def _sigmoid(x):
    return torch.sigmoid(x)
def _layernorm(x, axis=-1, eps=1e-5):
    m = x.mean(dim=axis, keepdim=True)
    v = x.var(dim=axis, keepdim=True, unbiased=False)
    return (x - m) / torch.sqrt(v + eps)
def _scatter_add(tgt, idx, src, axis=0):
    return tgt.clone().index_add_(axis, idx, src)
def _segment_sum(src, seg, n):
    out = torch.zeros((n,) + src.shape[1:], dtype=src.dtype)
    return out.index_add_(0, seg, src)
def _pad(x, pw):
    flat = tuple(v for pair in reversed(pw) for v in pair)
    return torch.nn.functional.pad(x, flat)

kernel_name = 'standalone__attention_interact_autoint__recsys'

def setup_inputs():

    _w = (lambda a: (lambda t: t.to(torch.bfloat16) if t.is_floating_point() else t)(torch.as_tensor(a)))
    B, F = 4096, 100
    D = max(2, (64 // 2) * 2)
    H = 2
    Dh = D // H
    return {
        "e": _w((lambda *s: torch.randn(*s, dtype=torch.bfloat16) * 0.05)(B, F, D).to(float)),
        "wq": _w((lambda *s: torch.randn(*s, dtype=torch.bfloat16) * 3.2)(H, D, Dh).to(float)),
        "wk": _w((lambda *s: torch.randn(*s, dtype=torch.bfloat16) * 3.2)(H, D, Dh).to(float)),
        "wv": _w((lambda *s: torch.randn(*s, dtype=torch.bfloat16) * 0.05)(H, D, Dh).to(float)),
        "wres": _w((lambda *s: torch.randn(*s, dtype=torch.bfloat16) * 0.05)(D, D).to(float)),
    }

def reference(e, wq, wk, wv, wres):
    H, D, Dh = wq.shape[0], wq.shape[1], wq.shape[2]
    B, F = e.shape[0], e.shape[1]
    q = torch.einsum('bfd,hdk->bhfk', e, wq)
    k = torch.einsum('bfd,hdk->bhfk', e, wk)
    v = torch.einsum('bfd,hdk->bhfk', e, wv)
    scale = float(Dh) ** -0.5
    scores = torch.einsum('bhfk,bhgk->bhfg', q, k) * scale
    attn = _softmax(scores, axis=-1)
    attn = (lambda x, dt: x.to(dt))(attn, v.dtype)
    ctx = torch.einsum('bhfg,bhgk->bhfk', attn, v)
    ctx = (lambda x, *d: x.permute(*d))(ctx, 0, 2, 1, 3).reshape(B, F, H * Dh)
    res = torch.einsum('bfd,de->bfe', e, wres)
    out = ctx + res
    mask = (lambda x, dt: x.to(dt))(out > 0, out.dtype)
    return out * mask
```

```python
PORT = {'valu': 4, 'trans': 8, 'mfma': 8, 'mfmas': 4, 'mfma32': 8, 'mfma32s': 4, 'perm': 8,
        'dsr': 4, 'dsw': 4, 'store': 4, 'dma': 4, 'salu': 4, 'load': 4}
PIPE = {'mfma': 16, 'mfmas': 16, 'mfma32': 32, 'mfma32s': 32}
MF = set(PIPE)
VAL = {'valu', 'trans', 'perm'}


class Ins:
    __slots__ = ('text', 'kind', 'defs', 'uses', 'cuses', 'idx', 'prio', 'preds', 'succs', 'npred', 'ready', 'tag', 'order_after')

    def __init__(self, text, kind, defs=(), uses=(), cuses=(), tag=''):
        self.text = text
        self.kind = kind
        self.defs = list(defs)
        self.uses = list(uses)
        self.cuses = list(cuses)
        self.tag = tag
        self.order_after = []

    def __repr__(self):
        return self.text


def vr(a, n=1):
    return [f'v{a + i}' for i in range(n)]


def passes(kind):
    return 8 if kind in ('mfma32', 'mfma32s') else 4


def ws_needed(p, c, reg, rel):
    pk, ck = p.kind, c.kind
    isv = reg[0] == 'v' and reg != 'vcc'
    if pk in MF:
        big = passes(pk) == 8
        if rel == 'raw':
            return 12 if big else 8
        if rel == 'rawc':
            if ck in MF and passes(ck) == passes(pk) and p.defs == c.cuses:
                return 0
            return 10 if big else 6
        if rel == 'waw':
            if ck in MF:
                if passes(ck) < passes(pk):
                    return 10
                return 0
            return 12 if big else 8
        if rel == 'warc':
            if ck in MF:
                return 0
            return 7 if big else 3
        if rel == 'war':
            return 0
    if pk in VAL:
        if isv:
            if rel in ('raw', 'rawc'):
                if ck in MF:
                    return 2
                if ck == 'perm':
                    return 2
                if pk == 'trans' and ck != 'trans':
                    return 1
                if 'dpp' in c.text:
                    return 2
                if 'readfirstlane' in c.text or 'readlane' in c.text:
                    return 1
                return 0
            return 0
        else:
            if rel == 'raw':
                if ck in VAL:
                    return 2
                if ck in ('store', 'dma', 'load'):
                    return 5
                return 1
            return 0
    if pk == 'store' and rel == 'war' and isv:
        return 2
    if pk == 'salu' and reg == 'm0' and rel == 'raw':
        return 1
    return 0


def lat_cycles(p, c, rel):
    pk, ck = p.kind, c.kind
    if rel in ('raw', 'rawc'):
        if pk == 'dsr':
            return 140
        if pk in MF:
            if rel == 'rawc' and ck in MF and p.defs == c.cuses:
                return PIPE[pk]
            return PIPE[pk] + 20
        if pk == 'trans':
            return 12
        if pk in VAL:
            return 12 if ck in MF or ck == 'perm' else 8
    return PORT[pk]


def build_deps(ins):
    last_def = {}
    readers = {}
    edges = []
    for i, x in enumerate(ins):
        x.idx = i
        x.preds = []
        x.succs = []
    for x in ins:
        for r in x.uses:
            if r in last_def:
                edges.append((last_def[r], x, r, 'raw'))
        for r in x.cuses:
            if r in last_def:
                edges.append((last_def[r], x, r, 'rawc'))
        for r in x.defs:
            if r in last_def:
                edges.append((last_def[r], x, r, 'waw'))
            for (y, how) in readers.get(r, []):
                if y is not x:
                    edges.append((y, x, r, how))
        for y in x.order_after:
            edges.append((y, x, 'order', 'order'))
        for r in x.defs:
            last_def[r] = x
            readers[r] = []
        for r in x.uses:
            readers.setdefault(r, []).append((x, 'war'))
        for r in x.cuses:
            readers.setdefault(r, []).append((x, 'warc'))
    prev = {}
    for x in ins:
        cls = 'ds' if x.kind in ('dsr', 'dsw') else ('vm' if x.kind in ('store', 'dma', 'load') else None)
        if cls:
            if cls in prev:
                edges.append((prev[cls], x, 'order', 'order'))
            prev[cls] = x
    agg = {}
    for p, c, r, rel in edges:
        if rel == 'order':
            w, l = 0, PORT[p.kind]
        else:
            w = ws_needed(p, c, r, rel)
            l = max(lat_cycles(p, c, rel), 4 * (w + 1) if w else 0)
        k = (p.idx, c.idx)
        ow, ol = agg.get(k, (0, 0))
        agg[k] = (max(ow, w), max(ol, l))
    for (pi, ci), (w, l) in agg.items():
        ins[pi].succs.append((ins[ci], w, l))
        ins[ci].preds.append((ins[pi], w, l))


def schedule(ins, window=400, verbose=False):
    build_deps(ins)
    for x in reversed(ins):
        x.prio = PORT[x.kind] + max([s.prio + l for s, w, l in x.succs], default=0)
    for x in ins:
        x.npred = len(x.preds)
        x.ready = 0
    out = []
    pos = {}
    avail = [x for x in ins if x.npred == 0]
    t = 0
    pipe_free = 0
    done = 0
    n = len(ins)
    lowest = 0
    sched = [False] * n
    while done < n:
        while lowest < n and sched[lowest]:
            lowest += 1
        best = None
        bestkey = None
        for x in avail:
            if x.idx > lowest + window:
                continue
            st = max(t, x.ready)
            if x.kind in MF:
                st = max(st, pipe_free)
            need = 0
            for p, w, l in x.preds:
                if w:
                    gap = len(out) - pos[p.idx] - 1
                    need = max(need, w - gap)
            if need > 0:
                st = max(st, t + 4 * need)
            key = (st - t > 0, st - t if st > t else 0, -x.prio, x.idx)
            if bestkey is None or key < bestkey:
                best, bestkey, bst = x, key, st
        x = best
        avail.remove(x)
        t = bst
        pos[x.idx] = len(out)
        out.append(x)
        sched[x.idx] = True
        if x.kind in MF:
            pipe_free = t + PIPE[x.kind]
        for s, w, l in x.succs:
            s.ready = max(s.ready, t + l)
            s.npred -= 1
            if s.npred == 0:
                avail.append(s)
        t += PORT[x.kind]
        done += 1
    if verbose:
        print(f"; scheduled {n} instrs, est {t} cycles")
    return out, t


def finalize(ins, entry_pessimistic=True):
    lines = []
    emitted = []
    posn = 0
    last_def = {}
    readers = {}
    ds_out = []
    pend = {}
    nnop = 0
    for x in ins:
        needidx = -1
        for r in x.uses + x.cuses + x.defs:
            if r in pend:
                y = pend[r]
                if y in ds_out:
                    needidx = max(needidx, ds_out.index(y))
        if needidx >= 0:
            remain = len(ds_out) - needidx - 1
            assert remain <= 15
            lines.append(f"    s_waitcnt lgkmcnt({remain})")
            posn += 1
            for y in ds_out[:needidx + 1]:
                for r in y.defs:
                    if pend.get(r) is y:
                        del pend[r]
            ds_out = ds_out[needidx + 1:]
        need = 0

        def chk(p, ppos, r, rel):
            nonlocal need
            w = ws_needed(p, x, r, rel)
            gap = posn - ppos - 1
            if w - gap > need:
                need = w - gap
        for r in x.uses:
            if r in last_def:
                chk(*last_def[r], r, 'raw')
        for r in x.cuses:
            if r in last_def:
                chk(*last_def[r], r, 'rawc')
        for r in x.defs:
            if r in last_def:
                chk(*last_def[r], r, 'waw')
            for (y, ypos, how) in readers.get(r, []):
                chk(y, ypos, r, how)
        while need > 0:
            k = min(need, 16)
            lines.append(f"    s_nop {k - 1}")
            posn += k
            need -= k
            nnop += k
        lines.append("    " + x.text)
        for r in x.defs:
            last_def[r] = (x, posn)
            readers[r] = []
        for r in x.uses:
            readers.setdefault(r, []).append((x, posn, 'war'))
        for r in x.cuses:
            readers.setdefault(r, []).append((x, posn, 'warc'))
        posn += 1
        if x.kind in ('dsr', 'dsw'):
            ds_out.append(x)
            if len(ds_out) > 15:
                lines.append(f"    s_waitcnt lgkmcnt(14)")
                posn += 1
                for y in ds_out[:-14]:
                    for r in y.defs:
                        if pend.get(r) is y:
                            del pend[r]
                ds_out = ds_out[-14:]
            if x.kind == 'dsr':
                for r in x.defs:
                    pend[r] = x
    return lines, nnop
```

```python
import sys, struct, math
sys.path.insert(0, 'gen')
from sched import Ins, vr, schedule, finalize

KN = "standalone__attention_interact_autoint__recsys_kernel"
NWG = 1024
NIT = 4
EBYTES = 4096 * 100 * 64 * 2
BUF1 = 16384
LDS_TOTAL = 40960

opts = dict(a.split('=') for a in sys.argv[2:]) if len(sys.argv) > 2 else {}
SAFE = int(opts.get('safe', 1))
FORCE_SAFE = int(opts.get('force_safe', 0))
NOSCHED = int(opts.get('nosched', 0))
WINDOW = int(opts.get('window', 200))


def f32bits(x):
    return struct.unpack('<I', struct.pack('<f', x))[0]


class Alloc:
    def __init__(self, start):
        self.n = start

    def get(self, k, align=2):
        self.n = (self.n + align - 1) // align * align
        r = self.n
        self.n += k
        return r


A = Alloc(2)
WQ = A.get(16); WK = A.get(16); WV = A.get(16); WR = A.get(16)
KP = A.get(28)
VP = [A.get(14), A.get(14)]
EB = [A.get(8) for _ in range(2)]
PD = [A.get(4) for _ in range(4)]
QP = [A.get(4) for _ in range(2)]
SB = [A.get(8) for _ in range(4)]
ST = [A.get(4) for _ in range(1)]
PT = [A.get(2) for _ in range(2)]
OA = [A.get(8) for _ in range(2)]
RA = [A.get(8) for _ in range(2)]
LA = [A.get(4) for _ in range(2)]
ONES = A.get(4)
CB = A.get(4)
V_LDS = A.get(1, 1)
V_DMA = A.get(1, 1)
V_DMAT = A.get(1, 1)
V_ST = A.get(1, 1)
V_STT = A.get(1, 1)
V_LMAX = 0
V_LMIN = 1
assert A.n <= 256, A.n
NVGPR = 256

S_E = 8; S_O = 12; S_W = 16
S_HEAD = 32; S_CUR = 33; S_NXT = 34; S_IT = 35; S_STO = 36
S_LDSN = 44; S_T0 = 45; S_T1 = 46; S_T2 = 47
S_LO = 48; S_HI = 49

BSHIFT = 40.0
L_LO = 2.0 ** -56
L_HI = 1.0
CSCALE = math.log2(math.e) / math.sqrt(32.0)


def r4(a): return f"v[{a}:{a + 3}]"
def r2(a): return f"v[{a}:{a + 1}]"


def mfma(d, a, b, c=None, tag=''):
    if c is None:
        return Ins(f"v_mfma_f32_16x16x32_bf16 {r4(d)}, {r4(a)}, {r4(b)}, 0", 'mfma', vr(d, 4), vr(a, 4) + vr(b, 4), tag=tag)
    return Ins(f"v_mfma_f32_16x16x32_bf16 {r4(d)}, {r4(a)}, {r4(b)}, {r4(c)}", 'mfma', vr(d, 4), vr(a, 4) + vr(b, 4), vr(c, 4), tag=tag)


def mfmas(d, a, b, c, tag=''):
    return Ins(f"v_mfma_f32_16x16x16_bf16 {r4(d)}, {r2(a)}, {r2(b)}, {r4(c)}", 'mfmas', vr(d, 4), vr(a, 2) + vr(b, 2), vr(c, 4), tag=tag)


def cvt(d, a, b):
    if b is None:
        return Ins(f"v_cvt_pk_bf16_f32 v{d}, v{a}, 0", 'valu', vr(d), vr(a))
    return Ins(f"v_cvt_pk_bf16_f32 v{d}, v{a}, v{b}", 'valu', vr(d), vr(a) + vr(b))


def vexp(d, a):
    return Ins(f"v_exp_f32 v{d}, v{a}", 'trans', vr(d), vr(a))


def dsread(d, off):
    return Ins(f"ds_read_b128 {r4(d)}, v{V_LDS} offset:{off}", 'dsr', vr(d, 4), vr(V_LDS))


def salu(text, defs, uses):
    return Ins(text, 'salu', defs, uses)


class Ring:
    def __init__(self, items):
        self.items = items
        self.i = 0

    def next(self):
        r = self.items[self.i % len(self.items)]
        self.i += 1
        return r


def dma_block():
    L = []
    srd = [f's{S_E + i}' for i in range(4)]
    for t in (0, 2, 4, 6):
        if t == 0:
            L.append(salu(f"s_mov_b32 m0, s{S_LDSN}", ['m0'], [f's{S_LDSN}']))
            so = S_NXT
        else:
            L.append(salu(f"s_add_u32 m0, s{S_LDSN}, {t * 2048}", ['m0', 'scc'], [f's{S_LDSN}']))
            L.append(salu(f"s_add_u32 s{S_T0}, s{S_NXT}, {t * 2048}", [f's{S_T0}', 'scc'], [f's{S_NXT}']))
            so = S_T0
        if t < 6:
            L.append(Ins(f"buffer_load_dwordx4 v{V_DMA}, s[{S_E}:{S_E + 3}], s{so} offen lds", 'dma', [], vr(V_DMA) + srd + [f's{so}', 'm0']))
            L.append(Ins(f"buffer_load_dwordx4 v{V_DMA}, s[{S_E}:{S_E + 3}], s{so} offen offset:2048 lds", 'dma', [], vr(V_DMA) + srd + [f's{so}', 'm0']))
        else:
            L.append(Ins(f"buffer_load_dwordx4 v{V_DMAT}, s[{S_E}:{S_E + 3}], s{so} offen lds", 'dma', [], vr(V_DMAT) + srd + [f's{so}', 'm0']))
    return L


def store(i, data):
    srd = [f's{S_O + k}' for k in range(4)]
    va = V_ST if i < 6 else V_STT
    return Ins(f"buffer_store_dwordx4 {r4(data)}, v{va}, s[{S_O}:{S_O + 3}], s{S_STO + i} offen", 'store', [],
               vr(data, 4) + vr(va) + srd + [f's{S_STO + i}'])


def kv_tile(t, eb, pd):
    L = []
    d0, d1 = pd.next(), pd.next()
    L.append(mfma(d0, WK + 0, eb + 0)); L.append(mfma(d1, WK + 4, eb + 0))
    L.append(mfma(d0, WK + 8, eb + 4, d0)); L.append(mfma(d1, WK + 12, eb + 4, d1))
    k = KP + 4 * t
    L += [cvt(k, d0, d0 + 1), cvt(k + 1, d0 + 2, d0 + 3), cvt(k + 2, d1, d1 + 1), cvt(k + 3, d1 + 2, d1 + 3)]
    d0, d1 = pd.next(), pd.next()
    L.append(mfma(d0, eb + 0, WV + 0)); L.append(mfma(d1, eb + 0, WV + 4))
    L.append(mfma(d0, eb + 4, WV + 8, d0)); L.append(mfma(d1, eb + 4, WV + 12, d1))
    for u, d in ((0, d0), (1, d1)):
        v = VP[u] + 2 * t
        L.append(cvt(v, d, d + 1))
        if t < 6:
            L.append(cvt(v + 1, d + 2, d + 3))
    return L


def q_proj(eb, pd, q):
    L = []
    d0, d1 = pd.next(), pd.next()
    L.append(mfma(d0, WQ + 0, eb + 0)); L.append(mfma(d1, WQ + 4, eb + 0))
    L.append(mfma(d0, WQ + 8, eb + 4, d0)); L.append(mfma(d1, WQ + 12, eb + 4, d1))
    L += [cvt(q, d0, d0 + 1), cvt(q + 1, d0 + 2, d0 + 3), cvt(q + 2, d1, d1 + 1), cvt(q + 3, d1 + 2, d1 + 3)]
    return L


def res_proj(eb, r):
    return [mfma(r, WR + 0, eb + 0), mfma(r + 4, WR + 4, eb + 0), mfma(r, WR + 8, eb + 4, r), mfma(r + 4, WR + 12, eb + 4, r + 4)]


def epilogue(i, o, r, l, inv):
    L = [Ins(f"v_rcp_f32 v{inv}, v{l}", 'trans', vr(inv), vr(l))]
    for j in range(8):
        L.append(Ins(f"v_fma_f32 v{o + j}, v{o + j}, v{inv}, v{r + j}", 'valu', vr(o + j), vr(o + j) + vr(inv) + vr(r + j)))
    for j in range(4):
        L.append(cvt(o + j, o + 2 * j, o + 2 * j + 1))
    for j in range(4):
        L.append(Ins(f"v_pk_max_i16 v{o + j}, v{o + j}, 0", 'valu', vr(o + j), vr(o + j)))
    L.append(store(i, o))
    return L


def unit_body():
    L = []
    eb = Ring(EB); pd = Ring(PD); qp = Ring(QP); sb = Ring(SB); st = Ring(ST); pt = Ring(PT)
    oa = Ring(OA); ra = Ring(RA); la = Ring(LA)
    for i in range(7):
        if i == 0:
            L.append(salu(f"s_mov_b32 s{S_STO}, s{S_CUR}", [f's{S_STO}'], [f's{S_CUR}']))
        else:
            L.append(salu(f"s_add_u32 s{S_STO + i}, s{S_CUR}, {i * 2048}", [f's{S_STO + i}', 'scc'], [f's{S_CUR}']))
    first = True
    qr = {}

    def qres(i, e):
        q = qp.next(); r = ra.next()
        qr[i] = (q, r)
        return q_proj(e, pd, q) + res_proj(e, r)
    for t in range(7):
        e = eb.next()
        L += [dsread(e, (2 * t) * 1024), dsread(e + 4, (2 * t + 1) * 1024)]
        if t == 1:
            L += dma_block()
        L += kv_tile(t, e, pd)
        if t == 0:
            L += qres(0, e)
    lprev = None
    for i in range(7):
        q, r = qr[i]
        o = oa.next(); l = la.next()
        for p in range(3):
            b = sb.next()
            L.append(mfma(b, KP + 8 * p, q, CB)); L.append(mfma(b + 4, KP + 8 * p + 4, q, CB))
            for j in range(8):
                L.append(vexp(b + j, b + j))
            L += [cvt(b + 3, b + 2, b + 3), cvt(b + 2, b, b + 1), cvt(b + 4, b + 4, b + 5), cvt(b + 5, b + 6, b + 7)]
            c0 = None if p == 0 else o
            c1 = None if p == 0 else o + 4
            cl = None if p == 0 else l
            L.append(mfma(o, VP[0] + 4 * p, b + 2, c0)); L.append(mfma(o + 4, VP[1] + 4 * p, b + 2, c1))
            L.append(mfma(l, ONES, b + 2, cl))
            if p == 0 and i < 6:
                e = eb.next()
                L += [dsread(e, (2 * (i + 1)) * 1024), dsread(e + 4, (2 * (i + 1) + 1) * 1024)]
                L += qres(i + 1, e)
        s = st.next(); pp = pt.next()
        L.append(mfma(s, KP + 24, q, CB))
        L.append(vexp(s, s))
        L.append(cvt(pp, s, None))
        L.append(mfmas(o, VP[0] + 12, pp, o)); L.append(mfmas(o + 4, VP[1] + 12, pp, o + 4))
        L.append(mfmas(l, ONES, pp, l))
        L += epilogue(i, o, r, l, l + 1)
        if i % 2 == 1:
            L.append(Ins(f"v_max3_f32 v{V_LMAX}, v{V_LMAX}, v{lprev}, v{l}", 'valu', vr(V_LMAX), vr(V_LMAX) + vr(lprev) + vr(l)))
            L.append(Ins(f"v_min3_f32 v{V_LMIN}, v{V_LMIN}, v{lprev}, v{l}", 'valu', vr(V_LMIN), vr(V_LMIN) + vr(lprev) + vr(l)))
        elif i == 6:
            L.append(Ins(f"v_max_f32 v{V_LMAX}, v{V_LMAX}, v{l}", 'valu', vr(V_LMAX), vr(V_LMAX) + vr(l)))
            L.append(Ins(f"v_min_f32 v{V_LMIN}, v{V_LMIN}, v{l}", 'valu', vr(V_LMIN), vr(V_LMIN) + vr(l)))
        lprev = l
    return L


def safe_body():
    L = []
    pd = Ring(PD)
    e = EB[0]; q = QP[0]; r = RA[0]; o = OA[0]; l = LA[0]; s6 = ST[0]; pp = PT[0]
    m = LA[1]; m2 = LA[1] + 1
    for i in range(7):
        L += [dsread(e, (2 * i) * 1024), dsread(e + 4, (2 * i + 1) * 1024)]
        L += q_proj(e, pd, q) + res_proj(e, r)
        for p in range(3):
            b = SB[p]
            L.append(mfma(b, KP + 8 * p, q)); L.append(mfma(b + 4, KP + 8 * p + 4, q))
        L.append(mfma(s6, KP + 24, q))
        regs = [SB[p] + j for p in range(3) for j in range(8)]
        L.append(Ins(f"v_mov_b32 v{m}, v{s6}", 'valu', vr(m), vr(s6)))
        for k in range(0, 24, 2):
            L.append(Ins(f"v_max3_f32 v{m}, v{m}, v{regs[k]}, v{regs[k + 1]}", 'valu', vr(m), vr(m) + vr(regs[k]) + vr(regs[k + 1])))
        L.append(Ins(f"v_mov_b32 v{m2}, v{m}", 'valu', vr(m2), vr(m)))
        L.append(Ins(f"v_permlane16_swap_b32 v{m}, v{m2}", 'perm', vr(m) + vr(m2), vr(m) + vr(m2)))
        L.append(Ins(f"v_max_f32 v{m}, v{m}, v{m2}", 'valu', vr(m), vr(m) + vr(m2)))
        L.append(Ins(f"v_mov_b32 v{m2}, v{m}", 'valu', vr(m2), vr(m)))
        L.append(Ins(f"v_permlane32_swap_b32 v{m}, v{m2}", 'perm', vr(m) + vr(m2), vr(m) + vr(m2)))
        L.append(Ins(f"v_max_f32 v{m}, v{m}, v{m2}", 'valu', vr(m), vr(m) + vr(m2)))
        for x in regs + [s6]:
            L.append(Ins(f"v_sub_f32 v{x}, v{x}, v{m}", 'valu', vr(x), vr(x) + vr(m)))
            L.append(vexp(x, x))
        for p in range(3):
            b = SB[p]
            L += [cvt(b + 3, b + 2, b + 3), cvt(b + 2, b, b + 1), cvt(b + 4, b + 4, b + 5), cvt(b + 5, b + 6, b + 7)]
            c0 = None if p == 0 else o
            c1 = None if p == 0 else o + 4
            cl = None if p == 0 else l
            L.append(mfma(o, VP[0] + 4 * p, b + 2, c0)); L.append(mfma(o + 4, VP[1] + 4 * p, b + 2, c1))
            L.append(mfma(l, ONES, b + 2, cl))
        L.append(cvt(pp, s6, None))
        L.append(mfmas(o, VP[0] + 12, pp, o)); L.append(mfmas(o + 4, VP[1] + 12, pp, o + 4))
        L.append(mfmas(l, ONES, pp, l))
        L += epilogue(i, o, r, l, l + 1)
    return L


def prologue():
    P = []
    a = P.append
    a(f"    s_cmp_ge_u32 s2, {NWG}")
    a("    s_cbranch_scc1 L_done")
    a("    s_load_dwordx4 s[4:7], s[0:1], 0")
    a("    s_load_dwordx4 s[20:23], s[0:1], 16")
    a("    s_load_dwordx4 s[24:27], s[0:1], 32")
    a("    v_lshrrev_b32 v1, 6, v0")
    a("    v_and_b32 v2, 63, v0")
    a(f"    v_readfirstlane_b32 s{S_HEAD}, v1")
    a("    v_lshrrev_b32 v3, 4, v2")
    a("    v_and_b32 v4, 15, v2")
    a("    v_lshlrev_b32 v5, 7, v4")
    a("    v_lshl_add_u32 v5, v3, 4, v5")
    a("    v_lshl_add_u32 v5, v1, 6, v5")
    a(f"    v_mov_b32 v{V_DMA}, v5")
    a(f"    v_mov_b32 v{V_ST}, v5")
    a("    v_lshrrev_b32 v6, 2, v4")
    a("    v_lshlrev_b32 v6, 7, v6")
    a("    v_lshl_add_u32 v6, v3, 4, v6")
    a("    v_lshl_add_u32 v6, v1, 6, v6")
    a(f"    v_mov_b32 v{V_DMAT}, v6")
    a("    v_and_b32 v7, 3, v4")
    a("    v_cmp_ne_u32 vcc, 0, v7")
    a("    v_mov_b32 v7, 0x7f000000")
    a("    s_nop 1")
    a(f"    v_cndmask_b32 v{V_STT}, v6, v7, vcc")
    a(f"    v_lshlrev_b32 v{V_LDS}, 4, v2")
    a("    s_waitcnt lgkmcnt(0)")
    a(f"    s_mov_b32 s{S_E}, s4"); a(f"    s_and_b32 s{S_E + 1}, s5, 0xffff")
    a(f"    s_mov_b32 s{S_E + 2}, {EBYTES}"); a(f"    s_mov_b32 s{S_E + 3}, 0x00020000")
    a(f"    s_mov_b32 s{S_O}, s26"); a(f"    s_and_b32 s{S_O + 1}, s27, 0xffff")
    a(f"    s_mov_b32 s{S_O + 2}, {EBYTES}"); a(f"    s_mov_b32 s{S_O + 3}, 0x00020000")
    a(f"    s_mul_i32 s{S_T1}, s{S_HEAD}, 12288")
    a(f"    s_add_u32 s{S_T1}, s{S_T1}, {BUF1}")
    a(f"    s_lshl_b32 s{S_T2}, s{S_HEAD}, 12")
    a("    v_lshlrev_b32 v8, 4, v2")
    a(f"    s_mov_b32 s{S_W + 2}, 8192"); a(f"    s_mov_b32 s{S_W + 3}, 0x00020000")
    for mi, (lo, hi) in enumerate(((6, 7), (20, 21), (22, 23))):
        a(f"    s_mov_b32 s{S_W}, s{lo}"); a(f"    s_and_b32 s{S_W + 1}, s{hi}, 0xffff")
        a(f"    s_add_u32 m0, s{S_T1}, {mi * 4096}")
        a("    s_nop 0")
        for k in range(4):
            a(f"    buffer_load_dwordx4 v8, s[{S_W}:{S_W + 3}], s{S_T2} offen offset:{k * 1024} lds")
    a("    v_lshrrev_b32 v9, 2, v2")
    a("    v_lshlrev_b32 v9, 7, v9")
    a("    v_and_b32 v10, 3, v2")
    a("    v_lshl_add_u32 v9, v10, 4, v9")
    a("    v_lshl_add_u32 v9, v1, 6, v9")
    a(f"    s_mov_b32 s{S_W}, s24"); a(f"    s_and_b32 s{S_W + 1}, s25, 0xffff")
    tmp = SB[0]
    assert SB[1] == SB[0] + 8
    a(f"    s_movk_i32 s{S_T0}, 4096")
    a("    s_nop 0")
    a(f"    buffer_load_dwordx4 {r4(tmp)}, v9, s[{S_W}:{S_W + 3}], 0 offen")
    a(f"    buffer_load_dwordx4 {r4(tmp + 4)}, v9, s[{S_W}:{S_W + 3}], 0 offen offset:2048")
    a(f"    buffer_load_dwordx4 {r4(tmp + 8)}, v9, s[{S_W}:{S_W + 3}], s{S_T0} offen")
    a(f"    buffer_load_dwordx4 {r4(tmp + 12)}, v9, s[{S_W}:{S_W + 3}], s{S_T0} offen offset:2048")
    a(f"    s_mul_i32 s{S_NXT}, s2, 12800")
    a(f"    s_lshl_b32 s{S_LDSN}, s{S_HEAD}, 10")
    dl, _ = finalize(dma_block())
    P.extend(dl)
    for k in range(4):
        a(f"    v_mov_b32 v{ONES + k}, 0x3f803f80")
        a(f"    v_mov_b32 v{CB + k}, 0x{f32bits(-BSHIFT):08x}")
    for k in range(2):
        a(f"    v_mov_b32 v{PT[k] + 1}, 0")
        a(f"    v_mov_b32 v{VP[k] + 13}, 0")
    a("    v_lshrrev_b32 v10, 2, v4")
    a("    v_lshl_add_u32 v10, v3, 3, v10")
    a("    v_lshlrev_b32 v10, 6, v10")
    a("    v_and_b32 v11, 3, v4")
    a("    v_lshl_add_u32 v12, v11, 3, v10")
    a("    v_lshl_add_u32 v13, v11, 4, v10")
    a(f"    v_add_u32 v12, s{S_T1}, v12")
    a(f"    v_add_u32 v13, s{S_T1}, v13")
    a(f"    v_add_u32 v14, s{S_T1}, v8")
    a("    s_waitcnt vmcnt(11)")

    def trread(base, mi, addr, tstride):
        for s in range(2):
            for t in range(2):
                for half in range(2):
                    off = mi * 4096 + (32 * s + 4 * half) * 64 + t * tstride
                    a(f"    ds_read_b64_tr_b16 {r2(base + 8 * s + 4 * t + 2 * half)}, v{addr} offset:{off}")
    a("    v_mov_b32 v%d, v12" % (OA[0]))
    a("    v_mov_b32 v%d, v13" % (OA[0] + 1))
    a("    v_mov_b32 v%d, v14" % (OA[0] + 2))
    trread(WQ, 0, OA[0], 32)
    a("    s_waitcnt lgkmcnt(0)")
    trread(WK, 1, OA[0], 32)
    trread(WV, 2, OA[0] + 1, 8)
    a("    s_waitcnt vmcnt(7) lgkmcnt(0)")
    for k in range(4):
        a(f"    ds_write_b128 v{OA[0] + 2}, {r4(tmp + 4 * k)} offset:{k * 1024}")
    t0, t1 = OA[1], OA[1] + 1
    a(f"    s_mov_b32 s{S_T0}, 0x{f32bits(CSCALE):08x}")
    for k in range(16):
        a(f"    v_lshlrev_b32 v{t0}, 16, v{WQ + k}")
        a(f"    v_and_b32 v{t1}, 0xffff0000, v{WQ + k}")
        a(f"    v_mul_f32 v{t0}, s{S_T0}, v{t0}")
        a(f"    v_mul_f32 v{t1}, s{S_T0}, v{t1}")
        a(f"    v_cvt_pk_bf16_f32 v{WQ + k}, v{t0}, v{t1}")
    a("    s_waitcnt lgkmcnt(0)")
    trread(WR, 0, OA[0] + 1, 8)
    a(f"    s_mov_b32 s{S_IT}, 0")
    a(f"    s_mov_b32 s{S_LO}, 0x{f32bits(L_LO):08x}")
    a(f"    s_mov_b32 s{S_HI}, 0x{f32bits(L_HI):08x}")
    a("    s_waitcnt vmcnt(0) lgkmcnt(0)")
    return P


def main():
    out = []
    a = out.append
    hdr = open('standalone__attention_interact_autoint__recsys.s.ref').read().split('\n')
    for line in hdr:
        if line.startswith('; @launch'):
            a(f"; @launch grid=({NWG},1,1) block=(128,1,1) lds={LDS_TOTAL}")
        elif line.startswith(';'):
            a(line)
        else:
            break
    a('.amdgcn_target "amdgcn-amd-amdhsa--gfx950"')
    a(".text")
    a(f".globl {KN}")
    a(".p2align 8")
    a(f".type {KN},@function")
    a(f"{KN}:")
    out += prologue()
    a("L_loop:")
    a("    s_waitcnt vmcnt(7)")
    a("    s_barrier")
    a(f"    s_mov_b32 s{S_CUR}, s{S_NXT}")
    a(f"    s_add_u32 s{S_NXT}, s{S_NXT}, {NWG * 12800}")
    a(f"    s_xor_b32 s{S_LDSN}, s{S_LDSN}, {BUF1}")
    a(f"    v_mov_b32 v{V_LMAX}, 0")
    a(f"    v_mov_b32 v{V_LMIN}, 1.0")
    body = unit_body()
    if NOSCHED:
        sched, est = body, 0
    else:
        sched, est = schedule(body, window=WINDOW)
    lines, nnop = finalize(sched)
    sys.stderr.write(f"unit body: {len(body)} instrs, est {est} cycles, {nnop} nop states, vgprs {A.n}\n")
    out += lines
    if SAFE:
        a(f"    v_cmp_lt_f32 vcc, s{S_HI}, v{V_LMAX}")
        a(f"    v_cmp_gt_f32 s[50:51], s{S_LO}, v{V_LMIN}")
        a("    s_nop 1")
        a("    s_or_b64 vcc, vcc, s[50:51]")
        if FORCE_SAFE:
            a("    s_branch L_safe")
        a("    s_cbranch_scc1 L_safe")
        a("L_next:")
    a(f"    v_xor_b32 v{V_LDS}, {BUF1}, v{V_LDS}")
    a(f"    s_add_u32 s{S_IT}, s{S_IT}, 1")
    a(f"    s_cmp_lt_u32 s{S_IT}, {NIT}")
    a("    s_cbranch_scc1 L_loop")
    a("L_done:")
    a("    s_endpgm")
    if SAFE:
        a("L_safe:")
        a("    s_waitcnt vmcnt(0)")
        lines, _ = finalize(safe_body())
        out += lines
        a("    s_nop 7")
        a("    s_branch L_next")
    a('.section .rodata,"a"')
    a(".p2align 6")
    a(f".amdhsa_kernel {KN}")
    a(f"  .amdhsa_next_free_vgpr {NVGPR}")
    a("  .amdhsa_next_free_sgpr 64")
    a(f"  .amdhsa_accum_offset {NVGPR}")
    a("  .amdhsa_group_segment_fixed_size 0")
    a("  .amdhsa_kernarg_size 64")
    a("  .amdhsa_user_sgpr_count 2")
    a("  .amdhsa_user_sgpr_kernarg_segment_ptr 1")
    a("  .amdhsa_system_sgpr_workgroup_id_x 1")
    a(".end_amdhsa_kernel")
    open(sys.argv[1], 'w').write("\n".join(out) + "\n")


main()
```

```python
import sys, struct, math
sys.path.insert(0, 'gen')
from sched import Ins, vr, schedule, finalize

KN = "standalone__attention_interact_autoint__recsys_kernel"
NWG = 1024
NIT = 4
EBYTES = 4096 * 100 * 64 * 2
BUF1 = 16384
LDS_TOTAL = 40960

opts = dict(a.split('=') for a in sys.argv[2:]) if len(sys.argv) > 2 else {}
SAFE = int(opts.get('safe', 1))
FORCE_SAFE = int(opts.get('force_safe', 0))
NOSCHED = int(opts.get('nosched', 0))
WINDOW = int(opts.get('window', 200))
STAMP = int(opts.get('stamp', 0))
PRIO = int(opts.get('prio', 1))
STF = opts.get('stf', '').replace('+', ' ')
LDF = opts.get('ldf', '').replace('+', ' ')
NOMEM = int(opts.get('nomem', 0))
NOBAR = int(opts.get('nobar', 0))


def f32bits(x):
    return struct.unpack('<I', struct.pack('<f', x))[0]


class Alloc:
    def __init__(self, start):
        self.n = start

    def get(self, k, align=2):
        self.n = (self.n + align - 1) // align * align
        r = self.n
        self.n += k
        return r


A = Alloc(2)
WQ = A.get(16); WK = A.get(16); WV = A.get(16); WR = A.get(16)
KP = A.get(28)
VP = [A.get(14), A.get(14)]
EB = [A.get(8) for _ in range(2)]
PD = [A.get(4) for _ in range(4)]
QP = [A.get(4) for _ in range(2)]
SB = [A.get(8) for _ in range(4)]
ST = [A.get(4) for _ in range(1)]
PT = [A.get(2) for _ in range(2)]
OA = [A.get(8) for _ in range(2)]
RA = [A.get(8) for _ in range(2)]
LA = [A.get(4) for _ in range(2)]
ONES = A.get(4)
CB = A.get(4)
V_LDS = A.get(1, 1)
V_DMA = A.get(1, 1)
V_DMAT = A.get(1, 1)
V_ST = A.get(1, 1)
V_STT = A.get(1, 1)
V_LMAX = 0
V_LMIN = 1
assert A.n <= 256, A.n
NVGPR = 256

S_E = 8; S_O = 12; S_W = 16
S_HEAD = 32; S_CUR = 33; S_NXT = 34; S_IT = 35; S_STO = 36
S_LDSN = 44; S_T0 = 45; S_T1 = 46; S_T2 = 47
S_LO = 48; S_HI = 49

BSHIFT = 40.0
L_LO = 2.0 ** -56
L_HI = 1.0
CSCALE = math.log2(math.e) / math.sqrt(32.0)


def r4(a): return f"v[{a}:{a + 3}]"
def r2(a): return f"v[{a}:{a + 1}]"


def mfma(d, a, b, c=None, tag=''):
    if c is None:
        return Ins(f"v_mfma_f32_16x16x32_bf16 {r4(d)}, {r4(a)}, {r4(b)}, 0", 'mfma', vr(d, 4), vr(a, 4) + vr(b, 4), tag=tag)
    return Ins(f"v_mfma_f32_16x16x32_bf16 {r4(d)}, {r4(a)}, {r4(b)}, {r4(c)}", 'mfma', vr(d, 4), vr(a, 4) + vr(b, 4), vr(c, 4), tag=tag)


def mfmas(d, a, b, c, tag=''):
    return Ins(f"v_mfma_f32_16x16x16_bf16 {r4(d)}, {r2(a)}, {r2(b)}, {r4(c)}", 'mfmas', vr(d, 4), vr(a, 2) + vr(b, 2), vr(c, 4), tag=tag)


def cvt(d, a, b):
    if b is None:
        return Ins(f"v_cvt_pk_bf16_f32 v{d}, v{a}, 0", 'valu', vr(d), vr(a))
    return Ins(f"v_cvt_pk_bf16_f32 v{d}, v{a}, v{b}", 'valu', vr(d), vr(a) + vr(b))


def vexp(d, a):
    return Ins(f"v_exp_f32 v{d}, v{a}", 'trans', vr(d), vr(a))


def dsread(d, off):
    return Ins(f"ds_read_b128 {r4(d)}, v{V_LDS} offset:{off}", 'dsr', vr(d, 4), vr(V_LDS))


def salu(text, defs, uses):
    return Ins(text, 'salu', defs, uses)


class Ring:
    def __init__(self, items):
        self.items = items
        self.i = 0

    def next(self):
        r = self.items[self.i % len(self.items)]
        self.i += 1
        return r


def dma_block():
    L = []
    srd = [f's{S_E + i}' for i in range(4)]
    for t in (0, 2, 4, 6):
        if t == 0:
            L.append(salu(f"s_mov_b32 m0, s{S_LDSN}", ['m0'], [f's{S_LDSN}']))
            so = S_NXT
        else:
            L.append(salu(f"s_add_u32 m0, s{S_LDSN}, {t * 2048}", ['m0', 'scc'], [f's{S_LDSN}']))
            L.append(salu(f"s_add_u32 s{S_T0}, s{S_NXT}, {t * 2048}", [f's{S_T0}', 'scc'], [f's{S_NXT}']))
            so = S_T0
        if t < 6:
            L.append(Ins(f"buffer_load_dwordx4 v{V_DMA}, s[{S_E}:{S_E + 3}], s{so} offen {LDF} lds", 'dma', [], vr(V_DMA) + srd + [f's{so}', 'm0']))
            L.append(Ins(f"buffer_load_dwordx4 v{V_DMA}, s[{S_E}:{S_E + 3}], s{so} offen offset:2048 {LDF} lds", 'dma', [], vr(V_DMA) + srd + [f's{so}', 'm0']))
        else:
            L.append(Ins(f"buffer_load_dwordx4 v{V_DMAT}, s[{S_E}:{S_E + 3}], s{so} offen {LDF} lds", 'dma', [], vr(V_DMAT) + srd + [f's{so}', 'm0']))
    return L


def store(i, data):
    srd = [f's{S_O + k}' for k in range(4)]
    va = V_ST if i < 6 else V_STT
    return Ins(f"buffer_store_dwordx4 {r4(data)}, v{va}, s[{S_O}:{S_O + 3}], s{S_STO + i} offen {STF}", 'store', [],
               vr(data, 4) + vr(va) + srd + [f's{S_STO + i}'])


def kv_tile(t, eb, pd):
    L = []
    d0, d1 = pd.next(), pd.next()
    L.append(mfma(d0, WK + 0, eb + 0)); L.append(mfma(d1, WK + 4, eb + 0))
    L.append(mfma(d0, WK + 8, eb + 4, d0)); L.append(mfma(d1, WK + 12, eb + 4, d1))
    k = KP + 4 * t
    L += [cvt(k, d0, d0 + 1), cvt(k + 1, d0 + 2, d0 + 3), cvt(k + 2, d1, d1 + 1), cvt(k + 3, d1 + 2, d1 + 3)]
    d0, d1 = pd.next(), pd.next()
    L.append(mfma(d0, eb + 0, WV + 0)); L.append(mfma(d1, eb + 0, WV + 4))
    L.append(mfma(d0, eb + 4, WV + 8, d0)); L.append(mfma(d1, eb + 4, WV + 12, d1))
    for u, d in ((0, d0), (1, d1)):
        v = VP[u] + 2 * t
        L.append(cvt(v, d, d + 1))
        if t < 6:
            L.append(cvt(v + 1, d + 2, d + 3))
    return L


def q_proj(eb, pd, q):
    L = []
    d0, d1 = pd.next(), pd.next()
    L.append(mfma(d0, WQ + 0, eb + 0)); L.append(mfma(d1, WQ + 4, eb + 0))
    L.append(mfma(d0, WQ + 8, eb + 4, d0)); L.append(mfma(d1, WQ + 12, eb + 4, d1))
    L += [cvt(q, d0, d0 + 1), cvt(q + 1, d0 + 2, d0 + 3), cvt(q + 2, d1, d1 + 1), cvt(q + 3, d1 + 2, d1 + 3)]
    return L


def res_proj(eb, r):
    return [mfma(r, WR + 0, eb + 0), mfma(r + 4, WR + 4, eb + 0), mfma(r, WR + 8, eb + 4, r), mfma(r + 4, WR + 12, eb + 4, r + 4)]


def epilogue(i, o, r, l, inv):
    L = [Ins(f"v_rcp_f32 v{inv}, v{l}", 'trans', vr(inv), vr(l))]
    for j in range(8):
        L.append(Ins(f"v_fma_f32 v{o + j}, v{o + j}, v{inv}, v{r + j}", 'valu', vr(o + j), vr(o + j) + vr(inv) + vr(r + j)))
    for j in range(4):
        L.append(cvt(o + j, o + 2 * j, o + 2 * j + 1))
    for j in range(4):
        L.append(Ins(f"v_pk_max_i16 v{o + j}, v{o + j}, 0", 'valu', vr(o + j), vr(o + j)))
    L.append(store(i, o))
    return L


def unit_body():
    L = []
    eb = Ring(EB); pd = Ring(PD); qp = Ring(QP); sb = Ring(SB); st = Ring(ST); pt = Ring(PT)
    oa = Ring(OA); ra = Ring(RA); la = Ring(LA)
    for i in range(7):
        if i == 0:
            L.append(salu(f"s_mov_b32 s{S_STO}, s{S_CUR}", [f's{S_STO}'], [f's{S_CUR}']))
        else:
            L.append(salu(f"s_add_u32 s{S_STO + i}, s{S_CUR}, {i * 2048}", [f's{S_STO + i}', 'scc'], [f's{S_CUR}']))
    first = True
    qr = {}

    def qres(i, e):
        q = qp.next(); r = ra.next()
        qr[i] = (q, r)
        return q_proj(e, pd, q) + res_proj(e, r)
    for t in range(7):
        e = eb.next()
        L += [dsread(e, (2 * t) * 1024), dsread(e + 4, (2 * t + 1) * 1024)]
        if t == 1:
            L += dma_block()
        L += kv_tile(t, e, pd)
        if t == 0:
            L += qres(0, e)
    lprev = None
    for i in range(7):
        q, r = qr[i]
        o = oa.next(); l = la.next()
        for p in range(3):
            b = sb.next()
            L.append(mfma(b, KP + 8 * p, q, CB)); L.append(mfma(b + 4, KP + 8 * p + 4, q, CB))
            for j in range(8):
                L.append(vexp(b + j, b + j))
            L += [cvt(b + 3, b + 2, b + 3), cvt(b + 2, b, b + 1), cvt(b + 4, b + 4, b + 5), cvt(b + 5, b + 6, b + 7)]
            c0 = None if p == 0 else o
            c1 = None if p == 0 else o + 4
            cl = None if p == 0 else l
            L.append(mfma(o, VP[0] + 4 * p, b + 2, c0)); L.append(mfma(o + 4, VP[1] + 4 * p, b + 2, c1))
            L.append(mfma(l, ONES, b + 2, cl))
            if p == 0 and i < 6:
                e = eb.next()
                L += [dsread(e, (2 * (i + 1)) * 1024), dsread(e + 4, (2 * (i + 1) + 1) * 1024)]
                L += qres(i + 1, e)
        s = st.next(); pp = pt.next()
        L.append(mfma(s, KP + 24, q, CB))
        L.append(vexp(s, s))
        L.append(cvt(pp, s, None))
        L.append(mfmas(o, VP[0] + 12, pp, o)); L.append(mfmas(o + 4, VP[1] + 12, pp, o + 4))
        L.append(mfmas(l, ONES, pp, l))
        L += epilogue(i, o, r, l, l + 1)
        if i % 2 == 1:
            L.append(Ins(f"v_max3_f32 v{V_LMAX}, v{V_LMAX}, v{lprev}, v{l}", 'valu', vr(V_LMAX), vr(V_LMAX) + vr(lprev) + vr(l)))
            L.append(Ins(f"v_min3_f32 v{V_LMIN}, v{V_LMIN}, v{lprev}, v{l}", 'valu', vr(V_LMIN), vr(V_LMIN) + vr(lprev) + vr(l)))
        elif i == 6:
            L.append(Ins(f"v_max_f32 v{V_LMAX}, v{V_LMAX}, v{l}", 'valu', vr(V_LMAX), vr(V_LMAX) + vr(l)))
            L.append(Ins(f"v_min_f32 v{V_LMIN}, v{V_LMIN}, v{l}", 'valu', vr(V_LMIN), vr(V_LMIN) + vr(l)))
        lprev = l
    return L


def safe_body():
    L = []
    pd = Ring(PD)
    e = EB[0]; q = QP[0]; r = RA[0]; o = OA[0]; l = LA[0]; s6 = ST[0]; pp = PT[0]
    m = LA[1]; m2 = LA[1] + 1
    for i in range(7):
        L += [dsread(e, (2 * i) * 1024), dsread(e + 4, (2 * i + 1) * 1024)]
        L += q_proj(e, pd, q) + res_proj(e, r)
        for p in range(3):
            b = SB[p]
            L.append(mfma(b, KP + 8 * p, q)); L.append(mfma(b + 4, KP + 8 * p + 4, q))
        L.append(mfma(s6, KP + 24, q))
        regs = [SB[p] + j for p in range(3) for j in range(8)]
        L.append(Ins(f"v_mov_b32 v{m}, v{s6}", 'valu', vr(m), vr(s6)))
        for k in range(0, 24, 2):
            L.append(Ins(f"v_max3_f32 v{m}, v{m}, v{regs[k]}, v{regs[k + 1]}", 'valu', vr(m), vr(m) + vr(regs[k]) + vr(regs[k + 1])))
        L.append(Ins(f"v_mov_b32 v{m2}, v{m}", 'valu', vr(m2), vr(m)))
        L.append(Ins(f"v_permlane16_swap_b32 v{m}, v{m2}", 'perm', vr(m) + vr(m2), vr(m) + vr(m2)))
        L.append(Ins(f"v_max_f32 v{m}, v{m}, v{m2}", 'valu', vr(m), vr(m) + vr(m2)))
        L.append(Ins(f"v_mov_b32 v{m2}, v{m}", 'valu', vr(m2), vr(m)))
        L.append(Ins(f"v_permlane32_swap_b32 v{m}, v{m2}", 'perm', vr(m) + vr(m2), vr(m) + vr(m2)))
        L.append(Ins(f"v_max_f32 v{m}, v{m}, v{m2}", 'valu', vr(m), vr(m) + vr(m2)))
        for x in regs + [s6]:
            L.append(Ins(f"v_sub_f32 v{x}, v{x}, v{m}", 'valu', vr(x), vr(x) + vr(m)))
            L.append(vexp(x, x))
        for p in range(3):
            b = SB[p]
            L += [cvt(b + 3, b + 2, b + 3), cvt(b + 2, b, b + 1), cvt(b + 4, b + 4, b + 5), cvt(b + 5, b + 6, b + 7)]
            c0 = None if p == 0 else o
            c1 = None if p == 0 else o + 4
            cl = None if p == 0 else l
            L.append(mfma(o, VP[0] + 4 * p, b + 2, c0)); L.append(mfma(o + 4, VP[1] + 4 * p, b + 2, c1))
            L.append(mfma(l, ONES, b + 2, cl))
        L.append(cvt(pp, s6, None))
        L.append(mfmas(o, VP[0] + 12, pp, o)); L.append(mfmas(o + 4, VP[1] + 12, pp, o + 4))
        L.append(mfmas(l, ONES, pp, l))
        L += epilogue(i, o, r, l, l + 1)
    return L


def prologue():
    P = []
    a = P.append
    a(f"    s_cmp_ge_u32 s2, {NWG}")
    a("    s_cbranch_scc1 L_done")
    if PRIO:
        a("    s_setprio 3")
    if STAMP:
        a("    s_memtime s[64:65]")
        a("    s_memrealtime s[66:67]")
        a("    s_load_dwordx2 s[62:63], s[0:1], 56")
        a("    s_getreg_b32 s61, hwreg(HW_REG_HW_ID)")
        a("    s_getreg_b32 s60, hwreg(HW_REG_XCC_ID)")
    a("    s_load_dwordx4 s[4:7], s[0:1], 0")
    a("    s_load_dwordx4 s[20:23], s[0:1], 16")
    a("    s_load_dwordx4 s[24:27], s[0:1], 32")
    a("    v_lshrrev_b32 v1, 6, v0")
    a("    v_and_b32 v2, 63, v0")
    a(f"    v_readfirstlane_b32 s{S_HEAD}, v1")
    a("    v_lshrrev_b32 v3, 4, v2")
    a("    v_and_b32 v4, 15, v2")
    a("    v_lshlrev_b32 v5, 7, v4")
    a("    v_lshl_add_u32 v5, v3, 4, v5")
    a("    v_lshl_add_u32 v5, v1, 6, v5")
    a(f"    v_mov_b32 v{V_DMA}, v5")
    a(f"    v_mov_b32 v{V_ST}, v5")
    a("    v_lshrrev_b32 v6, 2, v4")
    a("    v_lshlrev_b32 v6, 7, v6")
    a("    v_lshl_add_u32 v6, v3, 4, v6")
    a("    v_lshl_add_u32 v6, v1, 6, v6")
    a(f"    v_mov_b32 v{V_DMAT}, v6")
    a("    v_and_b32 v7, 3, v4")
    a("    v_cmp_ne_u32 vcc, 0, v7")
    a("    v_mov_b32 v7, 0x7f000000")
    a("    s_nop 1")
    a(f"    v_cndmask_b32 v{V_STT}, v6, v7, vcc")
    a(f"    v_lshlrev_b32 v{V_LDS}, 4, v2")
    a("    s_waitcnt lgkmcnt(0)")
    if STAMP:
        a("    s_memtime s[84:85]")
    a(f"    s_mov_b32 s{S_E}, s4"); a(f"    s_and_b32 s{S_E + 1}, s5, 0xffff")
    a(f"    s_mov_b32 s{S_E + 2}, {EBYTES}"); a(f"    s_mov_b32 s{S_E + 3}, 0x00020000")
    a(f"    s_mov_b32 s{S_O}, s26"); a(f"    s_and_b32 s{S_O + 1}, s27, 0xffff")
    a(f"    s_mov_b32 s{S_O + 2}, {EBYTES}"); a(f"    s_mov_b32 s{S_O + 3}, 0x00020000")
    a(f"    s_mul_i32 s{S_T1}, s{S_HEAD}, 12288")
    a(f"    s_add_u32 s{S_T1}, s{S_T1}, {BUF1}")
    a(f"    s_lshl_b32 s{S_T2}, s{S_HEAD}, 12")
    a("    v_lshlrev_b32 v8, 4, v2")
    a(f"    s_mov_b32 s{S_W + 2}, 8192"); a(f"    s_mov_b32 s{S_W + 3}, 0x00020000")
    for mi, (lo, hi) in enumerate(((6, 7), (20, 21), (22, 23))):
        a(f"    s_mov_b32 s{S_W}, s{lo}"); a(f"    s_and_b32 s{S_W + 1}, s{hi}, 0xffff")
        a(f"    s_add_u32 m0, s{S_T1}, {mi * 4096}")
        a("    s_nop 0")
        for k in range(4):
            a(f"    buffer_load_dwordx4 v8, s[{S_W}:{S_W + 3}], s{S_T2} offen offset:{k * 1024} lds")
    a("    v_lshrrev_b32 v9, 2, v2")
    a("    v_lshlrev_b32 v9, 7, v9")
    a("    v_and_b32 v10, 3, v2")
    a("    v_lshl_add_u32 v9, v10, 4, v9")
    a("    v_lshl_add_u32 v9, v1, 6, v9")
    a(f"    s_mov_b32 s{S_W}, s24"); a(f"    s_and_b32 s{S_W + 1}, s25, 0xffff")
    tmp = SB[0]
    assert SB[1] == SB[0] + 8
    a(f"    s_movk_i32 s{S_T0}, 4096")
    a("    s_nop 0")
    a(f"    buffer_load_dwordx4 {r4(tmp)}, v9, s[{S_W}:{S_W + 3}], 0 offen")
    a(f"    buffer_load_dwordx4 {r4(tmp + 4)}, v9, s[{S_W}:{S_W + 3}], 0 offen offset:2048")
    a(f"    buffer_load_dwordx4 {r4(tmp + 8)}, v9, s[{S_W}:{S_W + 3}], s{S_T0} offen")
    a(f"    buffer_load_dwordx4 {r4(tmp + 12)}, v9, s[{S_W}:{S_W + 3}], s{S_T0} offen offset:2048")
    a(f"    s_mul_i32 s{S_NXT}, s2, 12800")
    a(f"    s_lshl_b32 s{S_LDSN}, s{S_HEAD}, 10")
    dl, _ = finalize(dma_block())
    P.extend(dl)
    for k in range(4):
        a(f"    v_mov_b32 v{ONES + k}, 0x3f803f80")
        a(f"    v_mov_b32 v{CB + k}, 0x{f32bits(-BSHIFT):08x}")
    for k in range(2):
        a(f"    v_mov_b32 v{PT[k] + 1}, 0")
        a(f"    v_mov_b32 v{VP[k] + 13}, 0")
    a("    v_lshrrev_b32 v10, 2, v4")
    a("    v_lshl_add_u32 v10, v3, 3, v10")
    a("    v_lshlrev_b32 v10, 6, v10")
    a("    v_and_b32 v11, 3, v4")
    a("    v_lshl_add_u32 v12, v11, 3, v10")
    a("    v_lshl_add_u32 v13, v11, 4, v10")
    a(f"    v_add_u32 v12, s{S_T1}, v12")
    a(f"    v_add_u32 v13, s{S_T1}, v13")
    a(f"    v_add_u32 v14, s{S_T1}, v8")
    a("    s_waitcnt vmcnt(11)")
    if STAMP:
        a("    s_memtime s[86:87]")
        a("    s_waitcnt lgkmcnt(0)")

    def trread(base, mi, addr, tstride):
        for s in range(2):
            for t in range(2):
                for half in range(2):
                    off = mi * 4096 + (32 * s + 4 * half) * 64 + t * tstride
                    a(f"    ds_read_b64_tr_b16 {r2(base + 8 * s + 4 * t + 2 * half)}, v{addr} offset:{off}")
    a("    v_mov_b32 v%d, v12" % (OA[0]))
    a("    v_mov_b32 v%d, v13" % (OA[0] + 1))
    a("    v_mov_b32 v%d, v14" % (OA[0] + 2))
    trread(WQ, 0, OA[0], 32)
    a("    s_waitcnt lgkmcnt(0)")
    trread(WK, 1, OA[0], 32)
    trread(WV, 2, OA[0] + 1, 8)
    a("    s_waitcnt vmcnt(7) lgkmcnt(0)")
    for k in range(4):
        a(f"    ds_write_b128 v{OA[0] + 2}, {r4(tmp + 4 * k)} offset:{k * 1024}")
    t0, t1 = OA[1], OA[1] + 1
    a(f"    s_mov_b32 s{S_T0}, 0x{f32bits(CSCALE):08x}")
    for k in range(16):
        a(f"    v_lshlrev_b32 v{t0}, 16, v{WQ + k}")
        a(f"    v_and_b32 v{t1}, 0xffff0000, v{WQ + k}")
        a(f"    v_mul_f32 v{t0}, s{S_T0}, v{t0}")
        a(f"    v_mul_f32 v{t1}, s{S_T0}, v{t1}")
        a(f"    v_cvt_pk_bf16_f32 v{WQ + k}, v{t0}, v{t1}")
    a("    s_waitcnt lgkmcnt(0)")
    trread(WR, 0, OA[0] + 1, 8)
    a(f"    s_mov_b32 s{S_IT}, 0")
    a(f"    s_mov_b32 s{S_LO}, 0x{f32bits(L_LO):08x}")
    a(f"    s_mov_b32 s{S_HI}, 0x{f32bits(L_HI):08x}")
    if STAMP:
        a("    s_waitcnt lgkmcnt(0)")
        a("    s_memtime s[88:89]")
    a("    s_waitcnt vmcnt(0) lgkmcnt(0)")
    return P


def main():
    out = []
    a = out.append
    hdr = open('standalone__attention_interact_autoint__recsys.s.ref').read().split('\n')
    for line in hdr:
        if line.startswith('; @launch'):
            a(f"; @launch grid=({NWG},1,1) block=(128,1,1) lds={LDS_TOTAL}")
        elif line.startswith(';'):
            a(line)
        else:
            break
    a('.amdgcn_target "amdgcn-amd-amdhsa--gfx950"')
    a(".text")
    a(f".globl {KN}")
    a(".p2align 8")
    a(f".type {KN},@function")
    a(f"{KN}:")
    out += prologue()
    if STAMP:
        a("    s_memtime s[68:69]")
        a("    s_waitcnt lgkmcnt(0)")
    a("L_loop:")
    a("    s_waitcnt vmcnt(7)")
    if not NOBAR:
        a("    s_barrier")
    if STAMP:
        a("    s_memtime s[80:81]")
        a("    s_waitcnt lgkmcnt(0)")
        for k in range(4):
            a(f"    s_cmp_eq_u32 s{S_IT}, {k}")
            a(f"    s_cselect_b32 s{70+k}, s80, s{70+k}")
    a(f"    s_mov_b32 s{S_CUR}, s{S_NXT}")
    a(f"    s_add_u32 s{S_NXT}, s{S_NXT}, {NWG * 12800}")
    a(f"    s_xor_b32 s{S_LDSN}, s{S_LDSN}, {BUF1}")
    a(f"    v_mov_b32 v{V_LMAX}, 0")
    a(f"    v_mov_b32 v{V_LMIN}, 1.0")
    body = unit_body()
    if NOMEM & 1:
        body = [x for x in body if x.kind != 'dma']
    if NOMEM & 2:
        body = [x for x in body if x.kind != 'store']
    if NOSCHED:
        sched, est = body, 0
    else:
        sched, est = schedule(body, window=WINDOW)
    lines, nnop = finalize(sched)
    sys.stderr.write(f"unit body: {len(body)} instrs, est {est} cycles, {nnop} nop states, vgprs {A.n}\n")
    out += lines
    if SAFE:
        a(f"    v_cmp_lt_f32 vcc, s{S_HI}, v{V_LMAX}")
        a(f"    v_cmp_gt_f32 s[50:51], s{S_LO}, v{V_LMIN}")
        a("    s_nop 1")
        a("    s_or_b64 vcc, vcc, s[50:51]")
        if FORCE_SAFE:
            a("    s_branch L_safe")
        a("    s_cbranch_scc1 L_safe")
        a("L_next:")
    a(f"    v_xor_b32 v{V_LDS}, {BUF1}, v{V_LDS}")
    a(f"    s_add_u32 s{S_IT}, s{S_IT}, 1")
    if PRIO:
        for k in (1, 2, 3):
            a(f"    s_cmp_lg_u32 s{S_IT}, {k}")
            a(f"    s_cbranch_scc1 L_p{k}")
            a(f"    s_setprio {3 - k}")
            a(f"L_p{k}:")
    a(f"    s_cmp_lt_u32 s{S_IT}, {NIT}")
    a("    s_cbranch_scc1 L_loop")
    if STAMP:
        a("    s_memtime s[74:75]")
        a("    s_waitcnt vmcnt(0)")
        a("    s_memtime s[76:77]")
        a("    s_memrealtime s[78:79]")
        a("    s_waitcnt lgkmcnt(0)")
        a(f"    s_lshl_b32 s82, s2, 1")
        a(f"    s_add_u32 s82, s82, s{S_HEAD}")
        a(f"    s_lshl_b32 s82, s82, 6")
        a(f"    v_mov_b32 v2, s82")
        regs = [60, 61, 64, 66, 68, 70, 71, 72, 73, 74, 76, 78, 84, 86, 88]
        for k, r in enumerate(regs):
            a(f"    v_mov_b32 v3, s{r}")
            a(f"    global_store_dword v2, v3, s[62:63] offset:{4*k}")
    a("L_done:")
    a("    s_endpgm")
    if SAFE:
        a("L_safe:")
        a("    s_waitcnt vmcnt(0)")
        lines, _ = finalize(safe_body())
        out += lines
        a("    s_nop 7")
        a("    s_branch L_next")
    a('.section .rodata,"a"')
    a(".p2align 6")
    a(f".amdhsa_kernel {KN}")
    a(f"  .amdhsa_next_free_vgpr {NVGPR}")
    a(f"  .amdhsa_next_free_sgpr {96 if STAMP else 64}")
    a(f"  .amdhsa_accum_offset {NVGPR}")
    a("  .amdhsa_group_segment_fixed_size 0")
    a("  .amdhsa_kernarg_size 64")
    a("  .amdhsa_user_sgpr_count 2")
    a("  .amdhsa_user_sgpr_kernarg_segment_ptr 1")
    a("  .amdhsa_system_sgpr_workgroup_id_x 1")
    a(".end_amdhsa_kernel")
    open(sys.argv[1], 'w').write("\n".join(out) + "\n")


main()
```

```python
import sys, struct, math
sys.path.insert(0, 'gen')
from sched import Ins, vr, schedule, finalize

KN = "standalone__attention_interact_autoint__recsys_kernel"
NWG = 1024
NIT = 4
EBYTES = 4096 * 100 * 64 * 2
BUF1 = 16384
LDS_TOTAL = 40960

opts = dict(a.split('=') for a in sys.argv[2:]) if len(sys.argv) > 2 else {}
SAFE = int(opts.get('safe', 1))
FORCE_SAFE = int(opts.get('force_safe', 0))
NOSCHED = int(opts.get('nosched', 0))
WINDOW = int(opts.get('window', 200))
STAMP = int(opts.get('stamp', 0))
PRIO = int(opts.get('prio', 1))
STF = opts.get('stf', '').replace('+', ' ')
LDF = opts.get('ldf', '').replace('+', ' ')
DBGT = int(opts.get('dbgt', 0))
NOMEM = int(opts.get('nomem', 0))
NOBAR = int(opts.get('nobar', 0))


def f32bits(x):
    return struct.unpack('<I', struct.pack('<f', x))[0]


class Alloc:
    def __init__(self, start):
        self.n = start

    def get(self, k, align=2):
        self.n = (self.n + align - 1) // align * align
        r = self.n
        self.n += k
        return r


A = Alloc(2)
WQ = A.get(16); WK = A.get(16); WV = A.get(16); WR = A.get(16)
KP = A.get(28)
VP = [A.get(14), A.get(14)]
EB = [A.get(8) for _ in range(2)]
PD = [A.get(4) for _ in range(4)]
QP = [A.get(4) for _ in range(2)]
SB = [A.get(8) for _ in range(4)]
ST = [A.get(4) for _ in range(1)]
PT = [A.get(2) for _ in range(2)]
OA = [A.get(8) for _ in range(2)]
RA = [A.get(8) for _ in range(2)]
LA = [A.get(4) for _ in range(2)]
ONES = A.get(4)
CB = A.get(4)
V_LDS = A.get(1, 1)
V_DMA = A.get(1, 1)
V_DMAT = A.get(1, 1)
V_ST = A.get(1, 1)
V_STT = A.get(1, 1)
V_LMAX = 0
V_LMIN = 1
assert A.n <= 256, A.n
NVGPR = 256

S_E = 8; S_O = 12; S_W = 16
S_HEAD = 32; S_CUR = 33; S_NXT = 34; S_IT = 35; S_STO = 36
S_LDSN = 44; S_T0 = 45; S_T1 = 46; S_T2 = 47
S_LO = 48; S_HI = 49

BSHIFT = 40.0
L_LO = 2.0 ** -56
L_HI = 1.0
CSCALE = math.log2(math.e) / math.sqrt(32.0)


def r4(a): return f"v[{a}:{a + 3}]"
def r2(a): return f"v[{a}:{a + 1}]"


def mfma(d, a, b, c=None, tag=''):
    if c is None:
        return Ins(f"v_mfma_f32_16x16x32_bf16 {r4(d)}, {r4(a)}, {r4(b)}, 0", 'mfma', vr(d, 4), vr(a, 4) + vr(b, 4), tag=tag)
    return Ins(f"v_mfma_f32_16x16x32_bf16 {r4(d)}, {r4(a)}, {r4(b)}, {r4(c)}", 'mfma', vr(d, 4), vr(a, 4) + vr(b, 4), vr(c, 4), tag=tag)


def mfmas(d, a, b, c, tag=''):
    return Ins(f"v_mfma_f32_16x16x16_bf16 {r4(d)}, {r2(a)}, {r2(b)}, {r4(c)}", 'mfmas', vr(d, 4), vr(a, 2) + vr(b, 2), vr(c, 4), tag=tag)


def cvt(d, a, b):
    if b is None:
        return Ins(f"v_cvt_pk_bf16_f32 v{d}, v{a}, 0", 'valu', vr(d), vr(a))
    return Ins(f"v_cvt_pk_bf16_f32 v{d}, v{a}, v{b}", 'valu', vr(d), vr(a) + vr(b))


def vexp(d, a):
    return Ins(f"v_exp_f32 v{d}, v{a}", 'trans', vr(d), vr(a))


def dsread(d, off):
    return Ins(f"ds_read_b128 {r4(d)}, v{V_LDS} offset:{off}", 'dsr', vr(d, 4), vr(V_LDS))


def salu(text, defs, uses):
    return Ins(text, 'salu', defs, uses)


class Ring:
    def __init__(self, items):
        self.items = items
        self.i = 0

    def next(self):
        r = self.items[self.i % len(self.items)]
        self.i += 1
        return r


def dma_block():
    L = []
    srd = [f's{S_E + i}' for i in range(4)]
    for t in (0, 2, 4, 6):
        if t == 0:
            L.append(salu(f"s_mov_b32 m0, s{S_LDSN}", ['m0'], [f's{S_LDSN}']))
            so = S_NXT
        else:
            L.append(salu(f"s_add_u32 m0, s{S_LDSN}, {t * 2048}", ['m0', 'scc'], [f's{S_LDSN}']))
            L.append(salu(f"s_add_u32 s{S_T0}, s{S_NXT}, {t * 2048}", [f's{S_T0}', 'scc'], [f's{S_NXT}']))
            so = S_T0
        if t < 6:
            L.append(Ins(f"buffer_load_dwordx4 v{V_DMA}, s[{S_E}:{S_E + 3}], s{so} offen {LDF} lds", 'dma', [], vr(V_DMA) + srd + [f's{so}', 'm0']))
            L.append(Ins(f"buffer_load_dwordx4 v{V_DMA}, s[{S_E}:{S_E + 3}], s{so} offen offset:2048 {LDF} lds", 'dma', [], vr(V_DMA) + srd + [f's{so}', 'm0']))
        else:
            L.append(Ins(f"buffer_load_dwordx4 v{V_DMAT}, s[{S_E}:{S_E + 3}], s{so} offen {LDF} lds", 'dma', [], vr(V_DMAT) + srd + [f's{so}', 'm0']))
    return L


def store(i, data):
    srd = [f's{S_O + k}' for k in range(4)]
    va = V_ST if i < 6 else V_STT
    return Ins(f"buffer_store_dwordx4 {r4(data)}, v{va}, s[{S_O}:{S_O + 3}], s{S_STO + i} offen {STF}", 'store', [],
               vr(data, 4) + vr(va) + srd + [f's{S_STO + i}'])


def kv_tile(t, eb, pd):
    L = []
    d0, d1 = pd.next(), pd.next()
    L.append(mfma(d0, WK + 0, eb + 0)); L.append(mfma(d1, WK + 4, eb + 0))
    L.append(mfma(d0, WK + 8, eb + 4, d0)); L.append(mfma(d1, WK + 12, eb + 4, d1))
    k = KP + 4 * t
    L += [cvt(k, d0, d0 + 1), cvt(k + 1, d0 + 2, d0 + 3), cvt(k + 2, d1, d1 + 1), cvt(k + 3, d1 + 2, d1 + 3)]
    d0, d1 = pd.next(), pd.next()
    L.append(mfma(d0, eb + 0, WV + 0)); L.append(mfma(d1, eb + 0, WV + 4))
    L.append(mfma(d0, eb + 4, WV + 8, d0)); L.append(mfma(d1, eb + 4, WV + 12, d1))
    for u, d in ((0, d0), (1, d1)):
        v = VP[u] + 2 * t
        L.append(cvt(v, d, d + 1))
        if t < 6:
            L.append(cvt(v + 1, d + 2, d + 3))
    return L


def q_proj(eb, pd, q):
    L = []
    d0, d1 = pd.next(), pd.next()
    L.append(mfma(d0, WQ + 0, eb + 0)); L.append(mfma(d1, WQ + 4, eb + 0))
    L.append(mfma(d0, WQ + 8, eb + 4, d0)); L.append(mfma(d1, WQ + 12, eb + 4, d1))
    L += [cvt(q, d0, d0 + 1), cvt(q + 1, d0 + 2, d0 + 3), cvt(q + 2, d1, d1 + 1), cvt(q + 3, d1 + 2, d1 + 3)]
    return L


def res_proj(eb, r):
    return [mfma(r, WR + 0, eb + 0), mfma(r + 4, WR + 4, eb + 0), mfma(r, WR + 8, eb + 4, r), mfma(r + 4, WR + 12, eb + 4, r + 4)]


def epilogue(i, o, r, l, inv):
    L = [Ins(f"v_rcp_f32 v{inv}, v{l}", 'trans', vr(inv), vr(l))]
    for j in range(8):
        L.append(Ins(f"v_fma_f32 v{o + j}, v{o + j}, v{inv}, v{r + j}", 'valu', vr(o + j), vr(o + j) + vr(inv) + vr(r + j)))
    for j in range(4):
        L.append(cvt(o + j, o + 2 * j, o + 2 * j + 1))
    for j in range(4):
        L.append(Ins(f"v_pk_max_i16 v{o + j}, v{o + j}, 0", 'valu', vr(o + j), vr(o + j)))
    L.append(store(i, o))
    return L


def unit_body():
    L = []
    eb = Ring(EB); pd = Ring(PD); qp = Ring(QP); sb = Ring(SB); st = Ring(ST); pt = Ring(PT)
    oa = Ring(OA); ra = Ring(RA); la = Ring(LA)
    for i in range(7):
        if i == 0:
            L.append(salu(f"s_mov_b32 s{S_STO}, s{S_CUR}", [f's{S_STO}'], [f's{S_CUR}']))
        else:
            L.append(salu(f"s_add_u32 s{S_STO + i}, s{S_CUR}, {i * 2048}", [f's{S_STO + i}', 'scc'], [f's{S_CUR}']))
    first = True
    qr = {}

    def qres(i, e):
        q = qp.next(); r = ra.next()
        qr[i] = (q, r)
        return q_proj(e, pd, q) + res_proj(e, r)
    for t in range(7):
        e = eb.next()
        L += [dsread(e, (2 * t) * 1024), dsread(e + 4, (2 * t + 1) * 1024)]
        if t == 1:
            L += dma_block()
        L += kv_tile(t, e, pd)
        if t == 0:
            L += qres(0, e)
    lprev = None
    for i in range(7):
        q, r = qr[i]
        o = oa.next(); l = la.next()
        for p in range(3):
            b = sb.next()
            L.append(mfma(b, KP + 8 * p, q, CB)); L.append(mfma(b + 4, KP + 8 * p + 4, q, CB))
            for j in range(8):
                L.append(vexp(b + j, b + j))
            L += [cvt(b + 3, b + 2, b + 3), cvt(b + 2, b, b + 1), cvt(b + 4, b + 4, b + 5), cvt(b + 5, b + 6, b + 7)]
            c0 = None if p == 0 else o
            c1 = None if p == 0 else o + 4
            cl = None if p == 0 else l
            L.append(mfma(o, VP[0] + 4 * p, b + 2, c0)); L.append(mfma(o + 4, VP[1] + 4 * p, b + 2, c1))
            L.append(mfma(l, ONES, b + 2, cl))
            if p == 0 and i < 6:
                e = eb.next()
                L += [dsread(e, (2 * (i + 1)) * 1024), dsread(e + 4, (2 * (i + 1) + 1) * 1024)]
                L += qres(i + 1, e)
        s = st.next(); pp = pt.next()
        L.append(mfma(s, KP + 24, q, CB))
        L.append(vexp(s, s))
        L.append(cvt(pp, s, None))
        L.append(mfmas(o, VP[0] + 12, pp, o)); L.append(mfmas(o + 4, VP[1] + 12, pp, o + 4))
        L.append(mfmas(l, ONES, pp, l))
        L += epilogue(i, o, r, l, l + 1)
        if i % 2 == 1:
            L.append(Ins(f"v_max3_f32 v{V_LMAX}, v{V_LMAX}, v{lprev}, v{l}", 'valu', vr(V_LMAX), vr(V_LMAX) + vr(lprev) + vr(l)))
            L.append(Ins(f"v_min3_f32 v{V_LMIN}, v{V_LMIN}, v{lprev}, v{l}", 'valu', vr(V_LMIN), vr(V_LMIN) + vr(lprev) + vr(l)))
        elif i == 6:
            L.append(Ins(f"v_max_f32 v{V_LMAX}, v{V_LMAX}, v{l}", 'valu', vr(V_LMAX), vr(V_LMAX) + vr(l)))
            L.append(Ins(f"v_min_f32 v{V_LMIN}, v{V_LMIN}, v{l}", 'valu', vr(V_LMIN), vr(V_LMIN) + vr(l)))
        lprev = l
    return L


def safe_body():
    L = []
    pd = Ring(PD)
    e = EB[0]; q = QP[0]; r = RA[0]; o = OA[0]; l = LA[0]; s6 = ST[0]; pp = PT[0]
    m = LA[1]; m2 = LA[1] + 1
    for i in range(7):
        L += [dsread(e, (2 * i) * 1024), dsread(e + 4, (2 * i + 1) * 1024)]
        L += q_proj(e, pd, q) + res_proj(e, r)
        for p in range(3):
            b = SB[p]
            L.append(mfma(b, KP + 8 * p, q)); L.append(mfma(b + 4, KP + 8 * p + 4, q))
        L.append(mfma(s6, KP + 24, q))
        regs = [SB[p] + j for p in range(3) for j in range(8)]
        L.append(Ins(f"v_mov_b32 v{m}, v{s6}", 'valu', vr(m), vr(s6)))
        for k in range(0, 24, 2):
            L.append(Ins(f"v_max3_f32 v{m}, v{m}, v{regs[k]}, v{regs[k + 1]}", 'valu', vr(m), vr(m) + vr(regs[k]) + vr(regs[k + 1])))
        L.append(Ins(f"v_mov_b32 v{m2}, v{m}", 'valu', vr(m2), vr(m)))
        L.append(Ins(f"v_permlane16_swap_b32 v{m}, v{m2}", 'perm', vr(m) + vr(m2), vr(m) + vr(m2)))
        L.append(Ins(f"v_max_f32 v{m}, v{m}, v{m2}", 'valu', vr(m), vr(m) + vr(m2)))
        L.append(Ins(f"v_mov_b32 v{m2}, v{m}", 'valu', vr(m2), vr(m)))
        L.append(Ins(f"v_permlane32_swap_b32 v{m}, v{m2}", 'perm', vr(m) + vr(m2), vr(m) + vr(m2)))
        L.append(Ins(f"v_max_f32 v{m}, v{m}, v{m2}", 'valu', vr(m), vr(m) + vr(m2)))
        for x in regs + [s6]:
            L.append(Ins(f"v_sub_f32 v{x}, v{x}, v{m}", 'valu', vr(x), vr(x) + vr(m)))
            L.append(vexp(x, x))
        for p in range(3):
            b = SB[p]
            L += [cvt(b + 3, b + 2, b + 3), cvt(b + 2, b, b + 1), cvt(b + 4, b + 4, b + 5), cvt(b + 5, b + 6, b + 7)]
            c0 = None if p == 0 else o
            c1 = None if p == 0 else o + 4
            cl = None if p == 0 else l
            L.append(mfma(o, VP[0] + 4 * p, b + 2, c0)); L.append(mfma(o + 4, VP[1] + 4 * p, b + 2, c1))
            L.append(mfma(l, ONES, b + 2, cl))
        L.append(cvt(pp, s6, None))
        L.append(mfmas(o, VP[0] + 12, pp, o)); L.append(mfmas(o + 4, VP[1] + 12, pp, o + 4))
        L.append(mfmas(l, ONES, pp, l))
        L += epilogue(i, o, r, l, l + 1)
    return L


def prologue():
    P = []
    a = P.append
    a(f"    s_cmp_ge_u32 s2, {NWG}")
    a("    s_cbranch_scc1 L_done")
    if PRIO:
        a("    s_setprio 3")
    if STAMP:
        a("    s_memtime s[64:65]")
        a("    s_memrealtime s[66:67]")
        a("    s_load_dwordx2 s[62:63], s[0:1], 56")
        a("    s_getreg_b32 s61, hwreg(HW_REG_HW_ID)")
        a("    s_getreg_b32 s60, hwreg(HW_REG_XCC_ID)")
    if DBGT:
        a("    s_memrealtime s[66:67]")
        a("    s_memtime s[64:65]")
        a("    s_load_dwordx2 s[62:63], s[0:1], 48")
    a("    s_load_dwordx4 s[4:7], s[0:1], 0")
    a("    s_load_dwordx4 s[20:23], s[0:1], 16")
    a("    s_load_dwordx4 s[24:27], s[0:1], 32")
    a("    v_lshrrev_b32 v1, 6, v0")
    a("    v_and_b32 v2, 63, v0")
    a(f"    v_readfirstlane_b32 s{S_HEAD}, v1")
    a("    v_lshrrev_b32 v3, 4, v2")
    a("    v_and_b32 v4, 15, v2")
    a("    v_lshlrev_b32 v5, 7, v4")
    a("    v_lshl_add_u32 v5, v3, 4, v5")
    a("    v_lshl_add_u32 v5, v1, 6, v5")
    a(f"    v_mov_b32 v{V_DMA}, v5")
    a(f"    v_mov_b32 v{V_ST}, v5")
    a("    v_lshrrev_b32 v6, 2, v4")
    a("    v_lshlrev_b32 v6, 7, v6")
    a("    v_lshl_add_u32 v6, v3, 4, v6")
    a("    v_lshl_add_u32 v6, v1, 6, v6")
    a(f"    v_mov_b32 v{V_DMAT}, v6")
    a("    v_and_b32 v7, 3, v4")
    a("    v_cmp_ne_u32 vcc, 0, v7")
    a("    v_mov_b32 v7, 0x7f000000")
    a("    s_nop 1")
    a(f"    v_cndmask_b32 v{V_STT}, v6, v7, vcc")
    a(f"    v_lshlrev_b32 v{V_LDS}, 4, v2")
    a("    s_waitcnt lgkmcnt(0)")
    if STAMP:
        a("    s_memtime s[84:85]")
    a(f"    s_mov_b32 s{S_E}, s4"); a(f"    s_and_b32 s{S_E + 1}, s5, 0xffff")
    a(f"    s_mov_b32 s{S_E + 2}, {EBYTES}"); a(f"    s_mov_b32 s{S_E + 3}, 0x00020000")
    a(f"    s_mov_b32 s{S_O}, s26"); a(f"    s_and_b32 s{S_O + 1}, s27, 0xffff")
    a(f"    s_mov_b32 s{S_O + 2}, {EBYTES}"); a(f"    s_mov_b32 s{S_O + 3}, 0x00020000")
    a(f"    s_mul_i32 s{S_T1}, s{S_HEAD}, 12288")
    a(f"    s_add_u32 s{S_T1}, s{S_T1}, {BUF1}")
    a(f"    s_lshl_b32 s{S_T2}, s{S_HEAD}, 12")
    a("    v_lshlrev_b32 v8, 4, v2")
    a(f"    s_mov_b32 s{S_W + 2}, 8192"); a(f"    s_mov_b32 s{S_W + 3}, 0x00020000")
    for mi, (lo, hi) in enumerate(((6, 7), (20, 21), (22, 23))):
        a(f"    s_mov_b32 s{S_W}, s{lo}"); a(f"    s_and_b32 s{S_W + 1}, s{hi}, 0xffff")
        a(f"    s_add_u32 m0, s{S_T1}, {mi * 4096}")
        a("    s_nop 0")
        for k in range(4):
            a(f"    buffer_load_dwordx4 v8, s[{S_W}:{S_W + 3}], s{S_T2} offen offset:{k * 1024} lds")
    a("    v_lshrrev_b32 v9, 2, v2")
    a("    v_lshlrev_b32 v9, 7, v9")
    a("    v_and_b32 v10, 3, v2")
    a("    v_lshl_add_u32 v9, v10, 4, v9")
    a("    v_lshl_add_u32 v9, v1, 6, v9")
    a(f"    s_mov_b32 s{S_W}, s24"); a(f"    s_and_b32 s{S_W + 1}, s25, 0xffff")
    tmp = SB[0]
    assert SB[1] == SB[0] + 8
    a(f"    s_movk_i32 s{S_T0}, 4096")
    a("    s_nop 0")
    a(f"    buffer_load_dwordx4 {r4(tmp)}, v9, s[{S_W}:{S_W + 3}], 0 offen")
    a(f"    buffer_load_dwordx4 {r4(tmp + 4)}, v9, s[{S_W}:{S_W + 3}], 0 offen offset:2048")
    a(f"    buffer_load_dwordx4 {r4(tmp + 8)}, v9, s[{S_W}:{S_W + 3}], s{S_T0} offen")
    a(f"    buffer_load_dwordx4 {r4(tmp + 12)}, v9, s[{S_W}:{S_W + 3}], s{S_T0} offen offset:2048")
    a(f"    s_mul_i32 s{S_NXT}, s2, 12800")
    a(f"    s_lshl_b32 s{S_LDSN}, s{S_HEAD}, 10")
    dl, _ = finalize(dma_block())
    P.extend(dl)
    for k in range(4):
        a(f"    v_mov_b32 v{ONES + k}, 0x3f803f80")
        a(f"    v_mov_b32 v{CB + k}, 0x{f32bits(-BSHIFT):08x}")
    for k in range(2):
        a(f"    v_mov_b32 v{PT[k] + 1}, 0")
        a(f"    v_mov_b32 v{VP[k] + 13}, 0")
    a("    v_lshrrev_b32 v10, 2, v4")
    a("    v_lshl_add_u32 v10, v3, 3, v10")
    a("    v_lshlrev_b32 v10, 6, v10")
    a("    v_and_b32 v11, 3, v4")
    a("    v_lshl_add_u32 v12, v11, 3, v10")
    a("    v_lshl_add_u32 v13, v11, 4, v10")
    a(f"    v_add_u32 v12, s{S_T1}, v12")
    a(f"    v_add_u32 v13, s{S_T1}, v13")
    a(f"    v_add_u32 v14, s{S_T1}, v8")
    a("    s_waitcnt vmcnt(11)")
    if STAMP:
        a("    s_memtime s[86:87]")
        a("    s_waitcnt lgkmcnt(0)")

    def trread(base, mi, addr, tstride):
        for s in range(2):
            for t in range(2):
                for half in range(2):
                    off = mi * 4096 + (32 * s + 4 * half) * 64 + t * tstride
                    a(f"    ds_read_b64_tr_b16 {r2(base + 8 * s + 4 * t + 2 * half)}, v{addr} offset:{off}")
    a("    v_mov_b32 v%d, v12" % (OA[0]))
    a("    v_mov_b32 v%d, v13" % (OA[0] + 1))
    a("    v_mov_b32 v%d, v14" % (OA[0] + 2))
    trread(WQ, 0, OA[0], 32)
    a("    s_waitcnt lgkmcnt(0)")
    trread(WK, 1, OA[0], 32)
    trread(WV, 2, OA[0] + 1, 8)
    a("    s_waitcnt vmcnt(7) lgkmcnt(0)")
    for k in range(4):
        a(f"    ds_write_b128 v{OA[0] + 2}, {r4(tmp + 4 * k)} offset:{k * 1024}")
    t0, t1 = OA[1], OA[1] + 1
    a(f"    s_mov_b32 s{S_T0}, 0x{f32bits(CSCALE):08x}")
    for k in range(16):
        a(f"    v_lshlrev_b32 v{t0}, 16, v{WQ + k}")
        a(f"    v_and_b32 v{t1}, 0xffff0000, v{WQ + k}")
        a(f"    v_mul_f32 v{t0}, s{S_T0}, v{t0}")
        a(f"    v_mul_f32 v{t1}, s{S_T0}, v{t1}")
        a(f"    v_cvt_pk_bf16_f32 v{WQ + k}, v{t0}, v{t1}")
    a("    s_waitcnt lgkmcnt(0)")
    trread(WR, 0, OA[0] + 1, 8)
    a(f"    s_mov_b32 s{S_IT}, 0")
    a(f"    s_mov_b32 s{S_LO}, 0x{f32bits(L_LO):08x}")
    a(f"    s_mov_b32 s{S_HI}, 0x{f32bits(L_HI):08x}")
    if STAMP:
        a("    s_waitcnt lgkmcnt(0)")
        a("    s_memtime s[88:89]")
    a("    s_waitcnt vmcnt(0) lgkmcnt(0)")
    return P


def main():
    out = []
    a = out.append
    hdr = open('standalone__attention_interact_autoint__recsys.s.ref').read().split('\n')
    for line in hdr:
        if line.startswith('; @launch'):
            a(f"; @launch grid=({NWG},1,1) block=(128,1,1) lds={LDS_TOTAL}")
        elif line.startswith(';'):
            a(line)
        else:
            break
    a('.amdgcn_target "amdgcn-amd-amdhsa--gfx950"')
    a(".text")
    a(f".globl {KN}")
    a(".p2align 8")
    a(f".type {KN},@function")
    a(f"{KN}:")
    out += prologue()
    if STAMP:
        a("    s_memtime s[68:69]")
        a("    s_waitcnt lgkmcnt(0)")
    a("L_loop:")
    a("    s_waitcnt vmcnt(7)")
    if not NOBAR:
        a("    s_barrier")
    if STAMP:
        a("    s_memtime s[80:81]")
        a("    s_waitcnt lgkmcnt(0)")
        for k in range(4):
            a(f"    s_cmp_eq_u32 s{S_IT}, {k}")
            a(f"    s_cselect_b32 s{70+k}, s80, s{70+k}")
    a(f"    s_mov_b32 s{S_CUR}, s{S_NXT}")
    a(f"    s_add_u32 s{S_NXT}, s{S_NXT}, {NWG * 12800}")
    a(f"    s_xor_b32 s{S_LDSN}, s{S_LDSN}, {BUF1}")
    a(f"    v_mov_b32 v{V_LMAX}, 0")
    a(f"    v_mov_b32 v{V_LMIN}, 1.0")
    body = unit_body()
    if NOMEM & 1:
        body = [x for x in body if x.kind != 'dma']
    if NOMEM & 2:
        body = [x for x in body if x.kind != 'store']
    if NOSCHED:
        sched, est = body, 0
    else:
        sched, est = schedule(body, window=WINDOW)
    lines, nnop = finalize(sched)
    sys.stderr.write(f"unit body: {len(body)} instrs, est {est} cycles, {nnop} nop states, vgprs {A.n}\n")
    out += lines
    if SAFE:
        a(f"    v_cmp_lt_f32 vcc, s{S_HI}, v{V_LMAX}")
        a(f"    v_cmp_gt_f32 s[50:51], s{S_LO}, v{V_LMIN}")
        a("    s_nop 1")
        a("    s_or_b64 vcc, vcc, s[50:51]")
        if FORCE_SAFE:
            a("    s_branch L_safe")
        a("    s_cbranch_scc1 L_safe")
        a("L_next:")
    a(f"    v_xor_b32 v{V_LDS}, {BUF1}, v{V_LDS}")
    a(f"    s_add_u32 s{S_IT}, s{S_IT}, 1")
    if PRIO:
        for k in (1, 2, 3):
            a(f"    s_cmp_lg_u32 s{S_IT}, {k}")
            a(f"    s_cbranch_scc1 L_p{k}")
            a(f"    s_setprio {3 - k}")
            a(f"L_p{k}:")
    a(f"    s_cmp_lt_u32 s{S_IT}, {NIT}")
    a("    s_cbranch_scc1 L_loop")
    if STAMP:
        a("    s_memtime s[74:75]")
        a("    s_waitcnt vmcnt(0)")
        a("    s_memtime s[76:77]")
        a("    s_memrealtime s[78:79]")
        a("    s_waitcnt lgkmcnt(0)")
        a(f"    s_lshl_b32 s82, s2, 1")
        a(f"    s_add_u32 s82, s82, s{S_HEAD}")
        a(f"    s_lshl_b32 s82, s82, 6")
        a(f"    v_mov_b32 v2, s82")
        regs = [60, 61, 64, 66, 68, 70, 71, 72, 73, 74, 76, 78, 84, 86, 88]
        for k, r in enumerate(regs):
            a(f"    v_mov_b32 v3, s{r}")
            a(f"    global_store_dword v2, v3, s[62:63] offset:{4*k}")
    if DBGT:
        a("    s_waitcnt vmcnt(0)")
        a("    s_memrealtime s[78:79]")
        a("    s_memtime s[76:77]")
        a("    s_waitcnt lgkmcnt(0)")
        a("    s_not_b32 s66, s66")
        a("    s_sub_u32 s76, s76, s64")
        a("    v_mov_b32 v2, 0")
        a("    v_mov_b32 v3, s66")
        a("    v_mov_b32 v4, s78")
        a("    v_mov_b32 v5, s76")
        a("    s_mov_b64 exec, 1")
        a("    global_atomic_umax v2, v3, s[62:63]")
        a("    global_atomic_umax v2, v4, s[62:63] offset:4")
        a("    global_atomic_umax v2, v5, s[62:63] offset:8")
    a("L_done:")
    a("    s_endpgm")
    if SAFE:
        a("L_safe:")
        a("    s_waitcnt vmcnt(0)")
        lines, _ = finalize(safe_body())
        out += lines
        a("    s_nop 7")
        a("    s_branch L_next")
    a('.section .rodata,"a"')
    a(".p2align 6")
    a(f".amdhsa_kernel {KN}")
    a(f"  .amdhsa_next_free_vgpr {NVGPR}")
    a(f"  .amdhsa_next_free_sgpr {96 if (STAMP or DBGT) else 64}")
    a(f"  .amdhsa_accum_offset {NVGPR}")
    a("  .amdhsa_group_segment_fixed_size 0")
    a("  .amdhsa_kernarg_size 64")
    a("  .amdhsa_user_sgpr_count 2")
    a("  .amdhsa_user_sgpr_kernarg_segment_ptr 1")
    a("  .amdhsa_system_sgpr_workgroup_id_x 1")
    a(".end_amdhsa_kernel")
    open(sys.argv[1], 'w').write("\n".join(out) + "\n")


main()
```

```python
import sys, struct, math
sys.path.insert(0, 'gen')
from sched import Ins, vr, schedule, finalize

KN = "standalone__attention_interact_autoint__recsys_kernel"
NWG = 1024
NIT = 4
EBYTES = 4096 * 100 * 64 * 2
BUF1 = 16384
LDS_TOTAL = 40960

opts = dict(a.split('=') for a in sys.argv[2:]) if len(sys.argv) > 2 else {}
SAFE = int(opts.get('safe', 1))
FORCE_SAFE = int(opts.get('force_safe', 0))
NOSCHED = int(opts.get('nosched', 0))
WINDOW = int(opts.get('window', 200))
STAMP = int(opts.get('stamp', 0))
PRIO = int(opts.get('prio', 1))
STF = opts.get('stf', '').replace('+', ' ')
LDF = opts.get('ldf', '').replace('+', ' ')
DBGT = int(opts.get('dbgt', 0))
NOMEM = int(opts.get('nomem', 0))
NOBAR = int(opts.get('nobar', 0))


def f32bits(x):
    return struct.unpack('<I', struct.pack('<f', x))[0]


class Alloc:
    def __init__(self, start):
        self.n = start

    def get(self, k, align=2):
        self.n = (self.n + align - 1) // align * align
        r = self.n
        self.n += k
        return r


A = Alloc(2)
WQ = A.get(16); WK = A.get(16); WV = A.get(16); WR = A.get(16)
KP = A.get(28)
VP = [A.get(14), A.get(14)]
EB = [A.get(8) for _ in range(2)]
PD = [A.get(4) for _ in range(4)]
QP = [A.get(4) for _ in range(2)]
SB = [A.get(8) for _ in range(4)]
ST = [A.get(4) for _ in range(1)]
PT = [A.get(2) for _ in range(2)]
OA = [A.get(8) for _ in range(2)]
RA = [A.get(8) for _ in range(2)]
LA = [A.get(4) for _ in range(2)]
ONES = A.get(4)
CB = A.get(4)
V_LDS = A.get(1, 1)
V_DMA = A.get(1, 1)
V_DMAT = A.get(1, 1)
V_ST = A.get(1, 1)
V_STT = A.get(1, 1)
V_LMAX = 0
V_LMIN = 1
assert A.n <= 256, A.n
NVGPR = 256

S_E = 8; S_O = 12; S_W = 16
S_HEAD = 32; S_CUR = 33; S_NXT = 34; S_IT = 35; S_STO = 36
S_LDSN = 44; S_T0 = 45; S_T1 = 46; S_T2 = 47
S_LO = 48; S_HI = 49

BSHIFT = 40.0
L_LO = 2.0 ** -56
L_HI = 1.0
CSCALE = math.log2(math.e) / math.sqrt(32.0)


def r4(a): return f"v[{a}:{a + 3}]"
def r2(a): return f"v[{a}:{a + 1}]"


def mfma(d, a, b, c=None, tag=''):
    if c is None:
        return Ins(f"v_mfma_f32_16x16x32_bf16 {r4(d)}, {r4(a)}, {r4(b)}, 0", 'mfma', vr(d, 4), vr(a, 4) + vr(b, 4), tag=tag)
    return Ins(f"v_mfma_f32_16x16x32_bf16 {r4(d)}, {r4(a)}, {r4(b)}, {r4(c)}", 'mfma', vr(d, 4), vr(a, 4) + vr(b, 4), vr(c, 4), tag=tag)


def mfmas(d, a, b, c, tag=''):
    return Ins(f"v_mfma_f32_16x16x16_bf16 {r4(d)}, {r2(a)}, {r2(b)}, {r4(c)}", 'mfmas', vr(d, 4), vr(a, 2) + vr(b, 2), vr(c, 4), tag=tag)


def cvt(d, a, b):
    if b is None:
        return Ins(f"v_cvt_pk_bf16_f32 v{d}, v{a}, 0", 'valu', vr(d), vr(a))
    return Ins(f"v_cvt_pk_bf16_f32 v{d}, v{a}, v{b}", 'valu', vr(d), vr(a) + vr(b))


def vexp(d, a):
    return Ins(f"v_exp_f32 v{d}, v{a}", 'trans', vr(d), vr(a))


def dsread(d, off):
    return Ins(f"ds_read_b128 {r4(d)}, v{V_LDS} offset:{off}", 'dsr', vr(d, 4), vr(V_LDS))


def salu(text, defs, uses):
    return Ins(text, 'salu', defs, uses)


class Ring:
    def __init__(self, items):
        self.items = items
        self.i = 0

    def next(self):
        r = self.items[self.i % len(self.items)]
        self.i += 1
        return r


def dma_block():
    L = []
    srd = [f's{S_E + i}' for i in range(4)]
    for t in (0, 2, 4, 6):
        if t == 0:
            L.append(salu(f"s_mov_b32 m0, s{S_LDSN}", ['m0'], [f's{S_LDSN}']))
            so = S_NXT
        else:
            L.append(salu(f"s_add_u32 m0, s{S_LDSN}, {t * 2048}", ['m0', 'scc'], [f's{S_LDSN}']))
            L.append(salu(f"s_add_u32 s{S_T0}, s{S_NXT}, {t * 2048}", [f's{S_T0}', 'scc'], [f's{S_NXT}']))
            so = S_T0
        if t < 6:
            L.append(Ins(f"buffer_load_dwordx4 v{V_DMA}, s[{S_E}:{S_E + 3}], s{so} offen {LDF} lds", 'dma', [], vr(V_DMA) + srd + [f's{so}', 'm0']))
            L.append(Ins(f"buffer_load_dwordx4 v{V_DMA}, s[{S_E}:{S_E + 3}], s{so} offen offset:2048 {LDF} lds", 'dma', [], vr(V_DMA) + srd + [f's{so}', 'm0']))
        else:
            L.append(Ins(f"buffer_load_dwordx4 v{V_DMAT}, s[{S_E}:{S_E + 3}], s{so} offen {LDF} lds", 'dma', [], vr(V_DMAT) + srd + [f's{so}', 'm0']))
    return L


def store(i, data):
    srd = [f's{S_O + k}' for k in range(4)]
    va = V_ST if i < 6 else V_STT
    return Ins(f"buffer_store_dwordx4 {r4(data)}, v{va}, s[{S_O}:{S_O + 3}], s{S_STO + i} offen {STF}", 'store', [],
               vr(data, 4) + vr(va) + srd + [f's{S_STO + i}'])


def kv_tile(t, eb, pd):
    L = []
    d0, d1 = pd.next(), pd.next()
    L.append(mfma(d0, WK + 0, eb + 0)); L.append(mfma(d1, WK + 4, eb + 0))
    L.append(mfma(d0, WK + 8, eb + 4, d0)); L.append(mfma(d1, WK + 12, eb + 4, d1))
    k = KP + 4 * t
    L += [cvt(k, d0, d0 + 1), cvt(k + 1, d0 + 2, d0 + 3), cvt(k + 2, d1, d1 + 1), cvt(k + 3, d1 + 2, d1 + 3)]
    d0, d1 = pd.next(), pd.next()
    L.append(mfma(d0, eb + 0, WV + 0)); L.append(mfma(d1, eb + 0, WV + 4))
    L.append(mfma(d0, eb + 4, WV + 8, d0)); L.append(mfma(d1, eb + 4, WV + 12, d1))
    for u, d in ((0, d0), (1, d1)):
        v = VP[u] + 2 * t
        L.append(cvt(v, d, d + 1))
        if t < 6:
            L.append(cvt(v + 1, d + 2, d + 3))
    return L


def q_proj(eb, pd, q):
    L = []
    d0, d1 = pd.next(), pd.next()
    L.append(mfma(d0, WQ + 0, eb + 0)); L.append(mfma(d1, WQ + 4, eb + 0))
    L.append(mfma(d0, WQ + 8, eb + 4, d0)); L.append(mfma(d1, WQ + 12, eb + 4, d1))
    L += [cvt(q, d0, d0 + 1), cvt(q + 1, d0 + 2, d0 + 3), cvt(q + 2, d1, d1 + 1), cvt(q + 3, d1 + 2, d1 + 3)]
    return L


def res_proj(eb, r):
    return [mfma(r, WR + 0, eb + 0), mfma(r + 4, WR + 4, eb + 0), mfma(r, WR + 8, eb + 4, r), mfma(r + 4, WR + 12, eb + 4, r + 4)]


def epilogue(i, o, r, l, inv):
    L = [Ins(f"v_rcp_f32 v{inv}, v{l}", 'trans', vr(inv), vr(l))]
    for j in range(8):
        L.append(Ins(f"v_fma_f32 v{o + j}, v{o + j}, v{inv}, v{r + j}", 'valu', vr(o + j), vr(o + j) + vr(inv) + vr(r + j)))
    for j in range(4):
        L.append(cvt(o + j, o + 2 * j, o + 2 * j + 1))
    for j in range(4):
        L.append(Ins(f"v_pk_max_i16 v{o + j}, v{o + j}, 0", 'valu', vr(o + j), vr(o + j)))
    L.append(store(i, o))
    return L


def unit_body():
    L = []
    eb = Ring(EB); pd = Ring(PD); qp = Ring(QP); sb = Ring(SB); st = Ring(ST); pt = Ring(PT)
    oa = Ring(OA); ra = Ring(RA); la = Ring(LA)
    for i in range(7):
        if i == 0:
            L.append(salu(f"s_mov_b32 s{S_STO}, s{S_CUR}", [f's{S_STO}'], [f's{S_CUR}']))
        else:
            L.append(salu(f"s_add_u32 s{S_STO + i}, s{S_CUR}, {i * 2048}", [f's{S_STO + i}', 'scc'], [f's{S_CUR}']))
    first = True
    qr = {}

    def qres(i, e):
        q = qp.next(); r = ra.next()
        qr[i] = (q, r)
        return q_proj(e, pd, q) + res_proj(e, r)
    for t in range(7):
        e = eb.next()
        L += [dsread(e, (2 * t) * 1024), dsread(e + 4, (2 * t + 1) * 1024)]
        if t == 1:
            L += dma_block()
        L += kv_tile(t, e, pd)
        if t == 0:
            L += qres(0, e)
    lprev = None
    for i in range(7):
        q, r = qr[i]
        o = oa.next(); l = la.next()
        for p in range(3):
            b = sb.next()
            L.append(mfma(b, KP + 8 * p, q, CB)); L.append(mfma(b + 4, KP + 8 * p + 4, q, CB))
            for j in range(8):
                L.append(vexp(b + j, b + j))
            L += [cvt(b + 3, b + 2, b + 3), cvt(b + 2, b, b + 1), cvt(b + 4, b + 4, b + 5), cvt(b + 5, b + 6, b + 7)]
            c0 = None if p == 0 else o
            c1 = None if p == 0 else o + 4
            cl = None if p == 0 else l
            L.append(mfma(o, VP[0] + 4 * p, b + 2, c0)); L.append(mfma(o + 4, VP[1] + 4 * p, b + 2, c1))
            L.append(mfma(l, ONES, b + 2, cl))
            if p == 0 and i < 6:
                e = eb.next()
                L += [dsread(e, (2 * (i + 1)) * 1024), dsread(e + 4, (2 * (i + 1) + 1) * 1024)]
                L += qres(i + 1, e)
        s = st.next(); pp = pt.next()
        L.append(mfma(s, KP + 24, q, CB))
        L.append(vexp(s, s))
        L.append(cvt(pp, s, None))
        L.append(mfmas(o, VP[0] + 12, pp, o)); L.append(mfmas(o + 4, VP[1] + 12, pp, o + 4))
        L.append(mfmas(l, ONES, pp, l))
        L += epilogue(i, o, r, l, l + 1)
        if i % 2 == 1:
            L.append(Ins(f"v_max3_f32 v{V_LMAX}, v{V_LMAX}, v{lprev}, v{l}", 'valu', vr(V_LMAX), vr(V_LMAX) + vr(lprev) + vr(l)))
            L.append(Ins(f"v_min3_f32 v{V_LMIN}, v{V_LMIN}, v{lprev}, v{l}", 'valu', vr(V_LMIN), vr(V_LMIN) + vr(lprev) + vr(l)))
        elif i == 6:
            L.append(Ins(f"v_max_f32 v{V_LMAX}, v{V_LMAX}, v{l}", 'valu', vr(V_LMAX), vr(V_LMAX) + vr(l)))
            L.append(Ins(f"v_min_f32 v{V_LMIN}, v{V_LMIN}, v{l}", 'valu', vr(V_LMIN), vr(V_LMIN) + vr(l)))
        lprev = l
    return L


def safe_body():
    L = []
    pd = Ring(PD)
    e = EB[0]; q = QP[0]; r = RA[0]; o = OA[0]; l = LA[0]; s6 = ST[0]; pp = PT[0]
    m = LA[1]; m2 = LA[1] + 1
    for i in range(7):
        L += [dsread(e, (2 * i) * 1024), dsread(e + 4, (2 * i + 1) * 1024)]
        L += q_proj(e, pd, q) + res_proj(e, r)
        for p in range(3):
            b = SB[p]
            L.append(mfma(b, KP + 8 * p, q)); L.append(mfma(b + 4, KP + 8 * p + 4, q))
        L.append(mfma(s6, KP + 24, q))
        regs = [SB[p] + j for p in range(3) for j in range(8)]
        L.append(Ins(f"v_mov_b32 v{m}, v{s6}", 'valu', vr(m), vr(s6)))
        for k in range(0, 24, 2):
            L.append(Ins(f"v_max3_f32 v{m}, v{m}, v{regs[k]}, v{regs[k + 1]}", 'valu', vr(m), vr(m) + vr(regs[k]) + vr(regs[k + 1])))
        L.append(Ins(f"v_mov_b32 v{m2}, v{m}", 'valu', vr(m2), vr(m)))
        L.append(Ins(f"v_permlane16_swap_b32 v{m}, v{m2}", 'perm', vr(m) + vr(m2), vr(m) + vr(m2)))
        L.append(Ins(f"v_max_f32 v{m}, v{m}, v{m2}", 'valu', vr(m), vr(m) + vr(m2)))
        L.append(Ins(f"v_mov_b32 v{m2}, v{m}", 'valu', vr(m2), vr(m)))
        L.append(Ins(f"v_permlane32_swap_b32 v{m}, v{m2}", 'perm', vr(m) + vr(m2), vr(m) + vr(m2)))
        L.append(Ins(f"v_max_f32 v{m}, v{m}, v{m2}", 'valu', vr(m), vr(m) + vr(m2)))
        for x in regs + [s6]:
            L.append(Ins(f"v_sub_f32 v{x}, v{x}, v{m}", 'valu', vr(x), vr(x) + vr(m)))
            L.append(vexp(x, x))
        for p in range(3):
            b = SB[p]
            L += [cvt(b + 3, b + 2, b + 3), cvt(b + 2, b, b + 1), cvt(b + 4, b + 4, b + 5), cvt(b + 5, b + 6, b + 7)]
            c0 = None if p == 0 else o
            c1 = None if p == 0 else o + 4
            cl = None if p == 0 else l
            L.append(mfma(o, VP[0] + 4 * p, b + 2, c0)); L.append(mfma(o + 4, VP[1] + 4 * p, b + 2, c1))
            L.append(mfma(l, ONES, b + 2, cl))
        L.append(cvt(pp, s6, None))
        L.append(mfmas(o, VP[0] + 12, pp, o)); L.append(mfmas(o + 4, VP[1] + 12, pp, o + 4))
        L.append(mfmas(l, ONES, pp, l))
        L += epilogue(i, o, r, l, l + 1)
    return L


def prologue():
    P = []
    a = P.append
    a(f"    s_cmp_ge_u32 s2, {NWG}")
    a("    s_cbranch_scc1 L_done")
    if PRIO:
        a("    s_setprio 3")
    if STAMP:
        a("    s_memtime s[64:65]")
        a("    s_memrealtime s[66:67]")
        a("    s_load_dwordx2 s[62:63], s[0:1], 56")
        a("    s_getreg_b32 s61, hwreg(HW_REG_HW_ID)")
        a("    s_getreg_b32 s60, hwreg(HW_REG_XCC_ID)")
    if DBGT:
        a("    s_memrealtime s[66:67]")
        a("    s_memtime s[64:65]")
        a("    s_load_dwordx2 s[62:63], s[0:1], 48")
    a("    s_load_dwordx4 s[4:7], s[0:1], 0")
    a("    s_load_dwordx4 s[20:23], s[0:1], 16")
    a("    s_load_dwordx4 s[24:27], s[0:1], 32")
    a("    v_lshrrev_b32 v1, 6, v0")
    a("    v_and_b32 v2, 63, v0")
    a(f"    v_readfirstlane_b32 s{S_HEAD}, v1")
    a("    v_lshrrev_b32 v3, 4, v2")
    a("    v_and_b32 v4, 15, v2")
    a("    v_lshlrev_b32 v5, 7, v4")
    a("    v_lshl_add_u32 v5, v3, 4, v5")
    a("    v_lshl_add_u32 v5, v1, 6, v5")
    a(f"    v_mov_b32 v{V_DMA}, v5")
    a(f"    v_mov_b32 v{V_ST}, v5")
    a("    v_lshrrev_b32 v6, 2, v4")
    a("    v_lshlrev_b32 v6, 7, v6")
    a("    v_lshl_add_u32 v6, v3, 4, v6")
    a("    v_lshl_add_u32 v6, v1, 6, v6")
    a(f"    v_mov_b32 v{V_DMAT}, v6")
    a("    v_and_b32 v7, 3, v4")
    a("    v_cmp_ne_u32 vcc, 0, v7")
    a("    v_mov_b32 v7, 0x7f000000")
    a("    s_nop 1")
    a(f"    v_cndmask_b32 v{V_STT}, v6, v7, vcc")
    a(f"    v_lshlrev_b32 v{V_LDS}, 4, v2")
    a("    s_waitcnt lgkmcnt(0)")
    if STAMP:
        a("    s_memtime s[84:85]")
    a(f"    s_mov_b32 s{S_E}, s4"); a(f"    s_and_b32 s{S_E + 1}, s5, 0xffff")
    a(f"    s_mov_b32 s{S_E + 2}, {EBYTES}"); a(f"    s_mov_b32 s{S_E + 3}, 0x00020000")
    a(f"    s_mov_b32 s{S_O}, s26"); a(f"    s_and_b32 s{S_O + 1}, s27, 0xffff")
    a(f"    s_mov_b32 s{S_O + 2}, {EBYTES}"); a(f"    s_mov_b32 s{S_O + 3}, 0x00020000")
    a(f"    s_mul_i32 s{S_T1}, s{S_HEAD}, 12288")
    a(f"    s_add_u32 s{S_T1}, s{S_T1}, {BUF1}")
    a(f"    s_lshl_b32 s{S_T2}, s{S_HEAD}, 12")
    a("    v_lshlrev_b32 v8, 4, v2")
    a(f"    s_mov_b32 s{S_W + 2}, 8192"); a(f"    s_mov_b32 s{S_W + 3}, 0x00020000")
    for mi, (lo, hi) in enumerate(((6, 7), (20, 21), (22, 23))):
        a(f"    s_mov_b32 s{S_W}, s{lo}"); a(f"    s_and_b32 s{S_W + 1}, s{hi}, 0xffff")
        a(f"    s_add_u32 m0, s{S_T1}, {mi * 4096}")
        a("    s_nop 0")
        for k in range(4):
            a(f"    buffer_load_dwordx4 v8, s[{S_W}:{S_W + 3}], s{S_T2} offen offset:{k * 1024} lds")
    a("    v_lshrrev_b32 v9, 2, v2")
    a("    v_lshlrev_b32 v9, 7, v9")
    a("    v_and_b32 v10, 3, v2")
    a("    v_lshl_add_u32 v9, v10, 4, v9")
    a("    v_lshl_add_u32 v9, v1, 6, v9")
    a(f"    s_mov_b32 s{S_W}, s24"); a(f"    s_and_b32 s{S_W + 1}, s25, 0xffff")
    tmp = SB[0]
    assert SB[1] == SB[0] + 8
    a(f"    s_movk_i32 s{S_T0}, 4096")
    a("    s_nop 0")
    a(f"    buffer_load_dwordx4 {r4(tmp)}, v9, s[{S_W}:{S_W + 3}], 0 offen")
    a(f"    buffer_load_dwordx4 {r4(tmp + 4)}, v9, s[{S_W}:{S_W + 3}], 0 offen offset:2048")
    a(f"    buffer_load_dwordx4 {r4(tmp + 8)}, v9, s[{S_W}:{S_W + 3}], s{S_T0} offen")
    a(f"    buffer_load_dwordx4 {r4(tmp + 12)}, v9, s[{S_W}:{S_W + 3}], s{S_T0} offen offset:2048")
    a(f"    s_mul_i32 s{S_NXT}, s2, 12800")
    a(f"    s_lshl_b32 s{S_LDSN}, s{S_HEAD}, 10")
    dl, _ = finalize(dma_block())
    P.extend(dl)
    for k in range(4):
        a(f"    v_mov_b32 v{ONES + k}, 0x3f803f80")
        a(f"    v_mov_b32 v{CB + k}, 0x{f32bits(-BSHIFT):08x}")
    for k in range(2):
        a(f"    v_mov_b32 v{PT[k] + 1}, 0")
        a(f"    v_mov_b32 v{VP[k] + 13}, 0")
    a("    v_lshrrev_b32 v10, 2, v4")
    a("    v_lshl_add_u32 v10, v3, 3, v10")
    a("    v_lshlrev_b32 v10, 6, v10")
    a("    v_and_b32 v11, 3, v4")
    a("    v_lshl_add_u32 v12, v11, 3, v10")
    a("    v_lshl_add_u32 v13, v11, 4, v10")
    a(f"    v_add_u32 v12, s{S_T1}, v12")
    a(f"    v_add_u32 v13, s{S_T1}, v13")
    a(f"    v_add_u32 v14, s{S_T1}, v8")
    a("    s_waitcnt vmcnt(11)")
    if STAMP:
        a("    s_memtime s[86:87]")
        a("    s_waitcnt lgkmcnt(0)")

    def trread(base, mi, addr, tstride):
        for s in range(2):
            for t in range(2):
                for half in range(2):
                    off = mi * 4096 + (32 * s + 4 * half) * 64 + t * tstride
                    a(f"    ds_read_b64_tr_b16 {r2(base + 8 * s + 4 * t + 2 * half)}, v{addr} offset:{off}")
    a("    v_mov_b32 v%d, v12" % (OA[0]))
    a("    v_mov_b32 v%d, v13" % (OA[0] + 1))
    a("    v_mov_b32 v%d, v14" % (OA[0] + 2))
    trread(WQ, 0, OA[0], 32)
    a("    s_waitcnt lgkmcnt(0)")
    trread(WK, 1, OA[0], 32)
    trread(WV, 2, OA[0] + 1, 8)
    a("    s_waitcnt vmcnt(7) lgkmcnt(0)")
    for k in range(4):
        a(f"    ds_write_b128 v{OA[0] + 2}, {r4(tmp + 4 * k)} offset:{k * 1024}")
    t0, t1 = OA[1], OA[1] + 1
    a(f"    s_mov_b32 s{S_T0}, 0x{f32bits(CSCALE):08x}")
    for k in range(16):
        a(f"    v_lshlrev_b32 v{t0}, 16, v{WQ + k}")
        a(f"    v_and_b32 v{t1}, 0xffff0000, v{WQ + k}")
        a(f"    v_mul_f32 v{t0}, s{S_T0}, v{t0}")
        a(f"    v_mul_f32 v{t1}, s{S_T0}, v{t1}")
        a(f"    v_cvt_pk_bf16_f32 v{WQ + k}, v{t0}, v{t1}")
    a("    s_waitcnt lgkmcnt(0)")
    trread(WR, 0, OA[0] + 1, 8)
    a(f"    s_mov_b32 s{S_IT}, 0")
    a(f"    s_mov_b32 s{S_LO}, 0x{f32bits(L_LO):08x}")
    a(f"    s_mov_b32 s{S_HI}, 0x{f32bits(L_HI):08x}")
    if STAMP:
        a("    s_waitcnt lgkmcnt(0)")
        a("    s_memtime s[88:89]")
    a("    s_waitcnt vmcnt(0) lgkmcnt(0)")
    return P


def main():
    out = []
    a = out.append
    hdr = open('standalone__attention_interact_autoint__recsys.s.ref').read().split('\n')
    for line in hdr:
        if line.startswith('; @launch'):
            a(f"; @launch grid=({NWG},1,1) block=(128,1,1) lds={LDS_TOTAL}")
        elif line.startswith(';'):
            a(line)
        else:
            break
    a('.amdgcn_target "amdgcn-amd-amdhsa--gfx950"')
    a(".text")
    a(f".globl {KN}")
    a(".p2align 8")
    a(f".type {KN},@function")
    a(f"{KN}:")
    out += prologue()
    if STAMP:
        a("    s_memtime s[68:69]")
        a("    s_waitcnt lgkmcnt(0)")
    a("L_loop:")
    a("    s_waitcnt vmcnt(7)")
    if not NOBAR:
        a("    s_barrier")
    if STAMP:
        a("    s_memtime s[80:81]")
        a("    s_waitcnt lgkmcnt(0)")
        for k in range(4):
            a(f"    s_cmp_eq_u32 s{S_IT}, {k}")
            a(f"    s_cselect_b32 s{70+k}, s80, s{70+k}")
    a(f"    s_mov_b32 s{S_CUR}, s{S_NXT}")
    a(f"    s_add_u32 s{S_NXT}, s{S_NXT}, {NWG * 12800}")
    a(f"    s_xor_b32 s{S_LDSN}, s{S_LDSN}, {BUF1}")
    a(f"    v_mov_b32 v{V_LMAX}, 0")
    a(f"    v_mov_b32 v{V_LMIN}, 1.0")
    body = unit_body()
    if NOMEM & 1:
        body = [x for x in body if x.kind != 'dma']
    if NOMEM & 2:
        body = [x for x in body if x.kind != 'store']
    if NOSCHED:
        sched, est = body, 0
    else:
        sched, est = schedule(body, window=WINDOW)
    lines, nnop = finalize(sched)
    sys.stderr.write(f"unit body: {len(body)} instrs, est {est} cycles, {nnop} nop states, vgprs {A.n}\n")
    out += lines
    if SAFE:
        a(f"    v_cmp_lt_f32 vcc, s{S_HI}, v{V_LMAX}")
        a(f"    v_cmp_gt_f32 s[50:51], s{S_LO}, v{V_LMIN}")
        a("    s_nop 1")
        a("    s_or_b64 vcc, vcc, s[50:51]")
        if FORCE_SAFE:
            a("    s_branch L_safe")
        a("    s_cbranch_scc1 L_safe")
        a("L_next:")
    a(f"    v_xor_b32 v{V_LDS}, {BUF1}, v{V_LDS}")
    a(f"    s_add_u32 s{S_IT}, s{S_IT}, 1")
    if PRIO:
        for k in (1, 2, 3):
            a(f"    s_cmp_lg_u32 s{S_IT}, {k}")
            a(f"    s_cbranch_scc1 L_p{k}")
            a(f"    s_setprio {3 - k}")
            a(f"L_p{k}:")
    a(f"    s_cmp_lt_u32 s{S_IT}, {NIT}")
    a("    s_cbranch_scc1 L_loop")
    if STAMP:
        a("    s_memtime s[74:75]")
        a("    s_waitcnt vmcnt(0)")
        a("    s_memtime s[76:77]")
        a("    s_memrealtime s[78:79]")
        a("    s_waitcnt lgkmcnt(0)")
        a(f"    s_lshl_b32 s82, s2, 1")
        a(f"    s_add_u32 s82, s82, s{S_HEAD}")
        a(f"    s_lshl_b32 s82, s82, 6")
        a(f"    v_mov_b32 v2, s82")
        regs = [60, 61, 64, 66, 68, 70, 71, 72, 73, 74, 76, 78, 84, 86, 88]
        for k, r in enumerate(regs):
            a(f"    v_mov_b32 v3, s{r}")
            a(f"    global_store_dword v2, v3, s[62:63] offset:{4*k}")
    if DBGT:
        a("    s_waitcnt vmcnt(0)")
        a("    s_memrealtime s[78:79]")
        a("    s_memtime s[76:77]")
        a("    s_waitcnt lgkmcnt(0)")
        a("    s_and_b32 s70, s2, 127")
        a("    s_cmp_lg_u32 s70, 127")
        a("    s_cbranch_scc1 L_done")
        a(f"    s_cmp_lg_u32 s{S_HEAD}, 0")
        a("    s_cbranch_scc1 L_done")
        a("    s_lshr_b32 s70, s2, 7")
        a("    s_lshl_b32 s70, s70, 3")
        a("    v_mov_b32 v2, s70")
        a("    v_mov_b32 v4, s66")
        a("    v_mov_b32 v5, s78")
        a("    s_mov_b64 exec, 1")
        a("    global_store_dwordx2 v2, v[4:5], s[62:63]")
    a("L_done:")
    a("    s_endpgm")
    if SAFE:
        a("L_safe:")
        a("    s_waitcnt vmcnt(0)")
        lines, _ = finalize(safe_body())
        out += lines
        a("    s_nop 7")
        a("    s_branch L_next")
    a('.section .rodata,"a"')
    a(".p2align 6")
    a(f".amdhsa_kernel {KN}")
    a(f"  .amdhsa_next_free_vgpr {NVGPR}")
    a(f"  .amdhsa_next_free_sgpr {96 if (STAMP or DBGT) else 64}")
    a(f"  .amdhsa_accum_offset {NVGPR}")
    a("  .amdhsa_group_segment_fixed_size 0")
    a("  .amdhsa_kernarg_size 64")
    a("  .amdhsa_user_sgpr_count 2")
    a("  .amdhsa_user_sgpr_kernarg_segment_ptr 1")
    a("  .amdhsa_system_sgpr_workgroup_id_x 1")
    a(".end_amdhsa_kernel")
    open(sys.argv[1], 'w').write("\n".join(out) + "\n")


main()
```

```python
PORT = {'valu': 4, 'trans': 8, 'mfma': 8, 'mfmas': 4, 'mfma32': 8, 'mfma32s': 4, 'perm': 8,
        'wait': 4, 'dma6': 4, 'sync': 8, 'dsr': 4, 'dsw': 4, 'store': 4, 'dma': 4, 'salu': 4, 'load': 4}
PIPE = {'mfma': 16, 'mfmas': 16, 'mfma32': 32, 'mfma32s': 32}
MF = set(PIPE)
VAL = {'valu', 'trans', 'perm'}


class Ins:
    __slots__ = ('text', 'kind', 'defs', 'uses', 'cuses', 'idx', 'prio', 'preds', 'succs', 'npred', 'ready', 'tag', 'order_after')

    def __init__(self, text, kind, defs=(), uses=(), cuses=(), tag=''):
        self.text = text
        self.kind = kind
        self.defs = list(defs)
        self.uses = list(uses)
        self.cuses = list(cuses)
        self.tag = tag
        self.order_after = []

    def __repr__(self):
        return self.text


def vr(a, n=1):
    return [f'v{a + i}' for i in range(n)]


def passes(kind):
    return 8 if kind in ('mfma32', 'mfma32s') else 4


def ws_needed(p, c, reg, rel):
    pk, ck = p.kind, c.kind
    isv = reg[0] == 'v' and reg != 'vcc'
    if pk in MF:
        big = passes(pk) == 8
        if rel == 'raw':
            return 12 if big else 8
        if rel == 'rawc':
            if ck == pk and p.defs == c.cuses:
                return 0
            return 10 if big else 6
        if rel == 'waw':
            if ck in MF:
                if passes(ck) < passes(pk):
                    return 10
                return 0
            return 12 if big else 8
        if rel == 'warc':
            if ck in MF:
                return 0
            return 7 if big else 3
        if rel == 'war':
            return 0
    if pk in VAL:
        if isv:
            if rel in ('raw', 'rawc'):
                if ck in MF:
                    return 2
                if ck == 'perm':
                    return 2
                if pk == 'trans' and ck != 'trans':
                    return 1
                if 'dpp' in c.text:
                    return 2
                if 'readfirstlane' in c.text or 'readlane' in c.text:
                    return 1
                return 0
            return 0
        else:
            if rel == 'raw':
                if ck in VAL:
                    return 2
                if ck in ('store', 'dma', 'load'):
                    return 5
                return 1
            return 0
    if pk == 'store' and rel == 'war' and isv:
        return 2
    if pk == 'salu' and reg == 'm0' and rel == 'raw':
        return 1
    return 0


def lat_cycles(p, c, rel):
    pk, ck = p.kind, c.kind
    if rel in ('raw', 'rawc'):
        if pk == 'dsr':
            return 140
        if pk in MF:
            if rel == 'rawc' and ck == pk and p.defs == c.cuses:
                return PIPE[pk]
            return 36 if PIPE[pk] == 16 else 52
        if pk == 'trans':
            return 8
        if pk in VAL:
            return 4
    return PORT[pk]


def build_deps(ins):
    last_def = {}
    readers = {}
    edges = []
    for i, x in enumerate(ins):
        x.idx = i
        x.preds = []
        x.succs = []
    for x in ins:
        for r in x.uses:
            if r in last_def:
                edges.append((last_def[r], x, r, 'raw'))
        for r in x.cuses:
            if r in last_def:
                edges.append((last_def[r], x, r, 'rawc'))
        for r in x.defs:
            if r in last_def:
                edges.append((last_def[r], x, r, 'waw'))
            for (y, how) in readers.get(r, []):
                if y is not x:
                    edges.append((y, x, r, how))
        for y in x.order_after:
            edges.append((y, x, 'order', 'order'))
        for r in x.defs:
            last_def[r] = x
            readers[r] = []
        for r in x.uses:
            readers.setdefault(r, []).append((x, 'war'))
        for r in x.cuses:
            readers.setdefault(r, []).append((x, 'warc'))
    prev = {}
    for x in ins:
        cl = ([] if x.tag == 'free' else ['ds']) if x.kind in ('dsr', 'dsw') else (['vm'] if x.kind in ('store', 'dma', 'load', 'dma6') else ((['vm'] if x.tag == 'free' else ['ds', 'vm']) if x.kind == 'sync' else []))
        for cls in cl:
            if cls in prev:
                edges.append((prev[cls], x, 'order', 'order'))
            prev[cls] = x
    agg = {}
    for p, c, r, rel in edges:
        if rel == 'order':
            w, l = 0, PORT[p.kind]
        else:
            w = ws_needed(p, c, r, rel)
            l = max(lat_cycles(p, c, rel), 4 * (w + 1) if w else 0)
        k = (p.idx, c.idx)
        ow, ol = agg.get(k, (0, 0))
        agg[k] = (max(ow, w), max(ol, l))
    for (pi, ci), (w, l) in agg.items():
        ins[pi].succs.append((ins[ci], w, l))
        ins[ci].preds.append((ins[pi], w, l))


def schedule(ins, window=400, verbose=False):
    build_deps(ins)
    for x in reversed(ins):
        x.prio = PORT[x.kind] + max([s.prio + l for s, w, l in x.succs], default=0)
    for x in ins:
        x.npred = len(x.preds)
        x.ready = 0
    out = []
    pos = {}
    avail = [x for x in ins if x.npred == 0]
    t = 0
    pipe_free = 0
    done = 0
    n = len(ins)
    lowest = 0
    sched = [False] * n
    while done < n:
        while lowest < n and sched[lowest]:
            lowest += 1
        best = None
        bestkey = None
        for x in avail:
            if x.idx > lowest + window:
                continue
            st = max(t, x.ready)
            if x.kind in MF:
                st = max(st, pipe_free)
            need = 0
            for p, w, l in x.preds:
                if w:
                    gap = len(out) - pos[p.idx] - 1
                    need = max(need, w - gap)
            if need > 0:
                st = max(st, t + 4 * need)
            key = (st - t > 0, st - t if st > t else 0, -x.prio, x.idx)
            if bestkey is None or key < bestkey:
                best, bestkey, bst = x, key, st
        x = best
        avail.remove(x)
        t = bst
        pos[x.idx] = len(out)
        out.append(x)
        sched[x.idx] = True
        if x.kind in MF:
            pipe_free = t + PIPE[x.kind]
        for s, w, l in x.succs:
            s.ready = max(s.ready, t + l)
            s.npred -= 1
            if s.npred == 0:
                avail.append(s)
        t += PORT[x.kind]
        done += 1
    if verbose:
        print(f"; scheduled {n} instrs, est {t} cycles")
    return out, t


def finalize(ins, entry_pessimistic=True):
    lines = []
    emitted = []
    posn = 0
    last_def = {}
    readers = {}
    ds_out = []
    pend = {}
    nnop = 0
    for x in ins:
        needidx = -1
        for r in x.uses + x.cuses + x.defs:
            if r in pend:
                y = pend[r]
                if y in ds_out:
                    needidx = max(needidx, ds_out.index(y))
        if needidx >= 0:
            remain = len(ds_out) - needidx - 1
            assert remain <= 15
            lines.append(f"    s_waitcnt lgkmcnt({remain})")
            posn += 1
            for y in ds_out[:needidx + 1]:
                for r in y.defs:
                    if pend.get(r) is y:
                        del pend[r]
            ds_out = ds_out[needidx + 1:]
        need = 0

        def chk(p, ppos, r, rel):
            nonlocal need
            w = ws_needed(p, x, r, rel)
            gap = posn - ppos - 1
            if w - gap > need:
                need = w - gap
        for r in x.uses:
            if r in last_def:
                chk(*last_def[r], r, 'raw')
        for r in x.cuses:
            if r in last_def:
                chk(*last_def[r], r, 'rawc')
        for r in x.defs:
            if r in last_def:
                chk(*last_def[r], r, 'waw')
            for (y, ypos, how) in readers.get(r, []):
                chk(y, ypos, r, how)
        while need > 0:
            k = min(need, 16)
            lines.append(f"    s_nop {k - 1}")
            posn += k
            need -= k
            nnop += k
        if x.kind == 'wait':
            continue
        lines.append("    " + x.text)
        for r in x.defs:
            last_def[r] = (x, posn)
            readers[r] = []
        for r in x.uses:
            readers.setdefault(r, []).append((x, posn, 'war'))
        for r in x.cuses:
            readers.setdefault(r, []).append((x, posn, 'warc'))
        posn += 1
        if x.kind in ('dsr', 'dsw'):
            ds_out.append(x)
            if len(ds_out) > 15:
                lines.append(f"    s_waitcnt lgkmcnt(14)")
                posn += 1
                for y in ds_out[:-14]:
                    for r in y.defs:
                        if pend.get(r) is y:
                            del pend[r]
                ds_out = ds_out[-14:]
            if x.kind == 'dsr':
                for r in x.defs:
                    pend[r] = x
    return lines, nnop
```

```python
from sched import Ins, vr, PORT, PIPE, MF, VAL, ws_needed, build_deps
import random

NONV = {'sync', 'wait', 'dsr', 'dsw', 'store', 'dma', 'salu', 'load', 'bar'}
PORT['bar'] = 4

def schedule2(ins, window=300, dslat=160, seed=None, mfma_bias=0.0, noise=0.0, lookahead_valu=True):
    build_deps(ins)
    rnd = random.Random(seed)
    for x in reversed(ins):
        x.prio = PORT[x.kind] + max([s.prio + l for s, w, l in x.succs], default=0)
    if noise:
        for x in ins: x.prio *= (1 + noise * rnd.random())
    for x in ins:
        x.npred = len(x.preds); x.ready = 0
    out = []; pos = {}
    avail = [x for x in ins if x.npred == 0]
    n = len(ins); sched = [False]*n; lowest = 0
    t = 0
    port = 0; pipe = 0
    slot = 0
    done = 0
    while done < n:
        while lowest < n and sched[lowest]: lowest += 1
        cands = []
        for x in avail:
            if x.idx > lowest + window: continue
            st = max(t, x.ready)
            if x.kind not in NONV: st = max(st, port)
            if x.kind in MF: st = max(st, pipe)
            need = 0
            for p, w, l in x.preds:
                if w:
                    gap = slot - pos[p.idx] - 1
                    if w - gap > need: need = w - gap
            if need > 0: st = max(st, t + 4*need)
            cands.append((st, x, need))
        base = max(t, port)
        free_slot = port > t
        best = None
        if free_slot:
            c = [(-x.prio, x.idx, st, x, need) for st, x, need in cands if x.kind in NONV and st <= t]
            if c: best = min(c)[2:]
        if best is None:
            ok = [(st, x, need) for st, x, need in cands if st <= base and x.kind not in NONV]
            if ok:
                mf = [c for c in ok if c[1].kind in MF]
                va = [c for c in ok if c[1].kind not in MF]
                pick = None
                if mf and va:
                    bm = max(mf, key=lambda c: (c[1].prio, -c[1].idx)); bv = max(va, key=lambda c: (c[1].prio, -c[1].idx))
                    pick = bm if bm[1].prio + mfma_bias >= bv[1].prio else bv
                elif mf: pick = max(mf, key=lambda c: (c[1].prio, -c[1].idx))
                else: pick = max(va, key=lambda c: (c[1].prio, -c[1].idx))
                nv = [c for c in cands if c[1].kind in NONV and c[0] <= t]
                if nv:
                    bn = max(nv, key=lambda c: (c[1].prio, -c[1].idx))
                    if bn[1].prio > pick[1].prio + 200 and pick[1].kind not in MF: pick = bn
                best = pick
            else:
                nv = [c for c in cands if c[1].kind in NONV and c[0] <= base]
                if nv: best = max(nv, key=lambda c: (c[1].prio, -c[1].idx))
                else: best = min(cands, key=lambda c: (c[0], -c[1].prio, c[1].idx))
        st, x, need = best
        avail.remove(x)
        slot += max(need, 0)
        pos[x.idx] = slot; slot += 1
        out.append(x); sched[x.idx] = True
        if x.kind in MF:
            pipe = st + PIPE[x.kind]; port = st + PORT[x.kind]; t = st + 4
        elif x.kind in NONV:
            t = st + 4
        else:
            port = st + PORT[x.kind]; t = port
        for s, w, l in x.succs:
            ll = l
            if x.kind == 'dsr' and l > 100: ll = dslat
            s.ready = max(s.ready, st + ll)
            s.npred -= 1
            if s.npred == 0: avail.append(s)
        done += 1
    return out, max(t, port)
```

```python
import re
def classify(line):
    t = line.strip()
    if not t or t.startswith(';') or t.endswith(':'): return None
    op = t.split()[0]
    if op.startswith('v_mfma'):
        if '16x16x32' in op: return ('mfma', 8, 16)
        if '16x16x16' in op: return ('mfma', 4, 16)
        if '32x32x16' in op: return ('mfma', 8, 32)
        if '32x32x8' in op: return ('mfma', 4, 32)
    if op in ('v_exp_f32', 'v_rcp_f32', 'v_log_f32') or op.startswith('v_permlane'): return ('trans', 8, 0)
    if op.startswith('v_'): return ('valu', 4, 0)
    if op == 's_nop': return ('nop', int(t.split()[1]) + 1, 0)
    if op == 's_waitcnt':
        m = re.search(r'lgkmcnt\((\d+)\)', t)
        return ('wait', int(m.group(1)) if m else 99, 0)
    if op.startswith('ds_'): return ('ds', 0, 0)
    if op.startswith('buffer_'): return ('vm', 0, 0)
    return ('salu', 0, 0)

def simulate(lines, nwaves=2, iters=4, dslat=128, prio_mode='iter', offset=0, vmcost=16):
    prog = [c for c in map(classify, lines) if c]
    n = len(prog)
    pc = [0]*nwaves; it = [0]*nwaves; nxt = [offset*w for w in range(nwaves)]
    dsq = [[] for _ in range(nwaves)]
    port = 0; pipe = 0; t = 0
    done = [None]*nwaves
    marks = [[] for _ in range(nwaves)]
    busy = 0
    while any(d is None for d in done):
        order = sorted(range(nwaves), key=(lambda w: (it[w], w)) if prio_mode == 'iter' else (lambda w: w))
        for w in order:
            if done[w] is not None or nxt[w] > t: continue
            k, a, b = prog[pc[w]]
            ok = True
            if k in ('mfma', 'valu', 'trans'):
                if port > t: ok = False
                elif k == 'mfma' and pipe > t: ok = False
                else:
                    port = t + a; busy += a
                    if k == 'mfma':
                        pipe = t + b; nxt[w] = t + 4
                    else: nxt[w] = t + a
            elif k == 'nop': nxt[w] = t + 4*a
            elif k == 'wait':
                q = [x for x in dsq[w] if x > t]
                dsq[w] = q
                if len(q) > a: ok = False
                else: nxt[w] = t + 4
            elif k == 'ds':
                dsq[w].append(t + dslat); nxt[w] = t + 4
            elif k == 'vm': nxt[w] = t + vmcost
            else: nxt[w] = t + 4
            if ok:
                pc[w] += 1
                if pc[w] == n:
                    pc[w] = 0; it[w] += 1; marks[w].append(t); nxt[w] += 60
                    if it[w] == iters: done[w] = t
        t += 4
    return max(done), marks, busy

if __name__ == '__main__':
    import sys
    L = open(sys.argv[1]).read().split('\n')
    i0 = [i for i, l in enumerate(L) if 'unit body' in l][0]
    i1 = [i for i, l in enumerate(L) if l.startswith('L_next')][0]
    body = L[i0:i1]
    for nw in (1, 2, 3):
        T, marks, busy = simulate(body, nwaves=nw)
        print(f"waves={nw}: total {T} per unit {T/(4*nw):.0f} busy/unit {busy/(4*nw):.0f}", [[b-a for a,b in zip([0]+m, m)] for m in marks])
```

```python
import sys, struct, math
sys.path.insert(0, 'gen')
from sched import Ins, vr, schedule, finalize
from sched2 import schedule2
import sim

KN = "standalone__attention_interact_autoint__recsys_kernel"
NWG = 512
NIT = 4
EBYTES = 4096 * 100 * 64 * 2
BUF1 = 16384
LDS_TOTAL = 81920
WSCR = 49152

opts = dict(a.split('=') for a in sys.argv[2:]) if len(sys.argv) > 2 else {}
G = int(opts.get('g', 2))
ZTAIL = int(opts.get('ztail', 1))
DELAY = int(opts.get('delay', 1))
SAFE = int(opts.get('safe', 1))
FORCE_SAFE = int(opts.get('force_safe', 0))
NOSCHED = int(opts.get('nosched', 0))
WINDOW = int(opts.get('window', 300))
STAMP = int(opts.get('stamp', 0))
PRIO = int(opts.get('prio', 1))
STF = opts.get('stf', 'sc1').replace('+', ' ')
LDF = opts.get('ldf', '').replace('+', ' ')
DBGT = int(opts.get('dbgt', 0))
NOMEM = int(opts.get('nomem', 0))
NOBAR = int(opts.get('nobar', 0))


def f32bits(x):
    return struct.unpack('<I', struct.pack('<f', x))[0]


class Alloc:
    def __init__(self, start):
        self.n = start

    def get(self, k, align=2):
        self.n = (self.n + align - 1) // align * align
        r = self.n
        self.n += k
        return r


A = Alloc(2)
WQ = A.get(16); WK = A.get(16); WV = A.get(16); WR = A.get(16)
KP = A.get(28)
VP = [A.get(14), A.get(14)]
EB = [A.get(8) for _ in range(int(opts.get('neb', 2)))]
PD = [A.get(4) for _ in range(int(opts.get('npd', 4)))]
QP = [A.get(4) for _ in range(int(opts.get('nq', 3)))]
SB = [A.get(8) for _ in range(int(opts.get('nsb', 3)))]
ST = [A.get(4) for _ in range(1)]
PT = [A.get(2) for _ in range(2)]
OA = [A.get(8) for _ in range(int(opts.get('no', 3)))]
RA = [A.get(8) for _ in range(int(opts.get('nr', 1)))]
LA = [A.get(4) for _ in range(int(opts.get('no', 3)))]
ONES = A.get(4)
CB = A.get(4)
V_LDS = A.get(1, 1)
V_DMA = A.get(1, 1)
V_DMAT = A.get(1, 1)
V_ST = A.get(1, 1)
V_STT = A.get(1, 1)
V_LMAX = 0
V_LMIN = 1
assert A.n <= 256, A.n
NVGPR = 256

S_E = 8; S_O = 12; S_W = 16
S_HEAD = 32; S_CUR = 33; S_NXT = 34; S_IT = 35; S_STO = 36
S_LDSN = 44; S_T0 = 45; S_T1 = 46; S_T2 = 47
S_LO = 48; S_HI = 49; S_WAVE = 52; S_PAIR = 53

BSHIFT = 40.0
L_LO = 2.0 ** -56
L_HI = 1.0
CSCALE = math.log2(math.e) / math.sqrt(32.0)


def r4(a): return f"v[{a}:{a + 3}]"
def r2(a): return f"v[{a}:{a + 1}]"


def mfma(d, a, b, c=None, tag=''):
    if c is None:
        return Ins(f"v_mfma_f32_16x16x32_bf16 {r4(d)}, {r4(a)}, {r4(b)}, 0", 'mfma', vr(d, 4), vr(a, 4) + vr(b, 4), tag=tag)
    return Ins(f"v_mfma_f32_16x16x32_bf16 {r4(d)}, {r4(a)}, {r4(b)}, {r4(c)}", 'mfma', vr(d, 4), vr(a, 4) + vr(b, 4), vr(c, 4), tag=tag)


def mfmas(d, a, b, c, tag=''):
    return Ins(f"v_mfma_f32_16x16x16_bf16 {r4(d)}, {r2(a)}, {r2(b)}, {r4(c)}", 'mfmas', vr(d, 4), vr(a, 2) + vr(b, 2), vr(c, 4), tag=tag)


def cvt(d, a, b):
    if b is None:
        return Ins(f"v_cvt_pk_bf16_f32 v{d}, v{a}, 0", 'valu', vr(d), vr(a))
    return Ins(f"v_cvt_pk_bf16_f32 v{d}, v{a}, v{b}", 'valu', vr(d), vr(a) + vr(b))


def vexp(d, a):
    return Ins(f"v_exp_f32 v{d}, v{a}", 'trans', vr(d), vr(a))


def dsread(d, off):
    return Ins(f"ds_read_b128 {r4(d)}, v{V_LDS} offset:{off}", 'dsr', vr(d, 4), vr(V_LDS))


def salu(text, defs, uses):
    return Ins(text, 'salu', defs, uses)


class Ring:
    def __init__(self, items):
        self.items = items
        self.i = 0

    def next(self):
        r = self.items[self.i % len(self.items)]
        self.i += 1
        return r


def dma_block():
    L = []
    srd = [f's{S_E + i}' for i in range(4)]
    for t in (0, 2, 4, 6):
        if t == 0:
            L.append(salu(f"s_mov_b32 m0, s{S_LDSN}", ['m0'], [f's{S_LDSN}']))
            so = S_NXT
        else:
            L.append(salu(f"s_add_u32 m0, s{S_LDSN}, {t * 2048}", ['m0', 'scc'], [f's{S_LDSN}']))
            L.append(salu(f"s_add_u32 s{S_T0}, s{S_NXT}, {t * 2048}", [f's{S_T0}', 'scc'], [f's{S_NXT}']))
            so = S_T0
        if t < 6:
            L.append(Ins(f"buffer_load_dwordx4 v{V_DMA}, s[{S_E}:{S_E + 3}], s{so} offen {LDF} lds", 'dma', [], vr(V_DMA) + srd + [f's{so}', 'm0']))
            L.append(Ins(f"buffer_load_dwordx4 v{V_DMA}, s[{S_E}:{S_E + 3}], s{so} offen offset:2048 {LDF} lds", 'dma', [], vr(V_DMA) + srd + [f's{so}', 'm0']))
        else:
            L.append(Ins(f"buffer_load_dwordx4 v{V_DMAT}, s[{S_E}:{S_E + 3}], s{so} offen {LDF} lds", 'dma', [], vr(V_DMAT) + srd + [f's{so}', 'm0']))
    return L


def store(i, data):
    srd = [f's{S_O + k}' for k in range(4)]
    va = V_ST if i < 6 else V_STT
    return Ins(f"buffer_store_dwordx4 {r4(data)}, v{va}, s[{S_O}:{S_O + 3}], s{S_STO + i} offen {STF}", 'store', [],
               vr(data, 4) + vr(va) + srd + [f's{S_STO + i}'])


def kv_tile(t, eb, pd):
    L = []
    d0, d1 = pd.next(), pd.next()
    L.append(mfma(d0, WK + 0, eb + 0)); L.append(mfma(d1, WK + 4, eb + 0))
    L.append(mfma(d0, WK + 8, eb + 4, d0)); L.append(mfma(d1, WK + 12, eb + 4, d1))
    k = KP + 4 * t
    L += [cvt(k, d0, d0 + 1), cvt(k + 1, d0 + 2, d0 + 3), cvt(k + 2, d1, d1 + 1), cvt(k + 3, d1 + 2, d1 + 3)]
    d0, d1 = pd.next(), pd.next()
    L.append(mfma(d0, eb + 0, WV + 0)); L.append(mfma(d1, eb + 0, WV + 4))
    L.append(mfma(d0, eb + 4, WV + 8, d0)); L.append(mfma(d1, eb + 4, WV + 12, d1))
    for u, d in ((0, d0), (1, d1)):
        v = VP[u] + 2 * t
        L.append(cvt(v, d, d + 1))
        if t < 6:
            L.append(cvt(v + 1, d + 2, d + 3))
    return L


def q_proj(eb, pd, q):
    L = []
    d0, d1 = pd.next(), pd.next()
    L.append(mfma(d0, WQ + 0, eb + 0)); L.append(mfma(d1, WQ + 4, eb + 0))
    L.append(mfma(d0, WQ + 8, eb + 4, d0)); L.append(mfma(d1, WQ + 12, eb + 4, d1))
    L += [cvt(q, d0, d0 + 1), cvt(q + 1, d0 + 2, d0 + 3), cvt(q + 2, d1, d1 + 1), cvt(q + 3, d1 + 2, d1 + 3)]
    return L


def res_proj(eb, r):
    return [mfma(r, WR + 0, eb + 0), mfma(r + 4, WR + 4, eb + 0), mfma(r, WR + 8, eb + 4, r), mfma(r + 4, WR + 12, eb + 4, r + 4)]


def epilogue(i, o, r, l, inv):
    L = [Ins(f"v_rcp_f32 v{inv}, v{l}", 'trans', vr(inv), vr(l))]
    for j in range(8):
        L.append(Ins(f"v_fma_f32 v{o + j}, v{o + j}, v{inv}, v{r + j}", 'valu', vr(o + j), vr(o + j) + vr(inv) + vr(r + j)))
    for j in range(4):
        L.append(cvt(o + j, o + 2 * j, o + 2 * j + 1))
    for j in range(4):
        L.append(Ins(f"v_pk_max_i16 v{o + j}, v{o + j}, 0", 'valu', vr(o + j), vr(o + j)))
    L.append(store(i, o))
    return L


def unit_body():
    L = []
    eb = Ring(EB); pd = Ring(PD); qp = Ring(QP); sb = Ring(SB); st = Ring(ST); pt = Ring(PT)
    oa = Ring(OA); ra = Ring(RA); la = Ring(LA)
    for i in range(7):
        if i == 0:
            L.append(salu(f"s_mov_b32 s{S_STO}, s{S_CUR}", [f's{S_STO}'], [f's{S_CUR}']))
        else:
            L.append(salu(f"s_add_u32 s{S_STO + i}, s{S_CUR}, {i * 2048}", [f's{S_STO + i}', 'scc'], [f's{S_CUR}']))
    Q = {}; O = {}; LL = {}
    state = {'lprev': None}

    def readE(t):
        e = eb.next()
        return e, [dsread(e, (2 * t) * 1024), dsread(e + 4, (2 * t + 1) * 1024), Ins("wait", 'wait', vr(e, 8), vr(e, 8))]

    def qproj(i, e):
        Q[i] = qp.next()
        return q_proj(e, pd, Q[i])

    def step(i, p):
        X = []
        q = Q[i]
        if p == 0:
            O[i] = oa.next(); LL[i] = la.next()
        o = O[i]; l = LL[i]
        if p < 3:
            b = sb.next()
            X.append(mfma(b, KP + 8 * p, q, CB)); X.append(mfma(b + 4, KP + 8 * p + 4, q, CB))
            for j in (2, 3, 0, 1, 4, 5, 6, 7):
                X.append(vexp(b + j, b + j))
            X += [cvt(b + 3, b + 2, b + 3), cvt(b + 2, b, b + 1), cvt(b + 4, b + 4, b + 5), cvt(b + 5, b + 6, b + 7)]
            c0 = None if p == 0 else o
            c1 = None if p == 0 else o + 4
            cl = None if p == 0 else l
            X.append(mfma(o, VP[0] + 4 * p, b + 2, c0)); X.append(mfma(o + 4, VP[1] + 4 * p, b + 2, c1))
            X.append(mfma(l, ONES, b + 2, cl))
        else:
            s_ = st.next(); pp = pt.next()
            X.append(mfma(s_, KP + 24, q, CB))
            X.append(vexp(s_, s_))
            X.append(cvt(pp, s_, None))
            X.append(mfmas(l, ONES, pp, l))
            X.append(mfmas(o, VP[0] + 12, pp, o)); X.append(mfmas(o + 4, VP[1] + 12, pp, o + 4))
        return X

    def res(i):
        e, X = readE(i)
        r = ra.next()
        return r, X + res_proj(e, r)

    def fin(i, r):
        o = O[i]; l = LL[i]
        X = epilogue(i, o, r, l, l + 1)
        lprev = state['lprev']
        if i % 2 == 1:
            X.append(Ins(f"v_max3_f32 v{V_LMAX}, v{V_LMAX}, v{lprev}, v{l}", 'valu', vr(V_LMAX), vr(V_LMAX) + vr(lprev) + vr(l)))
            X.append(Ins(f"v_min3_f32 v{V_LMIN}, v{V_LMIN}, v{lprev}, v{l}", 'valu', vr(V_LMIN), vr(V_LMIN) + vr(lprev) + vr(l)))
        elif i == 6:
            X.append(Ins(f"v_max_f32 v{V_LMAX}, v{V_LMAX}, v{l}", 'valu', vr(V_LMAX), vr(V_LMAX) + vr(l)))
            X.append(Ins(f"v_min_f32 v{V_LMIN}, v{V_LMIN}, v{l}", 'valu', vr(V_LMIN), vr(V_LMIN) + vr(l)))
        state['lprev'] = l
        return X

    def kv(t):
        e, X = readE(t)
        if t < min(G, 2):
            X += qproj(t, e)
        X += kv_tile(t, e, pd)
        return X
    L += kv(0) + kv(1)
    L += dma_block()
    if G > 2:
        e, X = readE(2)
        L += X + qproj(2, e)
    for p in range(4):
        nxt = [t for t in (2 * p + 2, 2 * p + 3) if t < 7]
        for i in range(G):
            L += step(i, p)
            if nxt:
                t = nxt.pop(0)
                e, X = readE(t)
                L += X + kv_tile(t, e, pd)
        for t in nxt:
            e, X = readE(t)
            L += X + kv_tile(t, e, pd)
        if p == 2 and len(QP) > G:
            e, X = readE(G)
            L += X + qproj(G, e)
    for i in range(G):
        r, X = res(i)
        L += X + fin(i, r)
        if i == 0 and len(QP) <= G:
            e, X = readE(G)
            L += X + qproj(G, e)
    for i in range(G, 7):
        for p in range(4):
            L += step(i, p)
            if p == 0 and i < 6:
                e, X = readE(i + 1)
                L += X + qproj(i + 1, e)
            if p == 1:
                r, X = res(i)
                L += X
        L += fin(i, r)
    return L


def safe_body():
    L = []
    pd = Ring(PD)
    e = EB[0]; q = QP[0]; r = RA[0]; o = OA[0]; l = LA[0]; s6 = ST[0]; pp = PT[0]
    m = LA[1]; m2 = LA[1] + 1
    for i in range(7):
        L += [dsread(e, (2 * i) * 1024), dsread(e + 4, (2 * i + 1) * 1024)]
        L += q_proj(e, pd, q) + res_proj(e, r)
        for p in range(3):
            b = SB[p]
            L.append(mfma(b, KP + 8 * p, q)); L.append(mfma(b + 4, KP + 8 * p + 4, q))
        L.append(mfma(s6, KP + 24, q))
        regs = [SB[p] + j for p in range(3) for j in range(8)]
        L.append(Ins(f"v_mov_b32 v{m}, v{s6}", 'valu', vr(m), vr(s6)))
        for k in range(0, 24, 2):
            L.append(Ins(f"v_max3_f32 v{m}, v{m}, v{regs[k]}, v{regs[k + 1]}", 'valu', vr(m), vr(m) + vr(regs[k]) + vr(regs[k + 1])))
        L.append(Ins(f"v_mov_b32 v{m2}, v{m}", 'valu', vr(m2), vr(m)))
        L.append(Ins(f"v_permlane16_swap_b32 v{m}, v{m2}", 'perm', vr(m) + vr(m2), vr(m) + vr(m2)))
        L.append(Ins(f"v_max_f32 v{m}, v{m}, v{m2}", 'valu', vr(m), vr(m) + vr(m2)))
        L.append(Ins(f"v_mov_b32 v{m2}, v{m}", 'valu', vr(m2), vr(m)))
        L.append(Ins(f"v_permlane32_swap_b32 v{m}, v{m2}", 'perm', vr(m) + vr(m2), vr(m) + vr(m2)))
        L.append(Ins(f"v_max_f32 v{m}, v{m}, v{m2}", 'valu', vr(m), vr(m) + vr(m2)))
        for x in regs + [s6]:
            L.append(Ins(f"v_sub_f32 v{x}, v{x}, v{m}", 'valu', vr(x), vr(x) + vr(m)))
            L.append(vexp(x, x))
        for p in range(3):
            b = SB[p]
            L += [cvt(b + 3, b + 2, b + 3), cvt(b + 2, b, b + 1), cvt(b + 4, b + 4, b + 5), cvt(b + 5, b + 6, b + 7)]
            c0 = None if p == 0 else o
            c1 = None if p == 0 else o + 4
            cl = None if p == 0 else l
            L.append(mfma(o, VP[0] + 4 * p, b + 2, c0)); L.append(mfma(o + 4, VP[1] + 4 * p, b + 2, c1))
            L.append(mfma(l, ONES, b + 2, cl))
        L.append(cvt(pp, s6, None))
        L.append(mfmas(o, VP[0] + 12, pp, o)); L.append(mfmas(o + 4, VP[1] + 12, pp, o + 4))
        L.append(mfmas(l, ONES, pp, l))
        L += epilogue(i, o, r, l, l + 1)
    return L


def prologue():
    P = []
    a = P.append
    a(f"    s_cmp_ge_u32 s2, {NWG}")
    a("    s_cbranch_scc1 L_done")
    if PRIO:
        a("    s_setprio 3")
    if STAMP:
        a("    s_memtime s[64:65]")
        a("    s_memrealtime s[66:67]")
        a("    s_load_dwordx2 s[62:63], s[0:1], 56")
        a("    s_getreg_b32 s61, hwreg(HW_REG_HW_ID)")
        a("    s_getreg_b32 s60, hwreg(HW_REG_XCC_ID)")
    if DBGT:
        a("    s_memrealtime s[66:67]")
        a("    s_memtime s[64:65]")
        a("    s_load_dwordx2 s[62:63], s[0:1], 48")
    a("    v_lshrrev_b32 v1, 6, v0")
    a("    s_load_dwordx2 s[4:5], s[0:1], 0")
    a("    s_load_dwordx2 s[26:27], s[0:1], 40")
    a(f"    v_readfirstlane_b32 s{S_WAVE}, v1")
    a("    v_and_b32 v2, 63, v0")
    a("    v_and_b32 v1, 1, v1")
    a("    v_lshrrev_b32 v3, 4, v2")
    a(f"    s_lshl_b32 s{S_T0}, s{S_WAVE}, 3")
    a(f"    s_add_u32 s20, s0, s{S_T0}")
    a("    s_addc_u32 s21, s1, 0")
    a("    s_load_dwordx2 s[6:7], s[20:21], 8")
    a(f"    s_and_b32 s{S_HEAD}, s{S_WAVE}, 1")
    a(f"    s_lshr_b32 s{S_PAIR}, s{S_WAVE}, 1")
    a("    v_and_b32 v4, 15, v2")
    a("    v_lshlrev_b32 v5, 7, v4")
    a("    v_lshl_add_u32 v5, v3, 4, v5")
    a("    v_lshl_add_u32 v5, v1, 6, v5")
    a(f"    v_mov_b32 v{V_DMA}, v5")
    a(f"    v_mov_b32 v{V_ST}, v5")
    a("    v_lshrrev_b32 v6, 2, v4")
    a("    v_lshlrev_b32 v6, 7, v6")
    a("    v_lshl_add_u32 v6, v3, 4, v6")
    a("    v_lshl_add_u32 v6, v1, 6, v6")
    a("    v_and_b32 v7, 3, v4")
    a("    v_cmp_ne_u32 vcc, 0, v7")
    a("    v_mov_b32 v7, 0x7f000000")
    a("    v_lshlrev_b32 v8, 4, v2")
    a(f"    v_cndmask_b32 v{V_STT}, v6, v7, vcc")
    if ZTAIL:
        a(f"    v_cndmask_b32 v{V_DMAT}, v6, v7, vcc")
    else:
        a(f"    v_mov_b32 v{V_DMAT}, v6")
    a(f"    s_lshl_b32 s{S_LDSN}, s{S_PAIR}, 15")
    a(f"    v_add_u32 v{V_LDS}, s{S_LDSN}, v8")
    a(f"    s_lshl_b32 s{S_T0}, s{S_HEAD}, 10")
    a(f"    s_add_u32 s{S_LDSN}, s{S_LDSN}, s{S_T0}")
    a(f"    s_lshl_b32 s{S_NXT}, s2, 1")
    a(f"    s_add_u32 s{S_NXT}, s{S_NXT}, s{S_PAIR}")
    a(f"    s_mul_i32 s{S_NXT}, s{S_NXT}, 12800")
    a(f"    s_lshl_b32 s{S_T1}, s{S_WAVE}, 13")
    a(f"    s_add_u32 s{S_T1}, s{S_T1}, {WSCR}")
    a(f"    s_mov_b32 s{S_W + 2}, 8192"); a(f"    s_mov_b32 s{S_W + 3}, 0x00020000")
    a(f"    s_mov_b32 s{S_E + 2}, {EBYTES}"); a(f"    s_mov_b32 s{S_E + 3}, 0x00020000")
    a(f"    s_mov_b32 s{S_O + 2}, {EBYTES}"); a(f"    s_mov_b32 s{S_O + 3}, 0x00020000")
    a(f"    s_movk_i32 s{S_T2}, 4096")
    a(f"    s_mov_b32 m0, s{S_T1}")
    a("    s_waitcnt lgkmcnt(0)")
    if STAMP:
        a("    s_memtime s[84:85]")
    a(f"    s_mov_b32 s{S_W}, s6"); a(f"    s_and_b32 s{S_W + 1}, s7, 0xffff")
    a(f"    s_mov_b32 s{S_E}, s4"); a(f"    s_and_b32 s{S_E + 1}, s5, 0xffff")
    for k in range(4):
        a(f"    buffer_load_dwordx4 v8, s[{S_W}:{S_W + 3}], 0 offen offset:{k * 1024} lds")
    a(f"    s_add_u32 m0, s{S_T1}, 4096")
    a(f"    s_mov_b32 s{S_O}, s26"); a(f"    s_and_b32 s{S_O + 1}, s27, 0xffff")
    for k in range(4):
        a(f"    buffer_load_dwordx4 v8, s[{S_W}:{S_W + 3}], s{S_T2} offen offset:{k * 1024} lds")
    dl, _ = finalize(dma_block())
    if DELAY:
        a(f"    s_cmp_ge_u32 s2, {NWG // 2}")
        a("    s_cbranch_scc1 L_late0")
    P.extend(dl)
    if DELAY:
        a("L_late0:")
    for k in range(4):
        a(f"    v_mov_b32 v{ONES + k}, 0x3f803f80")
        a(f"    v_mov_b32 v{CB + k}, 0x{f32bits(-BSHIFT):08x}")
    for k in range(2):
        a(f"    v_mov_b32 v{PT[k] + 1}, 0")
        a(f"    v_mov_b32 v{VP[k] + 13}, 0")
    A0, A1, A2 = OA[0], OA[0] + 1, OA[0] + 2
    a("    v_lshrrev_b32 v10, 2, v4")
    a("    v_lshl_add_u32 v10, v3, 3, v10")
    a("    v_and_b32 v11, 3, v4")
    a("    v_lshlrev_b32 v12, 6, v10")
    a("    v_lshl_add_u32 v12, v1, 12, v12")
    a(f"    v_add_u32 v12, {WSCR}, v12")
    a(f"    v_lshl_add_u32 v{A0}, v11, 3, v12")
    a(f"    v_lshl_add_u32 v{A1}, v11, 4, v12")
    a("    v_lshlrev_b32 v12, 7, v10")
    a("    v_lshl_add_u32 v12, v1, 6, v12")
    a("    v_lshl_add_u32 v12, v11, 4, v12")
    a(f"    v_add_u32 v{A2}, {WSCR + 24576}, v12")
    if DELAY:
        a(f"    s_cmp_ge_u32 s2, {NWG // 2}")
        a("    s_cbranch_scc1 L_late1")
        a("    s_waitcnt vmcnt(7)")
        a("    s_barrier")
        a("    s_branch L_late2")
        a("L_late1:")
        a("    s_waitcnt vmcnt(0)")
        a("    s_barrier")
        P.extend(dl)
        a("L_late2:")
    else:
        a("    s_waitcnt vmcnt(7)")
        a("    s_barrier")
    if STAMP:
        a("    s_memtime s[86:87]")
        a("    s_waitcnt lgkmcnt(0)")

    def trread(base, moff, addr, tstride, rowb):
        for s_ in range(2):
            for t in range(2):
                for half in range(2):
                    off = moff + (32 * s_ + 4 * half) * rowb + t * tstride
                    a(f"    ds_read_b64_tr_b16 {r2(base + 8 * s_ + 4 * t + 2 * half)}, v{addr} offset:{off}")
    trread(WQ, 0, A0, 32, 64)
    trread(WK, 8192, A0, 32, 64)
    a("    s_waitcnt lgkmcnt(8)")
    t0, t1 = OA[1], OA[1] + 1
    a(f"    s_mov_b32 s{S_T0}, 0x{f32bits(CSCALE):08x}")
    for k in range(16):
        if k == 4:
            trread(WV, 16384, A1, 8, 64)
        if k == 10:
            trread(WR, 0, A2, 8, 128)
        a(f"    v_lshlrev_b32 v{t0}, 16, v{WQ + k}")
        a(f"    v_and_b32 v{t1}, 0xffff0000, v{WQ + k}")
        a(f"    v_mul_f32 v{t0}, s{S_T0}, v{t0}")
        a(f"    v_mul_f32 v{t1}, s{S_T0}, v{t1}")
        a(f"    v_cvt_pk_bf16_f32 v{WQ + k}, v{t0}, v{t1}")
    a(f"    s_mov_b32 s{S_IT}, 0")
    a(f"    s_mov_b32 s{S_LO}, 0x{f32bits(L_LO):08x}")
    a(f"    s_mov_b32 s{S_HI}, 0x{f32bits(L_HI):08x}")
    if STAMP:
        a("    s_waitcnt lgkmcnt(0)")
        a("    s_memtime s[88:89]")
    a("    s_waitcnt vmcnt(0) lgkmcnt(0)")
    return P


def main():
    out = []
    a = out.append
    hdr = open('standalone__attention_interact_autoint__recsys.s.ref').read().split('\n')
    for line in hdr:
        if line.startswith('; @launch'):
            a(f"; @launch grid=({NWG},1,1) block=(256,1,1) lds={LDS_TOTAL}")
        elif line.startswith(';'):
            a(line)
        else:
            break
    a('.amdgcn_target "amdgcn-amd-amdhsa--gfx950"')
    a(".text")
    a(f".globl {KN}")
    a(".p2align 8")
    a(f".type {KN},@function")
    a(f"{KN}:")
    out += prologue()
    if STAMP:
        a("    s_memtime s[68:69]")
        a("    s_waitcnt lgkmcnt(0)")
    if NOBAR:
        a("    s_barrier")
    a("L_loop:")
    a("    s_waitcnt vmcnt(7)")
    if not NOBAR:
        a("    s_barrier")
    if STAMP:
        a("    s_memtime s[80:81]")
        a("    s_waitcnt lgkmcnt(0)")
        for k in range(4):
            a(f"    s_cmp_eq_u32 s{S_IT}, {k}")
            a(f"    s_cselect_b32 s{70+k}, s80, s{70+k}")
    a(f"    s_mov_b32 s{S_CUR}, s{S_NXT}")
    a(f"    s_add_u32 s{S_NXT}, s{S_NXT}, {NWG * 2 * 12800}")
    a(f"    s_xor_b32 s{S_LDSN}, s{S_LDSN}, {BUF1}")
    a(f"    v_mov_b32 v{V_LMAX}, 0")
    a(f"    v_mov_b32 v{V_LMIN}, 1.0")
    body = unit_body()
    if NOMEM & 1:
        body = [x for x in body if x.kind != 'dma']
    if NOMEM & 2:
        body = [x for x in body if x.kind != 'store']
    if NOSCHED:
        sched, est = body, 0
    else:
        sched, est = schedule2(body, window=WINDOW, mfma_bias=float(opts.get('mb', 400)), noise=float(opts.get('noise', 0)), seed=int(opts.get('seed', 0)))
    lines, nnop = finalize(sched)
    for nw in (1, 2):
        T, marks, busy = sim.simulate(lines, nwaves=nw)
        sys.stderr.write(f"sim waves={nw}: per unit {T/(4*nw):.0f} busy {busy/(4*nw):.0f}\n")
    sys.stderr.write(f"unit body: {len(body)} instrs, est {est} cycles, {nnop} nop states, vgprs {A.n}\n")
    out += lines
    if SAFE:
        a(f"    v_cmp_lt_f32 vcc, s{S_HI}, v{V_LMAX}")
        a(f"    v_cmp_gt_f32 s[50:51], s{S_LO}, v{V_LMIN}")
        a("    s_nop 1")
        a("    s_or_b64 vcc, vcc, s[50:51]")
        if FORCE_SAFE:
            a("    s_branch L_safe")
        a("    s_cbranch_scc1 L_safe")
        a("L_next:")
    if not (NOMEM & 1):
        a(f"    v_xor_b32 v{V_LDS}, {BUF1}, v{V_LDS}")
    a(f"    s_add_u32 s{S_IT}, s{S_IT}, 1")
    if PRIO:
        for k in (1, 2, 3):
            a(f"    s_cmp_lg_u32 s{S_IT}, {k}")
            a(f"    s_cbranch_scc1 L_p{k}")
            a(f"    s_setprio {3 - k}")
            a(f"L_p{k}:")
    a(f"    s_cmp_lt_u32 s{S_IT}, {NIT}")
    a("    s_cbranch_scc1 L_loop")
    if STAMP:
        a("    s_memtime s[74:75]")
        a("    s_waitcnt vmcnt(0)")
        a("    s_memtime s[76:77]")
        a("    s_memrealtime s[78:79]")
        a("    s_waitcnt lgkmcnt(0)")
        a(f"    s_lshl_b32 s82, s2, 2")
        a(f"    s_add_u32 s82, s82, s{S_WAVE}")
        a(f"    s_lshl_b32 s82, s82, 6")
        a(f"    v_mov_b32 v2, s82")
        regs = [60, 61, 64, 66, 68, 70, 71, 72, 73, 74, 76, 78, 84, 86, 88]
        for k, r in enumerate(regs):
            a(f"    v_mov_b32 v3, s{r}")
            a(f"    global_store_dword v2, v3, s[62:63] offset:{4*k}")
    if DBGT:
        a("    s_waitcnt vmcnt(0)")
        a("    s_memrealtime s[78:79]")
        a("    s_memtime s[76:77]")
        a("    s_waitcnt lgkmcnt(0)")
        a("    s_and_b32 s70, s2, 63")
        a("    s_cmp_lg_u32 s70, 63")
        a("    s_cbranch_scc1 L_done")
        a(f"    s_cmp_lg_u32 s{S_WAVE}, 0")
        a("    s_cbranch_scc1 L_done")
        a("    s_lshr_b32 s70, s2, 6")
        a("    s_lshl_b32 s70, s70, 3")
        a("    v_mov_b32 v2, s70")
        a("    v_mov_b32 v4, s66")
        a("    v_mov_b32 v5, s78")
        a("    s_mov_b64 exec, 1")
        a("    global_store_dwordx2 v2, v[4:5], s[62:63]")
    a("L_done:")
    a("    s_endpgm")
    if SAFE:
        a("L_safe:")
        a("    s_waitcnt vmcnt(0)")
        lines, _ = finalize(safe_body())
        out += lines
        a("    s_nop 7")
        a("    s_branch L_next")
    a('.section .rodata,"a"')
    a(".p2align 6")
    a(f".amdhsa_kernel {KN}")
    a(f"  .amdhsa_next_free_vgpr {NVGPR}")
    a(f"  .amdhsa_next_free_sgpr {96 if (STAMP or DBGT) else 64}")
    a(f"  .amdhsa_accum_offset {NVGPR}")
    a("  .amdhsa_group_segment_fixed_size 0")
    a("  .amdhsa_kernarg_size 64")
    a("  .amdhsa_user_sgpr_count 2")
    a("  .amdhsa_user_sgpr_kernarg_segment_ptr 1")
    a("  .amdhsa_system_sgpr_workgroup_id_x 1")
    a(".end_amdhsa_kernel")
    open(sys.argv[1], 'w').write("\n".join(out) + "\n")


main()
```

```python
import sys, struct, math
sys.path.insert(0, 'gen')
from sched import Ins, vr, schedule, finalize
from sched2 import schedule2
import sim

KN = "standalone__attention_interact_autoint__recsys_kernel"
NWG = 512
NIT = 4
EBYTES = 4096 * 100 * 64 * 2
BSTR = 13312
PSTR = 3 * BSTR
LDS_TOTAL = 81920
WOFF = [BSTR, BSTR + 8192, BSTR + 16384, PSTR + BSTR]

opts = dict(a.split('=') for a in sys.argv[2:]) if len(sys.argv) > 2 else {}
G = int(opts.get('g', 2))
INDMA = int(opts.get('indma', 1))
ZTAIL = int(opts.get('ztail', 1))
DELAY = int(opts.get('delay', 1))
SAFE = int(opts.get('safe', 1))
FORCE_SAFE = int(opts.get('force_safe', 0))
NOSCHED = int(opts.get('nosched', 0))
WINDOW = int(opts.get('window', 300))
STAMP = int(opts.get('stamp', 0))
PRIO = int(opts.get('prio', 1))
STF = opts.get('stf', 'sc1').replace('+', ' ')
LDF = opts.get('ldf', 'nt').replace('+', ' ')
DBGT = int(opts.get('dbgt', 0))
NOMEM = int(opts.get('nomem', 0))
NOBAR = int(opts.get('nobar', 0))


def f32bits(x):
    return struct.unpack('<I', struct.pack('<f', x))[0]


class Alloc:
    def __init__(self, start):
        self.n = start

    def get(self, k, align=2):
        self.n = (self.n + align - 1) // align * align
        r = self.n
        self.n += k
        return r


A = Alloc(2)
WQ = A.get(16); WK = A.get(16); WV = A.get(16); WR = A.get(16)
KP = A.get(28)
VP = [A.get(14), A.get(14)]
EB = [A.get(8) for _ in range(int(opts.get('neb', 2)))]
PD = [A.get(4) for _ in range(int(opts.get('npd', 4)))]
QP = [A.get(4) for _ in range(int(opts.get('nq', 3)))]
SB = [A.get(8) for _ in range(int(opts.get('nsb', 3)))]
PT = [A.get(2) for _ in range(2)]
OA = [A.get(8) for _ in range(int(opts.get('no', 3)))]
RA = [A.get(8) for _ in range(int(opts.get('nr', 1)))]
LA = [A.get(4) for _ in range(int(opts.get('no', 3)))]
ONES = A.get(4)
CB = A.get(4)
V_LA = [A.get(1, 1) for _ in range(4)]
V_DMA = A.get(1, 1)
V_DMAT = A.get(1, 1)
V_ST = A.get(1, 1)
V_STT = A.get(1, 1)
V_LMAX = 0
V_LMIN = 1
assert A.n <= 256, A.n
NVGPR = 256

S_E = 8; S_O = 12; S_W = 16
S_HEAD = 32; S_CUR = 33; S_NXT = 34; S_IT = 35; S_STO = 36
S_LDSN = 44; S_T0 = 45; S_T1 = 46; S_T2 = 47
S_LO = 48; S_HI = 49; S_WAVE = 52; S_PAIR = 53; S_LDSP = 54; S_LDSH = 55; S_DEL = 56

BSHIFT = 40.0
L_LO = 2.0 ** -56
L_HI = 1.0
CSCALE = math.log2(math.e) / math.sqrt(32.0)


def r4(a): return f"v[{a}:{a + 3}]"
def r2(a): return f"v[{a}:{a + 1}]"


def mfma(d, a, b, c=None, tag=''):
    if c is None:
        return Ins(f"v_mfma_f32_16x16x32_bf16 {r4(d)}, {r4(a)}, {r4(b)}, 0", 'mfma', vr(d, 4), vr(a, 4) + vr(b, 4), tag=tag)
    return Ins(f"v_mfma_f32_16x16x32_bf16 {r4(d)}, {r4(a)}, {r4(b)}, {r4(c)}", 'mfma', vr(d, 4), vr(a, 4) + vr(b, 4), vr(c, 4), tag=tag)


def mfmas(d, a, b, c, tag=''):
    return Ins(f"v_mfma_f32_16x16x16_bf16 {r4(d)}, {r2(a)}, {r2(b)}, {r4(c)}", 'mfmas', vr(d, 4), vr(a, 2) + vr(b, 2), vr(c, 4), tag=tag)


def cvt(d, a, b):
    if b is None:
        return Ins(f"v_cvt_pk_bf16_f32 v{d}, v{a}, 0", 'valu', vr(d), vr(a))
    return Ins(f"v_cvt_pk_bf16_f32 v{d}, v{a}, v{b}", 'valu', vr(d), vr(a) + vr(b))


def vexp(d, a):
    return Ins(f"v_exp_f32 v{d}, v{a}", 'trans', vr(d), vr(a))


def dsread(d, t, s_):
    if t < 6:
        va, off = V_LA[s_], t * 2048
    else:
        va, off = V_LA[2 + s_], 0
    return Ins(f"ds_read_b128 {r4(d)}, v{va} offset:{off}", 'dsr', vr(d, 4), vr(va))


def salu(text, defs, uses):
    return Ins(text, 'salu', defs, uses)


class Ring:
    def __init__(self, items):
        self.items = items
        self.i = 0

    def next(self):
        r = self.items[self.i % len(self.items)]
        self.i += 1
        return r


def dma_block():
    L = []
    srd = [f's{S_E + i}' for i in range(4)]
    for m in (0, 2, 4, 6):
        if m < 6:
            L.append(salu(f"s_add_u32 m0, s{S_LDSH}, {m * 2048}", ['m0', 'scc'], [f's{S_LDSH}']))
        else:
            L.append(salu(f"s_add_u32 m0, s{S_LDSN}, {12288}", ['m0', 'scc'], [f's{S_LDSN}']))
        if m == 0:
            so = S_NXT
        else:
            L.append(salu(f"s_add_u32 s{S_T0}, s{S_NXT}, {m * 2048}", [f's{S_T0}', 'scc'], [f's{S_NXT}']))
            so = S_T0
        if m < 6:
            L.append(Ins(f"buffer_load_dwordx4 v{V_DMA}, s[{S_E}:{S_E + 3}], s{so} offen {LDF} lds", 'dma', [], vr(V_DMA) + srd + [f's{so}', 'm0']))
            L.append(Ins(f"buffer_load_dwordx4 v{V_DMA}, s[{S_E}:{S_E + 3}], s{so} offen offset:2048 {LDF} lds", 'dma', [], vr(V_DMA) + srd + [f's{so}', 'm0']))
        else:
            L.append(Ins(f"buffer_load_dwordx4 v{V_DMAT}, s[{S_E}:{S_E + 3}], s{so} offen {LDF} lds", 'dma', [], vr(V_DMAT) + srd + [f's{so}', 'm0']))
    return L


def dma_lines(bufidx):
    X = [f"    s_add_u32 s{S_LDSN}, s{S_LDSP}, {bufidx * BSTR}",
         f"    s_lshl_b32 s{S_T0}, s{S_HEAD}, 10",
         f"    s_add_u32 s{S_LDSH}, s{S_LDSN}, s{S_T0}"]
    dl, _ = finalize(dma_block())
    return X + dl + [f"    s_add_u32 s{S_NXT}, s{S_NXT}, {NWG * 2 * 12800}"]


def store(i, data):
    srd = [f's{S_O + k}' for k in range(4)]
    va = V_ST if i < 6 else V_STT
    return Ins(f"buffer_store_dwordx4 {r4(data)}, v{va}, s[{S_O}:{S_O + 3}], s{S_STO + i} offen {STF}", 'store', [],
               vr(data, 4) + vr(va) + srd + [f's{S_STO + i}'])


def kv_tile(t, eb, pd):
    L = []
    d0, d1 = pd.next(), pd.next()
    L.append(mfma(d0, WK + 0, eb + 0)); L.append(mfma(d1, WK + 4, eb + 0))
    L.append(mfma(d0, WK + 8, eb + 4, d0)); L.append(mfma(d1, WK + 12, eb + 4, d1))
    k = KP + 4 * t
    L += [cvt(k, d0, d0 + 1), cvt(k + 1, d0 + 2, d0 + 3), cvt(k + 2, d1, d1 + 1), cvt(k + 3, d1 + 2, d1 + 3)]
    d0, d1 = pd.next(), pd.next()
    L.append(mfma(d0, eb + 0, WV + 0)); L.append(mfma(d1, eb + 0, WV + 4))
    L.append(mfma(d0, eb + 4, WV + 8, d0)); L.append(mfma(d1, eb + 4, WV + 12, d1))
    for u, d in ((0, d0), (1, d1)):
        v = VP[u] + 2 * t
        L.append(cvt(v, d, d + 1))
        if t < 6:
            L.append(cvt(v + 1, d + 2, d + 3))
    return L


def q_proj(eb, pd, q):
    L = []
    d0, d1 = pd.next(), pd.next()
    L.append(mfma(d0, WQ + 0, eb + 0)); L.append(mfma(d1, WQ + 4, eb + 0))
    L.append(mfma(d0, WQ + 8, eb + 4, d0)); L.append(mfma(d1, WQ + 12, eb + 4, d1))
    L += [cvt(q, d0, d0 + 1), cvt(q + 1, d0 + 2, d0 + 3), cvt(q + 2, d1, d1 + 1), cvt(q + 3, d1 + 2, d1 + 3)]
    return L


def res_proj(eb, r):
    return [mfma(r, WR + 0, eb + 0), mfma(r + 4, WR + 4, eb + 0), mfma(r, WR + 8, eb + 4, r), mfma(r + 4, WR + 12, eb + 4, r + 4)]


def epilogue(i, o, r, l, inv):
    L = [Ins(f"v_rcp_f32 v{inv}, v{l}", 'trans', vr(inv), vr(l))]
    for j in range(8):
        L.append(Ins(f"v_fma_f32 v{o + j}, v{o + j}, v{inv}, v{r + j}", 'valu', vr(o + j), vr(o + j) + vr(inv) + vr(r + j)))
    for j in range(4):
        L.append(cvt(o + j, o + 2 * j, o + 2 * j + 1))
    for j in range(4):
        L.append(Ins(f"v_pk_max_i16 v{o + j}, v{o + j}, 0", 'valu', vr(o + j), vr(o + j)))
    L.append(store(i, o))
    return L


def unit_body():
    L = []
    eb = Ring(EB); pd = Ring(PD); qp = Ring(QP); sb = Ring(SB); pt = Ring(PT)
    oa = Ring(OA); ra = Ring(RA); la = Ring(LA)
    for i in range(7):
        if i == 0:
            L.append(salu(f"s_mov_b32 s{S_STO}, s{S_CUR}", [f's{S_STO}'], [f's{S_CUR}']))
        else:
            L.append(salu(f"s_add_u32 s{S_STO + i}, s{S_CUR}, {i * 2048}", [f's{S_STO + i}', 'scc'], [f's{S_CUR}']))
    Q = {}; O = {}; LL = {}
    state = {'lprev': None}

    def readE(t):
        e = eb.next()
        return e, [dsread(e, t, 0), dsread(e + 4, t, 1), Ins("wait", 'wait', vr(e, 8), vr(e, 8))]

    def qproj(i, e):
        Q[i] = qp.next()
        return q_proj(e, pd, Q[i])

    def step(i, p):
        X = []
        q = Q[i]
        if p == 0:
            O[i] = oa.next(); LL[i] = la.next()
        o = O[i]; l = LL[i]
        if p < 3:
            b = sb.next()
            X.append(mfma(b, KP + 8 * p, q, CB)); X.append(mfma(b + 4, KP + 8 * p + 4, q, CB))
            for j in (2, 3, 0, 1, 4, 5, 6, 7):
                X.append(vexp(b + j, b + j))
            X += [cvt(b + 3, b + 2, b + 3), cvt(b + 2, b, b + 1), cvt(b + 4, b + 4, b + 5), cvt(b + 5, b + 6, b + 7)]
            c0 = None if p == 0 else o
            c1 = None if p == 0 else o + 4
            cl = None if p == 0 else l
            X.append(mfma(o, VP[0] + 4 * p, b + 2, c0)); X.append(mfma(o + 4, VP[1] + 4 * p, b + 2, c1))
            X.append(mfma(l, ONES, b + 2, cl))
        else:
            s_ = pd.next(); pp = pt.next()
            X.append(mfma(s_, KP + 24, q, CB))
            X.append(vexp(s_, s_))
            X.append(cvt(pp, s_, None))
            X.append(mfmas(l, ONES, pp, l))
            X.append(mfmas(o, VP[0] + 12, pp, o)); X.append(mfmas(o + 4, VP[1] + 12, pp, o + 4))
        return X

    def res(i):
        e, X = readE(i)
        r = ra.next()
        return r, X + res_proj(e, r)

    def fin(i, r):
        o = O[i]; l = LL[i]
        X = epilogue(i, o, r, l, l + 1)
        lprev = state['lprev']
        if i % 2 == 1:
            X.append(Ins(f"v_max3_f32 v{V_LMAX}, v{V_LMAX}, v{lprev}, v{l}", 'valu', vr(V_LMAX), vr(V_LMAX) + vr(lprev) + vr(l)))
            X.append(Ins(f"v_min3_f32 v{V_LMIN}, v{V_LMIN}, v{lprev}, v{l}", 'valu', vr(V_LMIN), vr(V_LMIN) + vr(lprev) + vr(l)))
        elif i == 6:
            X.append(Ins(f"v_max_f32 v{V_LMAX}, v{V_LMAX}, v{l}", 'valu', vr(V_LMAX), vr(V_LMAX) + vr(l)))
            X.append(Ins(f"v_min_f32 v{V_LMIN}, v{V_LMIN}, v{l}", 'valu', vr(V_LMIN), vr(V_LMIN) + vr(l)))
        state['lprev'] = l
        return X

    def kv(t):
        e, X = readE(t)
        if t < min(G, 2):
            X += qproj(t, e)
        X += kv_tile(t, e, pd)
        return X
    L += kv(0) + kv(1)
    if G > 2:
        e, X = readE(2)
        L += X + qproj(2, e)
    for p in range(4):
        nxt = [t for t in (2 * p + 2, 2 * p + 3) if t < 7]
        for i in range(G):
            L += step(i, p)
            if nxt:
                t = nxt.pop(0)
                e, X = readE(t)
                L += X + kv_tile(t, e, pd)
        for t in nxt:
            e, X = readE(t)
            L += X + kv_tile(t, e, pd)
        if p == 2 and len(QP) > G:
            e, X = readE(G)
            L += X + qproj(G, e)
    for i in range(G):
        r, X = res(i)
        L += X + fin(i, r)
        if i == 0 and len(QP) <= G:
            e, X = readE(G)
            L += X + qproj(G, e)
    dm = dma_block()
    groups = [dm[0:3], dm[3:7], dm[7:11], dm[11:]]
    for i in range(G, 7):
        for p in range(4):
            if p == 2 and groups and INDMA:
                g_ = groups.pop(0)
                g_[0].order_after.append(L[-1])
                L += g_
            L += step(i, p)
            if p == 0 and i < 6:
                e, X = readE(i + 1)
                L += X + qproj(i + 1, e)
            if p == 1:
                r, X = res(i)
                L += X
        L += fin(i, r)
    return L


def safe_body():
    L = []
    pd = Ring(PD)
    e = EB[0]; q = QP[0]; r = RA[0]; o = OA[0]; l = LA[0]; s6 = OA[1]; pp = PT[0]
    m = LA[1]; m2 = LA[1] + 1
    for i in range(7):
        L += [dsread(e, i, 0), dsread(e + 4, i, 1)]
        L += q_proj(e, pd, q) + res_proj(e, r)
        for p in range(3):
            b = SB[p]
            L.append(mfma(b, KP + 8 * p, q)); L.append(mfma(b + 4, KP + 8 * p + 4, q))
        L.append(mfma(s6, KP + 24, q))
        regs = [SB[p] + j for p in range(3) for j in range(8)]
        L.append(Ins(f"v_mov_b32 v{m}, v{s6}", 'valu', vr(m), vr(s6)))
        for k in range(0, 24, 2):
            L.append(Ins(f"v_max3_f32 v{m}, v{m}, v{regs[k]}, v{regs[k + 1]}", 'valu', vr(m), vr(m) + vr(regs[k]) + vr(regs[k + 1])))
        L.append(Ins(f"v_mov_b32 v{m2}, v{m}", 'valu', vr(m2), vr(m)))
        L.append(Ins(f"v_permlane16_swap_b32 v{m}, v{m2}", 'perm', vr(m) + vr(m2), vr(m) + vr(m2)))
        L.append(Ins(f"v_max_f32 v{m}, v{m}, v{m2}", 'valu', vr(m), vr(m) + vr(m2)))
        L.append(Ins(f"v_mov_b32 v{m2}, v{m}", 'valu', vr(m2), vr(m)))
        L.append(Ins(f"v_permlane32_swap_b32 v{m}, v{m2}", 'perm', vr(m) + vr(m2), vr(m) + vr(m2)))
        L.append(Ins(f"v_max_f32 v{m}, v{m}, v{m2}", 'valu', vr(m), vr(m) + vr(m2)))
        for x in regs + [s6]:
            L.append(Ins(f"v_sub_f32 v{x}, v{x}, v{m}", 'valu', vr(x), vr(x) + vr(m)))
            L.append(vexp(x, x))
        for p in range(3):
            b = SB[p]
            L += [cvt(b + 3, b + 2, b + 3), cvt(b + 2, b, b + 1), cvt(b + 4, b + 4, b + 5), cvt(b + 5, b + 6, b + 7)]
            c0 = None if p == 0 else o
            c1 = None if p == 0 else o + 4
            cl = None if p == 0 else l
            L.append(mfma(o, VP[0] + 4 * p, b + 2, c0)); L.append(mfma(o + 4, VP[1] + 4 * p, b + 2, c1))
            L.append(mfma(l, ONES, b + 2, cl))
        L.append(cvt(pp, s6, None))
        L.append(mfmas(o, VP[0] + 12, pp, o)); L.append(mfmas(o + 4, VP[1] + 12, pp, o + 4))
        L.append(mfmas(l, ONES, pp, l))
        L += epilogue(i, o, r, l, l + 1)
    return L


def prologue():
    P = []
    a = P.append
    a(f"    s_cmp_ge_u32 s2, {NWG}")
    a("    s_cbranch_scc1 L_done")
    if PRIO:
        a("    s_setprio 3")
    if STAMP:
        a("    s_memtime s[64:65]")
        a("    s_memrealtime s[66:67]")
        a("    s_load_dwordx2 s[62:63], s[0:1], 56")
        a("    s_getreg_b32 s61, hwreg(HW_REG_HW_ID)")
        a("    s_getreg_b32 s60, hwreg(HW_REG_XCC_ID)")
    if DBGT:
        a("    s_memrealtime s[66:67]")
        a("    s_memtime s[64:65]")
        a("    s_load_dwordx2 s[62:63], s[0:1], 48")
    a("    v_lshrrev_b32 v1, 6, v0")
    a("    s_load_dwordx2 s[4:5], s[0:1], 0")
    a("    s_load_dwordx2 s[26:27], s[0:1], 40")
    a(f"    v_readfirstlane_b32 s{S_WAVE}, v1")
    a("    v_and_b32 v2, 63, v0")
    a("    v_and_b32 v1, 1, v1")
    a("    v_lshrrev_b32 v3, 4, v2")
    a(f"    s_lshl_b32 s{S_T0}, s{S_WAVE}, 3")
    a(f"    s_add_u32 s20, s0, s{S_T0}")
    a("    s_addc_u32 s21, s1, 0")
    a("    s_load_dwordx2 s[6:7], s[20:21], 8")
    a(f"    s_and_b32 s{S_HEAD}, s{S_WAVE}, 1")
    a(f"    s_lshr_b32 s{S_PAIR}, s{S_WAVE}, 1")
    a("    v_and_b32 v4, 15, v2")
    a("    v_lshlrev_b32 v5, 7, v4")
    a("    v_lshl_add_u32 v5, v3, 4, v5")
    a(f"    v_lshl_add_u32 v{V_ST}, v1, 6, v5")
    a("    v_lshrrev_b32 v6, 2, v4")
    a("    v_lshlrev_b32 v6, 7, v6")
    a("    v_lshl_add_u32 v6, v3, 4, v6")
    a("    v_lshl_add_u32 v6, v1, 6, v6")
    a("    v_and_b32 v7, 3, v4")
    a("    v_cmp_ne_u32 vcc, 0, v7")
    a("    v_mov_b32 v9, 0x7f000000")
    a("    v_lshlrev_b32 v8, 4, v2")
    a(f"    v_cndmask_b32 v{V_STT}, v6, v9, vcc")
    a("    v_lshrrev_b32 v6, 2, v4")
    a("    v_add_u32 v7, 4, v7")
    a("    v_cndmask_b32 v6, v6, v7, vcc")
    a("    v_lshrrev_b32 v7, 1, v6")
    a("    v_xor_b32 v7, v3, v7")
    a("    v_lshlrev_b32 v6, 7, v6")
    a("    v_lshl_add_u32 v6, v7, 4, v6")
    a(f"    s_mul_i32 s{S_LDSP}, s{S_PAIR}, {PSTR}")
    a(f"    v_add_u32 v6, {96 * 128}, v6")
    a(f"    v_add_u32 v{V_LA[2]}, s{S_LDSP}, v6")
    a(f"    v_xor_b32 v{V_LA[3]}, 64, v{V_LA[2]}")
    a("    v_lshrrev_b32 v7, 1, v4")
    a("    v_xor_b32 v7, v3, v7")
    a("    v_lshlrev_b32 v6, 7, v4")
    a("    v_lshl_add_u32 v6, v7, 4, v6")
    a(f"    v_add_u32 v{V_LA[0]}, s{S_LDSP}, v6")
    a(f"    v_xor_b32 v{V_LA[1]}, 64, v{V_LA[0]}")
    a("    v_lshrrev_b32 v6, 3, v2")
    a("    v_and_b32 v7, 7, v2")
    a("    v_lshrrev_b32 v10, 1, v6")
    a("    v_xor_b32 v7, v7, v10")
    a("    v_lshlrev_b32 v10, 7, v6")
    a("    v_lshl_add_u32 v10, v7, 4, v10")
    a("    v_cmp_lt_u32 vcc, 31, v2")
    a("    v_lshlrev_b32 v11, 6, v1")
    a("    v_xor_b32 v11, v10, v11")
    a(f"    v_cndmask_b32 v{V_DMAT}, v10, v9, vcc")
    a(f"    v_lshl_add_u32 v{V_DMA}, v1, 10, v11")
    a(f"    s_lshl_b32 s{S_NXT}, s2, 1")
    a(f"    s_add_u32 s{S_NXT}, s{S_NXT}, s{S_PAIR}")
    a(f"    s_mul_i32 s{S_NXT}, s{S_NXT}, 12800")
    a(f"    s_lshl_b32 s{S_T1}, s{S_WAVE}, 13")
    a(f"    s_add_u32 s{S_T1}, s{S_T1}, {WOFF[0]}")
    a(f"    s_cmp_eq_u32 s{S_WAVE}, 3")
    a(f"    s_cselect_b32 s{S_T1}, {WOFF[3]}, s{S_T1}")
    a(f"    s_mov_b32 s{S_CUR}, s{S_NXT}")
    a(f"    s_mov_b32 s{S_W + 2}, 8192"); a(f"    s_mov_b32 s{S_W + 3}, 0x00020000")
    a(f"    s_mov_b32 s{S_E + 2}, {EBYTES}"); a(f"    s_mov_b32 s{S_E + 3}, 0x00020000")
    a(f"    s_mov_b32 s{S_O + 2}, {EBYTES}"); a(f"    s_mov_b32 s{S_O + 3}, 0x00020000")
    a(f"    s_movk_i32 s{S_T2}, 4096")
    a(f"    s_mov_b32 m0, s{S_T1}")
    a("    s_waitcnt lgkmcnt(0)")
    if STAMP:
        a("    s_memtime s[84:85]")
    a(f"    s_mov_b32 s{S_W}, s6"); a(f"    s_and_b32 s{S_W + 1}, s7, 0xffff")
    a(f"    s_mov_b32 s{S_E}, s4"); a(f"    s_and_b32 s{S_E + 1}, s5, 0xffff")
    for k in range(4):
        a(f"    buffer_load_dwordx4 v8, s[{S_W}:{S_W + 3}], 0 offen offset:{k * 1024} lds")
    a(f"    s_add_u32 m0, s{S_T1}, 4096")
    a(f"    s_mov_b32 s{S_O}, s26"); a(f"    s_and_b32 s{S_O + 1}, s27, 0xffff")
    for k in range(4):
        a(f"    buffer_load_dwordx4 v8, s[{S_W}:{S_W + 3}], s{S_T2} offen offset:{k * 1024} lds")
    if PRIO:
        a("    s_setprio 2")
    P.extend(dma_lines(0))
    if PRIO:
        a("    s_setprio 3")
    for k in range(4):
        a(f"    v_mov_b32 v{ONES + k}, 0x3f803f80")
        a(f"    v_mov_b32 v{CB + k}, 0x{f32bits(-BSHIFT):08x}")
    for k in range(2):
        a(f"    v_mov_b32 v{PT[k] + 1}, 0")
        a(f"    v_mov_b32 v{VP[k] + 13}, 0")
    A0, A1, A2 = OA[0], OA[0] + 1, OA[0] + 2
    a("    v_lshrrev_b32 v10, 2, v4")
    a("    v_lshl_add_u32 v10, v3, 3, v10")
    a("    v_and_b32 v11, 3, v4")
    a("    v_lshlrev_b32 v12, 6, v10")
    a("    v_lshl_add_u32 v12, v1, 12, v12")
    a(f"    v_add_u32 v12, {WOFF[0]}, v12")
    a(f"    v_lshl_add_u32 v{A0}, v11, 3, v12")
    a(f"    v_lshl_add_u32 v{A1}, v11, 4, v12")
    a("    v_lshlrev_b32 v12, 7, v10")
    a("    v_lshl_add_u32 v12, v1, 6, v12")
    a("    v_lshl_add_u32 v12, v11, 4, v12")
    a(f"    v_add_u32 v{A2}, {WOFF[3]}, v12")
    a("    s_waitcnt vmcnt(7)")
    a("    s_barrier")
    if STAMP:
        a("    s_memtime s[86:87]")
        a("    s_waitcnt lgkmcnt(0)")

    def trread(base, moff, addr, tstride, rowb):
        for s_ in range(2):
            for t in range(2):
                for half in range(2):
                    off = moff + (32 * s_ + 4 * half) * rowb + t * tstride
                    a(f"    ds_read_b64_tr_b16 {r2(base + 8 * s_ + 4 * t + 2 * half)}, v{addr} offset:{off}")
    trread(WQ, 0, A0, 32, 64)
    trread(WK, 8192, A0, 32, 64)
    trread(WV, 16384, A1, 8, 64)
    trread(WR, 0, A2, 8, 128)
    a("    s_waitcnt lgkmcnt(0)")
    a("    s_barrier")
    if PRIO:
        a("    s_setprio 1")
    P.extend(dma_lines(1))
    if not INDMA:
        P.extend(dma_lines(2))
    if PRIO:
        a("    s_setprio 3")
    t0, t1 = OA[1], OA[1] + 1
    a(f"    s_mov_b32 s{S_T0}, 0x{f32bits(CSCALE):08x}")
    for k in range(16):
        a(f"    v_lshlrev_b32 v{t0}, 16, v{WQ + k}")
        a(f"    v_and_b32 v{t1}, 0xffff0000, v{WQ + k}")
        a(f"    v_mul_f32 v{t0}, s{S_T0}, v{t0}")
        a(f"    v_mul_f32 v{t1}, s{S_T0}, v{t1}")
        a(f"    v_cvt_pk_bf16_f32 v{WQ + k}, v{t0}, v{t1}")
    a(f"    s_mov_b32 s{S_IT}, 0")
    a(f"    s_mov_b32 s{S_LO}, 0x{f32bits(L_LO):08x}")
    a(f"    s_mov_b32 s{S_HI}, 0x{f32bits(L_HI):08x}")
    if STAMP:
        a("    s_waitcnt lgkmcnt(0)")
        a("    s_memtime s[88:89]")
    if INDMA:
        a("    s_waitcnt vmcnt(7)")
        a(f"    s_add_u32 s{S_LDSN}, s{S_LDSP}, {2 * BSTR}")
    return P


def main():
    out = []
    a = out.append
    hdr = open('standalone__attention_interact_autoint__recsys.s.ref').read().split('\n')
    for line in hdr:
        if line.startswith('; @launch'):
            a(f"; @launch grid=({NWG},1,1) block=(256,1,1) lds={LDS_TOTAL}")
        elif line.startswith(';'):
            a(line)
        else:
            break
    a('.amdgcn_target "amdgcn-amd-amdhsa--gfx950"')
    a(".text")
    a(f".globl {KN}")
    a(".p2align 8")
    a(f".type {KN},@function")
    a(f"{KN}:")
    out += prologue()
    if STAMP:
        a("    s_memtime s[68:69]")
        a("    s_waitcnt lgkmcnt(0)")
    if NOBAR:
        a("    s_barrier")
    a("L_loop:")
    if INDMA:
        a("    s_waitcnt vmcnt(14)")
    else:
        a(f"    s_cmp_eq_u32 s{S_IT}, 2")
        a("    s_cbranch_scc1 L_w21")
        a("    s_waitcnt vmcnt(14)")
        a("L_w21:")
        a("    s_waitcnt vmcnt(21)")
    if not NOBAR:
        a("    s_barrier")
    if STAMP:
        a("    s_memtime s[80:81]")
        a("    s_waitcnt lgkmcnt(0)")
        for k in range(4):
            a(f"    s_cmp_eq_u32 s{S_IT}, {k}")
            a(f"    s_cselect_b32 s{70+k}, s80, s{70+k}")
    if INDMA:
        a(f"    s_lshl_b32 s{S_T0}, s{S_HEAD}, 10")
        a(f"    s_add_u32 s{S_LDSH}, s{S_LDSN}, s{S_T0}")
    else:
        a(f"    s_cmp_lg_u32 s{S_IT}, 1")
        a("    s_cbranch_scc1 L_nodma")
        out += dma_lines(0)
        a("L_nodma:")
    a(f"    v_mov_b32 v{V_LMAX}, 0")
    a(f"    v_mov_b32 v{V_LMIN}, 1.0")
    body = unit_body()
    if NOMEM & 1:
        body = [x for x in body if x.kind != 'dma']
    if NOMEM & 2:
        body = [x for x in body if x.kind != 'store']
    if NOSCHED:
        sched, est = body, 0
    else:
        sched, est = schedule2(body, window=WINDOW, mfma_bias=float(opts.get('mb', 400)), noise=float(opts.get('noise', 0)), seed=int(opts.get('seed', 0)))
    lines, nnop = finalize(sched)
    for nw in (1, 2):
        T, marks, busy = sim.simulate(lines, nwaves=nw)
        sys.stderr.write(f"sim waves={nw}: per unit {T/(4*nw):.0f} busy {busy/(4*nw):.0f}\n")
    sys.stderr.write(f"unit body: {len(body)} instrs, est {est} cycles, {nnop} nop states, vgprs {A.n}\n")
    out += lines
    if SAFE:
        a(f"    v_cmp_lt_f32 vcc, s{S_HI}, v{V_LMAX}")
        a(f"    v_cmp_gt_f32 s[50:51], s{S_LO}, v{V_LMIN}")
        a("    s_nop 1")
        a("    s_or_b64 vcc, vcc, s[50:51]")
        if FORCE_SAFE:
            a("    s_branch L_safe")
        a("    s_cbranch_scc1 L_safe")
        a("L_next:")
    a(f"    s_cmp_eq_u32 s{S_IT}, 2")
    a(f"    s_cselect_b32 s{S_DEL}, {(-2 * BSTR) & 0xffffffff}, {BSTR}" if False else f"    s_mov_b32 s{S_DEL}, {BSTR}")
    a(f"    s_cselect_b32 s{S_DEL}, {(-2 * BSTR) & 0xffffffff}, s{S_DEL}")
    for k in range(4):
        a(f"    v_add_u32 v{V_LA[k]}, s{S_DEL}, v{V_LA[k]}")
    a(f"    s_add_u32 s{S_CUR}, s{S_CUR}, {NWG * 2 * 12800}")
    if INDMA:
        a(f"    s_add_u32 s{S_NXT}, s{S_NXT}, {NWG * 2 * 12800}")
        a(f"    s_cmp_eq_u32 s{S_IT}, 0")
        a(f"    s_mov_b32 s{S_DEL}, {BSTR}")
        a(f"    s_cselect_b32 s{S_DEL}, {(-2 * BSTR) & 0xffffffff}, s{S_DEL}")
        a(f"    s_add_u32 s{S_LDSN}, s{S_LDSN}, s{S_DEL}")
    a(f"    s_add_u32 s{S_IT}, s{S_IT}, 1")
    if PRIO:
        for k in (1, 2, 3):
            a(f"    s_cmp_lg_u32 s{S_IT}, {k}")
            a(f"    s_cbranch_scc1 L_p{k}")
            a(f"    s_setprio {3 - k}")
            a(f"L_p{k}:")
    a(f"    s_cmp_lt_u32 s{S_IT}, {NIT}")
    a("    s_cbranch_scc1 L_loop")
    if STAMP:
        a("    s_memtime s[74:75]")
        a("    s_waitcnt vmcnt(0)")
        a("    s_memtime s[76:77]")
        a("    s_memrealtime s[78:79]")
        a("    s_waitcnt lgkmcnt(0)")
        a(f"    s_lshl_b32 s82, s2, 2")
        a(f"    s_add_u32 s82, s82, s{S_WAVE}")
        a(f"    s_lshl_b32 s82, s82, 6")
        a(f"    v_mov_b32 v2, s82")
        regs = [60, 61, 64, 66, 68, 70, 71, 72, 73, 74, 76, 78, 84, 86, 88]
        for k, r in enumerate(regs):
            a(f"    v_mov_b32 v3, s{r}")
            a(f"    global_store_dword v2, v3, s[62:63] offset:{4*k}")
    if DBGT:
        a("    s_waitcnt vmcnt(0)")
        a("    s_memrealtime s[78:79]")
        a("    s_memtime s[76:77]")
        a("    s_waitcnt lgkmcnt(0)")
        a("    s_and_b32 s70, s2, 63")
        a("    s_cmp_lg_u32 s70, 63")
        a("    s_cbranch_scc1 L_done")
        a(f"    s_cmp_lg_u32 s{S_WAVE}, 0")
        a("    s_cbranch_scc1 L_done")
        a("    s_lshr_b32 s70, s2, 6")
        a("    s_lshl_b32 s70, s70, 3")
        a("    v_mov_b32 v2, s70")
        a("    v_mov_b32 v4, s66")
        a("    v_mov_b32 v5, s78")
        a("    s_mov_b64 exec, 1")
        a("    global_store_dwordx2 v2, v[4:5], s[62:63]")
    a("L_done:")
    a("    s_endpgm")
    if SAFE:
        a("L_safe:")
        a("    s_waitcnt vmcnt(0)")
        lines, _ = finalize(safe_body())
        out += lines
        a("    s_nop 7")
        a("    s_branch L_next")
    a('.section .rodata,"a"')
    a(".p2align 6")
    a(f".amdhsa_kernel {KN}")
    a(f"  .amdhsa_next_free_vgpr {NVGPR}")
    a(f"  .amdhsa_next_free_sgpr {96 if (STAMP or DBGT) else 64}")
    a(f"  .amdhsa_accum_offset {NVGPR}")
    a("  .amdhsa_group_segment_fixed_size 0")
    a("  .amdhsa_kernarg_size 64")
    a("  .amdhsa_user_sgpr_count 2")
    a("  .amdhsa_user_sgpr_kernarg_segment_ptr 1")
    a("  .amdhsa_system_sgpr_workgroup_id_x 1")
    a(".end_amdhsa_kernel")
    open(sys.argv[1], 'w').write("\n".join(out) + "\n")


main()
```

```python
import re
def classify(line):
    t = line.strip()
    if not t or t.startswith(';') or t.endswith(':'): return None
    op = t.split()[0]
    if op.startswith('v_mfma'):
        if '16x16x32' in op: return ('mfma', 8, 16)
        if '16x16x16' in op: return ('mfma', 4, 16)
        if '32x32x16' in op: return ('mfma', 8, 32)
        if '32x32x8' in op: return ('mfma', 4, 32)
    if op in ('v_exp_f32', 'v_rcp_f32', 'v_log_f32') or op.startswith('v_permlane'): return ('trans', 8, 0)
    if op.startswith('v_'): return ('valu', 4, 0)
    if op == 's_nop': return ('nop', int(t.split()[1]) + 1, 0)
    if op == 's_waitcnt':
        m = re.search(r'lgkmcnt\((\d+)\)', t)
        return ('wait', int(m.group(1)) if m else 99, 0)
    if op.startswith('ds_'): return ('ds', 0, 0)
    if op.startswith('buffer_'): return ('vm', 0, 0)
    return ('salu', 0, 0)

def simulate(lines, nwaves=2, iters=4, dslat=128, prio_mode='iter', offset=0, vmcost=16):
    L2 = []
    for l in lines:
        if '\n' in l:
            L2 += l.split('\n')[:2]
        else: L2.append(l)
    prog = [c for c in map(classify, L2) if c]
    n = len(prog)
    pc = [0]*nwaves; it = [0]*nwaves; nxt = [offset*w for w in range(nwaves)]
    dsq = [[] for _ in range(nwaves)]
    port = 0; pipe = 0; t = 0
    done = [None]*nwaves
    marks = [[] for _ in range(nwaves)]
    busy = 0
    while any(d is None for d in done):
        order = sorted(range(nwaves), key=(lambda w: (it[w], w)) if prio_mode == 'iter' else (lambda w: w))
        for w in order:
            if done[w] is not None or nxt[w] > t: continue
            k, a, b = prog[pc[w]]
            ok = True
            if k in ('mfma', 'valu', 'trans'):
                if port > t: ok = False
                elif k == 'mfma' and pipe > t: ok = False
                else:
                    port = t + a; busy += a
                    if k == 'mfma':
                        pipe = t + b; nxt[w] = t + 4
                    else: nxt[w] = t + a
            elif k == 'nop': nxt[w] = t + 4*a
            elif k == 'wait':
                q = [x for x in dsq[w] if x > t]
                dsq[w] = q
                if len(q) > a: ok = False
                else: nxt[w] = t + 4
            elif k == 'ds':
                dsq[w].append(t + dslat); nxt[w] = t + 4
            elif k == 'vm': nxt[w] = t + vmcost
            else: nxt[w] = t + 4
            if ok:
                pc[w] += 1
                if pc[w] == n:
                    pc[w] = 0; it[w] += 1; marks[w].append(t); nxt[w] += 60
                    if it[w] == iters: done[w] = t
        t += 4
    return max(done), marks, busy

if __name__ == '__main__':
    import sys
    L = open(sys.argv[1]).read().split('\n')
    i0 = [i for i, l in enumerate(L) if 'unit body' in l][0]
    i1 = [i for i, l in enumerate(L) if l.startswith('L_next')][0]
    body = L[i0:i1]
    for nw in (1, 2, 3):
        T, marks, busy = simulate(body, nwaves=nw)
        print(f"waves={nw}: total {T} per unit {T/(4*nw):.0f} busy/unit {busy/(4*nw):.0f}", [[b-a for a,b in zip([0]+m, m)] for m in marks])
```

```python
import sys, struct, math
sys.path.insert(0, 'gen')
from sched import Ins, vr, schedule, finalize
from sched2 import schedule2
import sim

KN = "standalone__attention_interact_autoint__recsys_kernel"
NWG = 512
NIT = 4
EBYTES = 4096 * 100 * 64 * 2
BSTR = 13312
PSTR = 3 * BSTR
LDS_TOTAL = 81920
WOFF = [BSTR, BSTR + 8192, BSTR + 16384, PSTR + BSTR]

opts = dict(a.split('=') for a in sys.argv[2:]) if len(sys.argv) > 2 else {}
G = int(opts.get('g', 2))
INDMA = int(opts.get('indma', 1))
PROG = int(opts.get('prog', 1))
CONDDMA = int(opts.get('conddma', 1))
DMAG = int(opts.get('dmag', 4))
ZTAIL = int(opts.get('ztail', 1))
DELAY = int(opts.get('delay', 1))
SAFE = int(opts.get('safe', 1))
FORCE_SAFE = int(opts.get('force_safe', 0))
NOSCHED = int(opts.get('nosched', 0))
WINDOW = int(opts.get('window', 300))
STAMP = int(opts.get('stamp', 0))
PRIO = int(opts.get('prio', 1))
STF = opts.get('stf', 'sc1').replace('+', ' ')
LDF = opts.get('ldf', 'nt').replace('+', ' ')
DBGT = int(opts.get('dbgt', 0))
NOMEM = int(opts.get('nomem', 0))
NOBAR = int(opts.get('nobar', 0))


def f32bits(x):
    return struct.unpack('<I', struct.pack('<f', x))[0]


class Alloc:
    def __init__(self, start):
        self.n = start

    def get(self, k, align=2):
        self.n = (self.n + align - 1) // align * align
        r = self.n
        self.n += k
        return r


A = Alloc(2)
WQ = A.get(16); WK = A.get(16); WV = A.get(16); WR = A.get(16)
KP = A.get(28)
VP = [A.get(14), A.get(14)]
EB = [A.get(8) for _ in range(int(opts.get('neb', 2)))]
PD = [A.get(4) for _ in range(int(opts.get('npd', 4)))]
QP = [A.get(4) for _ in range(int(opts.get('nq', 3)))]
SB = [A.get(8) for _ in range(int(opts.get('nsb', 3)))]
PT = [A.get(2) for _ in range(2)]
OA = [A.get(8) for _ in range(int(opts.get('no', 3)))]
RA = [A.get(8) for _ in range(int(opts.get('nr', 1)))]
LA = [A.get(4) for _ in range(int(opts.get('no', 3)))]
ONES = A.get(4)
CB = A.get(4)
V_LA = [A.get(1, 1) for _ in range(4)]
V_DMA = A.get(1, 1)
V_DMAT = A.get(1, 1)
V_ST = A.get(1, 1)
V_STT = A.get(1, 1)
V_LMAX = 0
V_LMIN = 1
assert A.n <= 256, A.n
NVGPR = 256

S_E = 8; S_O = 12; S_W = 16
S_HEAD = 32; S_CUR = 33; S_NXT = 34; S_IT = 35; S_STO = 36
S_LDSN = 44; S_T0 = 45; S_T1 = 46; S_T2 = 47
S_LO = 48; S_HI = 49; S_WAVE = 52; S_PAIR = 53; S_LDSP = 54; S_LDSH = 55; S_DEL = 56; S_E1 = 57; S_L1 = 58

BSHIFT = 40.0
L_LO = 2.0 ** -56
L_HI = 1.0
CSCALE = math.log2(math.e) / math.sqrt(32.0)


def r4(a): return f"v[{a}:{a + 3}]"
def r2(a): return f"v[{a}:{a + 1}]"


def mfma(d, a, b, c=None, tag=''):
    if c is None:
        return Ins(f"v_mfma_f32_16x16x32_bf16 {r4(d)}, {r4(a)}, {r4(b)}, 0", 'mfma', vr(d, 4), vr(a, 4) + vr(b, 4), tag=tag)
    return Ins(f"v_mfma_f32_16x16x32_bf16 {r4(d)}, {r4(a)}, {r4(b)}, {r4(c)}", 'mfma', vr(d, 4), vr(a, 4) + vr(b, 4), vr(c, 4), tag=tag)


def mfmas(d, a, b, c, tag=''):
    return Ins(f"v_mfma_f32_16x16x16_bf16 {r4(d)}, {r2(a)}, {r2(b)}, {r4(c)}", 'mfmas', vr(d, 4), vr(a, 2) + vr(b, 2), vr(c, 4), tag=tag)


def cvt(d, a, b):
    if b is None:
        return Ins(f"v_cvt_pk_bf16_f32 v{d}, v{a}, 0", 'valu', vr(d), vr(a))
    return Ins(f"v_cvt_pk_bf16_f32 v{d}, v{a}, v{b}", 'valu', vr(d), vr(a) + vr(b))


def vexp(d, a):
    return Ins(f"v_exp_f32 v{d}, v{a}", 'trans', vr(d), vr(a))


def dsread(d, t, s_):
    if t < 6:
        va, off = V_LA[s_], t * 2048
    else:
        va, off = V_LA[2 + s_], 0
    return Ins(f"ds_read_b128 {r4(d)}, v{va} offset:{off}", 'dsr', vr(d, 4), vr(va))


def salu(text, defs, uses):
    return Ins(text, 'salu', defs, uses)


class Ring:
    def __init__(self, items):
        self.items = items
        self.i = 0

    def next(self):
        r = self.items[self.i % len(self.items)]
        self.i += 1
        return r


def dma_block():
    L = []
    srd = [f's{S_E + i}' for i in range(4)]
    for m in (0, 2, 4, 6):
        if m < 6:
            L.append(salu(f"s_add_u32 m0, s{S_LDSH}, {m * 2048}", ['m0', 'scc'], [f's{S_LDSH}']))
        else:
            L.append(salu(f"s_add_u32 m0, s{S_LDSN}, {12288}", ['m0', 'scc'], [f's{S_LDSN}']))
        if m == 0:
            so = S_NXT
        else:
            L.append(salu(f"s_add_u32 s{S_T0}, s{S_NXT}, {m * 2048}", [f's{S_T0}', 'scc'], [f's{S_NXT}']))
            so = S_T0
        if m < 6:
            L.append(Ins(f"buffer_load_dwordx4 v{V_DMA}, s[{S_E}:{S_E + 3}], s{so} offen {LDF} lds", 'dma', [], vr(V_DMA) + srd + [f's{so}', 'm0']))
            L.append(Ins(f"buffer_load_dwordx4 v{V_DMA}, s[{S_E}:{S_E + 3}], s{so} offen offset:2048 {LDF} lds", 'dma', [], vr(V_DMA) + srd + [f's{so}', 'm0']))
        else:
            L.append(Ins(f"buffer_load_dwordx4 v{V_DMAT}, s[{S_E}:{S_E + 3}], s{so} offen {LDF} lds", 'dma', [], vr(V_DMAT) + srd + [f's{so}', 'm0']))
    return L


def dma_lines(bufidx):
    X = [f"    s_add_u32 s{S_LDSN}, s{S_LDSP}, {bufidx * BSTR}",
         f"    s_lshl_b32 s{S_T0}, s{S_HEAD}, 10",
         f"    s_add_u32 s{S_LDSH}, s{S_LDSN}, s{S_T0}"]
    dl, _ = finalize(dma_block())
    return X + dl + [f"    s_add_u32 s{S_NXT}, s{S_NXT}, {NWG * 2 * 12800}"]


def store(i, data):
    srd = [f's{S_O + k}' for k in range(4)]
    va = V_ST if i < 6 else V_STT
    return Ins(f"buffer_store_dwordx4 {r4(data)}, v{va}, s[{S_O}:{S_O + 3}], s{S_STO + i} offen {STF}", 'store', [],
               vr(data, 4) + vr(va) + srd + [f's{S_STO + i}'])


def kv_tile(t, eb, pd):
    L = []
    d0, d1 = pd.next(), pd.next()
    L.append(mfma(d0, WK + 0, eb + 0)); L.append(mfma(d1, WK + 4, eb + 0))
    L.append(mfma(d0, WK + 8, eb + 4, d0)); L.append(mfma(d1, WK + 12, eb + 4, d1))
    k = KP + 4 * t
    L += [cvt(k, d0, d0 + 1), cvt(k + 1, d0 + 2, d0 + 3), cvt(k + 2, d1, d1 + 1), cvt(k + 3, d1 + 2, d1 + 3)]
    d0, d1 = pd.next(), pd.next()
    L.append(mfma(d0, eb + 0, WV + 0)); L.append(mfma(d1, eb + 0, WV + 4))
    L.append(mfma(d0, eb + 4, WV + 8, d0)); L.append(mfma(d1, eb + 4, WV + 12, d1))
    for u, d in ((0, d0), (1, d1)):
        v = VP[u] + 2 * t
        L.append(cvt(v, d, d + 1))
        if t < 6:
            L.append(cvt(v + 1, d + 2, d + 3))
    return L


def q_proj(eb, pd, q):
    L = []
    d0, d1 = pd.next(), pd.next()
    L.append(mfma(d0, WQ + 0, eb + 0)); L.append(mfma(d1, WQ + 4, eb + 0))
    L.append(mfma(d0, WQ + 8, eb + 4, d0)); L.append(mfma(d1, WQ + 12, eb + 4, d1))
    L += [cvt(q, d0, d0 + 1), cvt(q + 1, d0 + 2, d0 + 3), cvt(q + 2, d1, d1 + 1), cvt(q + 3, d1 + 2, d1 + 3)]
    return L


def res_proj(eb, r):
    return [mfma(r, WR + 0, eb + 0), mfma(r + 4, WR + 4, eb + 0), mfma(r, WR + 8, eb + 4, r), mfma(r + 4, WR + 12, eb + 4, r + 4)]


def epilogue(i, o, r, l, inv):
    L = [Ins(f"v_rcp_f32 v{inv}, v{l}", 'trans', vr(inv), vr(l))]
    for j in range(8):
        L.append(Ins(f"v_fma_f32 v{o + j}, v{o + j}, v{inv}, v{r + j}", 'valu', vr(o + j), vr(o + j) + vr(inv) + vr(r + j)))
    for j in range(4):
        L.append(cvt(o + j, o + 2 * j, o + 2 * j + 1))
    for j in range(4):
        L.append(Ins(f"v_pk_max_i16 v{o + j}, v{o + j}, 0", 'valu', vr(o + j), vr(o + j)))
    L.append(store(i, o))
    return L


def unit_body():
    L = []
    eb = Ring(EB); pd = Ring(PD); qp = Ring(QP); sb = Ring(SB); pt = Ring(PT)
    oa = Ring(OA); ra = Ring(RA); la = Ring(LA)
    for i in range(7):
        if i == 0:
            L.append(salu(f"s_mov_b32 s{S_STO}, s{S_CUR}", [f's{S_STO}'], [f's{S_CUR}']))
        else:
            L.append(salu(f"s_add_u32 s{S_STO + i}, s{S_CUR}, {i * 2048}", [f's{S_STO + i}', 'scc'], [f's{S_CUR}']))
    Q = {}; O = {}; LL = {}
    state = {'lprev': None}

    def readE(t):
        if PROG and t in (2, 4) and t not in state:
            state[t] = 1
            e, X = readE(t)
            k = t // 2
            txt = [f"s_cmp_lg_u32 s{S_IT}, 0", f"    s_cbranch_scc1 L_sync{k}", f"    s_waitcnt vmcnt({3 if t == 2 else 0})", "    s_barrier"]
            dfs = ['scc']
            txt.append(f"L_sync{k}:")
            return e, [Ins("\n".join(txt), 'sync', dfs + vr(e, 4), [])] + X
        e = eb.next()
        return e, [dsread(e, t, 0), dsread(e + 4, t, 1), Ins("wait", 'wait', vr(e, 8), vr(e, 8))]

    def e1piece(m):
        txt = [f"s_cmp_lg_u32 s{S_IT}, 0", f"    s_cbranch_scc1 L_e1_{m}"]
        if m < 3:
            txt += [f"    s_add_u32 m0, s{S_L1}, {m * 4096}", f"    s_add_u32 s{S_T1}, s{S_E1}, {m * 4096}",
                    f"    buffer_load_dwordx4 v{V_DMA}, s[{S_E}:{S_E + 3}], s{S_T1} offen {LDF} lds",
                    f"    buffer_load_dwordx4 v{V_DMA}, s[{S_E}:{S_E + 3}], s{S_T1} offen offset:2048 {LDF} lds"]
        else:
            txt += [f"    s_add_u32 m0, s{S_L1 + 1}, 12288", f"    s_add_u32 s{S_T1}, s{S_E1}, 12288",
                    f"    buffer_load_dwordx4 v{V_DMAT}, s[{S_E}:{S_E + 3}], s{S_T1} offen {LDF} lds"]
        txt.append(f"L_e1_{m}:")
        x = Ins("\n".join(txt), 'dma', ['scc', 'm0', f's{S_T1}'], [])
        x.order_after.append(L[-1])
        return [x]

    def qproj(i, e):
        Q[i] = qp.next()
        return q_proj(e, pd, Q[i])

    def step(i, p):
        X = []
        q = Q[i]
        if p == 0:
            O[i] = oa.next(); LL[i] = la.next()
        o = O[i]; l = LL[i]
        if p < 3:
            b = sb.next()
            X.append(mfma(b, KP + 8 * p, q, CB)); X.append(mfma(b + 4, KP + 8 * p + 4, q, CB))
            for j in (2, 3, 0, 1, 4, 5, 6, 7):
                X.append(vexp(b + j, b + j))
            X += [cvt(b + 3, b + 2, b + 3), cvt(b + 2, b, b + 1), cvt(b + 4, b + 4, b + 5), cvt(b + 5, b + 6, b + 7)]
            c0 = None if p == 0 else o
            c1 = None if p == 0 else o + 4
            cl = None if p == 0 else l
            X.append(mfma(o, VP[0] + 4 * p, b + 2, c0)); X.append(mfma(o + 4, VP[1] + 4 * p, b + 2, c1))
            X.append(mfma(l, ONES, b + 2, cl))
        else:
            s_ = pd.next(); pp = pt.next()
            X.append(mfma(s_, KP + 24, q, CB))
            X.append(vexp(s_, s_))
            X.append(cvt(pp, s_, None))
            X.append(mfmas(l, ONES, pp, l))
            X.append(mfmas(o, VP[0] + 12, pp, o)); X.append(mfmas(o + 4, VP[1] + 12, pp, o + 4))
        return X

    def res(i):
        e, X = readE(i)
        r = ra.next()
        return r, X + res_proj(e, r)

    def fin(i, r):
        o = O[i]; l = LL[i]
        X = epilogue(i, o, r, l, l + 1)
        lprev = state['lprev']
        if i % 2 == 1:
            X.append(Ins(f"v_max3_f32 v{V_LMAX}, v{V_LMAX}, v{lprev}, v{l}", 'valu', vr(V_LMAX), vr(V_LMAX) + vr(lprev) + vr(l)))
            X.append(Ins(f"v_min3_f32 v{V_LMIN}, v{V_LMIN}, v{lprev}, v{l}", 'valu', vr(V_LMIN), vr(V_LMIN) + vr(lprev) + vr(l)))
        elif i == 6:
            X.append(Ins(f"v_max_f32 v{V_LMAX}, v{V_LMAX}, v{l}", 'valu', vr(V_LMAX), vr(V_LMAX) + vr(l)))
            X.append(Ins(f"v_min_f32 v{V_LMIN}, v{V_LMIN}, v{l}", 'valu', vr(V_LMIN), vr(V_LMIN) + vr(l)))
        state['lprev'] = l
        return X

    def kv(t):
        e, X = readE(t)
        if t < min(G, 2):
            X += qproj(t, e)
        X += kv_tile(t, e, pd)
        return X
    L += kv(0) + kv(1)
    if G > 2:
        e, X = readE(2)
        L += X + qproj(2, e)
    for p in range(4):
        nxt = [t for t in (2 * p + 2, 2 * p + 3) if t < 7]
        for i in range(G):
            L += step(i, p)
            if PROG and p >= 2:
                L += e1piece((p - 2) * 2 + i)
            if nxt:
                t = nxt.pop(0)
                e, X = readE(t)
                L += X + kv_tile(t, e, pd)
        for t in nxt:
            e, X = readE(t)
            L += X + kv_tile(t, e, pd)
        if p == 2 and len(QP) > G:
            e, X = readE(G)
            L += X + qproj(G, e)
    for i in range(G):
        r, X = res(i)
        L += X + fin(i, r)
        if i == 0 and len(QP) <= G:
            e, X = readE(G)
            L += X + qproj(G, e)
    dm = dma_block()
    groups = [dm[0:3], dm[3:7], dm[7:11], dm[11:]] if DMAG == 4 else ([dm[0:7], dm[7:]] if DMAG == 2 else [dm])
    for i in range(G, 7):
        for p in range(4):
            if p == 2 and groups and INDMA:
                g_ = groups.pop(0)
                if CONDDMA:
                    gl, _ = finalize(g_)
                    k_ = len(groups)
                    txt = [f"s_cmp_gt_u32 s{S_IT}, 1", f"    s_cbranch_scc1 L_d{k_}"] + gl + [f"L_d{k_}:"]
                    g_ = [Ins("\n".join(txt), 'dma', ['scc', 'm0', f's{S_T0}'], [f's{S_NXT}', f's{S_LDSN}', f's{S_LDSH}'])]
                g_[0].order_after.append(L[-1])
                L += g_
            L += step(i, p)
            if p == 0 and i < 6:
                e, X = readE(i + 1)
                L += X + qproj(i + 1, e)
            if p == 1:
                r, X = res(i)
                L += X
        L += fin(i, r)
    return L


def safe_body():
    L = []
    pd = Ring(PD)
    e = EB[0]; q = QP[0]; r = RA[0]; o = OA[0]; l = LA[0]; s6 = OA[1]; pp = PT[0]
    m = LA[1]; m2 = LA[1] + 1
    for i in range(7):
        L += [dsread(e, i, 0), dsread(e + 4, i, 1)]
        L += q_proj(e, pd, q) + res_proj(e, r)
        for p in range(3):
            b = SB[p]
            L.append(mfma(b, KP + 8 * p, q)); L.append(mfma(b + 4, KP + 8 * p + 4, q))
        L.append(mfma(s6, KP + 24, q))
        regs = [SB[p] + j for p in range(3) for j in range(8)]
        L.append(Ins(f"v_mov_b32 v{m}, v{s6}", 'valu', vr(m), vr(s6)))
        for k in range(0, 24, 2):
            L.append(Ins(f"v_max3_f32 v{m}, v{m}, v{regs[k]}, v{regs[k + 1]}", 'valu', vr(m), vr(m) + vr(regs[k]) + vr(regs[k + 1])))
        L.append(Ins(f"v_mov_b32 v{m2}, v{m}", 'valu', vr(m2), vr(m)))
        L.append(Ins(f"v_permlane16_swap_b32 v{m}, v{m2}", 'perm', vr(m) + vr(m2), vr(m) + vr(m2)))
        L.append(Ins(f"v_max_f32 v{m}, v{m}, v{m2}", 'valu', vr(m), vr(m) + vr(m2)))
        L.append(Ins(f"v_mov_b32 v{m2}, v{m}", 'valu', vr(m2), vr(m)))
        L.append(Ins(f"v_permlane32_swap_b32 v{m}, v{m2}", 'perm', vr(m) + vr(m2), vr(m) + vr(m2)))
        L.append(Ins(f"v_max_f32 v{m}, v{m}, v{m2}", 'valu', vr(m), vr(m) + vr(m2)))
        for x in regs + [s6]:
            L.append(Ins(f"v_sub_f32 v{x}, v{x}, v{m}", 'valu', vr(x), vr(x) + vr(m)))
            L.append(vexp(x, x))
        for p in range(3):
            b = SB[p]
            L += [cvt(b + 3, b + 2, b + 3), cvt(b + 2, b, b + 1), cvt(b + 4, b + 4, b + 5), cvt(b + 5, b + 6, b + 7)]
            c0 = None if p == 0 else o
            c1 = None if p == 0 else o + 4
            cl = None if p == 0 else l
            L.append(mfma(o, VP[0] + 4 * p, b + 2, c0)); L.append(mfma(o + 4, VP[1] + 4 * p, b + 2, c1))
            L.append(mfma(l, ONES, b + 2, cl))
        L.append(cvt(pp, s6, None))
        L.append(mfmas(o, VP[0] + 12, pp, o)); L.append(mfmas(o + 4, VP[1] + 12, pp, o + 4))
        L.append(mfmas(l, ONES, pp, l))
        L += epilogue(i, o, r, l, l + 1)
    return L


def prologue():
    P = []
    a = P.append
    a(f"    s_cmp_ge_u32 s2, {NWG}")
    a("    s_cbranch_scc1 L_done")
    if PRIO:
        a("    s_setprio 3")
    if STAMP:
        a("    s_memtime s[64:65]")
        a("    s_memrealtime s[66:67]")
        a("    s_load_dwordx2 s[62:63], s[0:1], 56")
        a("    s_getreg_b32 s61, hwreg(HW_REG_HW_ID)")
        a("    s_getreg_b32 s60, hwreg(HW_REG_XCC_ID)")
    if DBGT:
        a("    s_memrealtime s[66:67]")
        a("    s_memtime s[64:65]")
        a("    s_load_dwordx2 s[62:63], s[0:1], 48")
    a("    v_lshrrev_b32 v1, 6, v0")
    a("    s_load_dwordx2 s[4:5], s[0:1], 0")
    a("    s_load_dwordx2 s[26:27], s[0:1], 40")
    a(f"    v_readfirstlane_b32 s{S_WAVE}, v1")
    a("    v_and_b32 v2, 63, v0")
    a("    v_and_b32 v1, 1, v1")
    a("    v_lshrrev_b32 v3, 4, v2")
    a(f"    s_lshl_b32 s{S_T0}, s{S_WAVE}, 3")
    a(f"    s_add_u32 s20, s0, s{S_T0}")
    a("    s_addc_u32 s21, s1, 0")
    a("    s_load_dwordx2 s[6:7], s[20:21], 8")
    a(f"    s_and_b32 s{S_HEAD}, s{S_WAVE}, 1")
    a(f"    s_lshr_b32 s{S_PAIR}, s{S_WAVE}, 1")
    a("    v_and_b32 v4, 15, v2")
    a("    v_lshlrev_b32 v5, 7, v4")
    a("    v_lshl_add_u32 v5, v3, 4, v5")
    a(f"    v_lshl_add_u32 v{V_ST}, v1, 6, v5")
    a("    v_lshrrev_b32 v6, 2, v4")
    a("    v_lshlrev_b32 v6, 7, v6")
    a("    v_lshl_add_u32 v6, v3, 4, v6")
    a("    v_lshl_add_u32 v6, v1, 6, v6")
    a("    v_and_b32 v7, 3, v4")
    a("    v_cmp_ne_u32 vcc, 0, v7")
    a("    v_mov_b32 v9, 0x7f000000")
    a("    v_lshlrev_b32 v8, 4, v2")
    a(f"    v_cndmask_b32 v{V_STT}, v6, v9, vcc")
    a("    v_lshrrev_b32 v6, 2, v4")
    a("    v_add_u32 v7, 4, v7")
    a("    v_cndmask_b32 v6, v6, v7, vcc")
    a("    v_lshrrev_b32 v7, 1, v6")
    a("    v_xor_b32 v7, v3, v7")
    a("    v_lshlrev_b32 v6, 7, v6")
    a("    v_lshl_add_u32 v6, v7, 4, v6")
    a(f"    s_mul_i32 s{S_LDSP}, s{S_PAIR}, {PSTR}")
    a(f"    v_add_u32 v6, {96 * 128}, v6")
    a(f"    v_add_u32 v{V_LA[2]}, s{S_LDSP}, v6")
    a(f"    v_xor_b32 v{V_LA[3]}, 64, v{V_LA[2]}")
    a("    v_lshrrev_b32 v7, 1, v4")
    a("    v_xor_b32 v7, v3, v7")
    a("    v_lshlrev_b32 v6, 7, v4")
    a("    v_lshl_add_u32 v6, v7, 4, v6")
    a(f"    v_add_u32 v{V_LA[0]}, s{S_LDSP}, v6")
    a(f"    v_xor_b32 v{V_LA[1]}, 64, v{V_LA[0]}")
    a("    v_lshrrev_b32 v6, 3, v2")
    a("    v_and_b32 v7, 7, v2")
    a("    v_lshrrev_b32 v10, 1, v6")
    a("    v_xor_b32 v7, v7, v10")
    a("    v_lshlrev_b32 v10, 7, v6")
    a("    v_lshl_add_u32 v10, v7, 4, v10")
    a("    v_cmp_lt_u32 vcc, 31, v2")
    a("    v_lshlrev_b32 v11, 6, v1")
    a("    v_xor_b32 v11, v10, v11")
    a(f"    v_cndmask_b32 v{V_DMAT}, v10, v9, vcc")
    a(f"    v_lshl_add_u32 v{V_DMA}, v1, 10, v11")
    a(f"    s_lshl_b32 s{S_NXT}, s2, 1")
    a(f"    s_add_u32 s{S_NXT}, s{S_NXT}, s{S_PAIR}")
    a(f"    s_mul_i32 s{S_NXT}, s{S_NXT}, 12800")
    a(f"    s_lshl_b32 s{S_T1}, s{S_WAVE}, 13")
    a(f"    s_add_u32 s{S_T1}, s{S_T1}, {WOFF[0]}")
    a(f"    s_cmp_eq_u32 s{S_WAVE}, 3")
    a(f"    s_cselect_b32 s{S_T1}, {WOFF[3]}, s{S_T1}")
    a(f"    s_mov_b32 s{S_CUR}, s{S_NXT}")
    a(f"    s_mov_b32 s{S_W + 2}, 8192"); a(f"    s_mov_b32 s{S_W + 3}, 0x00020000")
    a(f"    s_mov_b32 s{S_E + 2}, {EBYTES}"); a(f"    s_mov_b32 s{S_E + 3}, 0x00020000")
    a(f"    s_mov_b32 s{S_O + 2}, {EBYTES}"); a(f"    s_mov_b32 s{S_O + 3}, 0x00020000")
    a(f"    s_movk_i32 s{S_T2}, 4096")
    a(f"    s_mov_b32 m0, s{S_T1}")
    a("    s_waitcnt lgkmcnt(0)")
    if STAMP:
        a("    s_memtime s[84:85]")
    a(f"    s_mov_b32 s{S_W}, s6"); a(f"    s_and_b32 s{S_W + 1}, s7, 0xffff")
    a(f"    s_mov_b32 s{S_E}, s4"); a(f"    s_and_b32 s{S_E + 1}, s5, 0xffff")
    for k in range(4):
        a(f"    buffer_load_dwordx4 v8, s[{S_W}:{S_W + 3}], 0 offen offset:{k * 1024} lds")
    a(f"    s_add_u32 m0, s{S_T1}, 4096")
    a(f"    s_mov_b32 s{S_O}, s26"); a(f"    s_and_b32 s{S_O + 1}, s27, 0xffff")
    for k in range(4):
        a(f"    buffer_load_dwordx4 v8, s[{S_W}:{S_W + 3}], s{S_T2} offen offset:{k * 1024} lds")
    if PRIO:
        a("    s_setprio 2")
    P.extend(dma_lines(0))
    if PRIO:
        a("    s_setprio 3")
    for k in range(4):
        a(f"    v_mov_b32 v{ONES + k}, 0x3f803f80")
        a(f"    v_mov_b32 v{CB + k}, 0x{f32bits(-BSHIFT):08x}")
    for k in range(2):
        a(f"    v_mov_b32 v{PT[k] + 1}, 0")
        a(f"    v_mov_b32 v{VP[k] + 13}, 0")
    A0, A1, A2 = OA[0], OA[0] + 1, OA[0] + 2
    a("    v_lshrrev_b32 v10, 2, v4")
    a("    v_lshl_add_u32 v10, v3, 3, v10")
    a("    v_and_b32 v11, 3, v4")
    a("    v_lshlrev_b32 v12, 6, v10")
    a("    v_lshl_add_u32 v12, v1, 12, v12")
    a(f"    v_add_u32 v12, {WOFF[0]}, v12")
    a(f"    v_lshl_add_u32 v{A0}, v11, 3, v12")
    a(f"    v_lshl_add_u32 v{A1}, v11, 4, v12")
    a("    v_lshlrev_b32 v12, 7, v10")
    a("    v_lshl_add_u32 v12, v1, 6, v12")
    a("    v_lshl_add_u32 v12, v11, 4, v12")
    a(f"    v_add_u32 v{A2}, {WOFF[3]}, v12")
    a("    s_waitcnt vmcnt(7)")
    a("    s_barrier")
    if STAMP:
        a("    s_memtime s[86:87]")
        a("    s_waitcnt lgkmcnt(0)")

    def trread(base, moff, addr, tstride, rowb):
        for s_ in range(2):
            for t in range(2):
                for half in range(2):
                    off = moff + (32 * s_ + 4 * half) * rowb + t * tstride
                    a(f"    ds_read_b64_tr_b16 {r2(base + 8 * s_ + 4 * t + 2 * half)}, v{addr} offset:{off}")
    trread(WQ, 0, A0, 32, 64)
    trread(WK, 8192, A0, 32, 64)
    trread(WV, 16384, A1, 8, 64)
    trread(WR, 0, A2, 8, 128)
    if PROG:
        a("    s_waitcnt lgkmcnt(15)")
        a("    s_waitcnt lgkmcnt(12)")
    else:
        a("    s_waitcnt lgkmcnt(0)")
        a("    s_barrier")
        if PRIO:
            a("    s_setprio 1")
        P.extend(dma_lines(1))
        if not INDMA:
            P.extend(dma_lines(2))
        if PRIO:
            a("    s_setprio 3")
    t0, t1 = OA[1], OA[1] + 1
    a(f"    s_mov_b32 s{S_T0}, 0x{f32bits(CSCALE):08x}")
    for k in range(16):
        a(f"    v_lshlrev_b32 v{t0}, 16, v{WQ + k}")
        a(f"    v_and_b32 v{t1}, 0xffff0000, v{WQ + k}")
        a(f"    v_mul_f32 v{t0}, s{S_T0}, v{t0}")
        a(f"    v_mul_f32 v{t1}, s{S_T0}, v{t1}")
        a(f"    v_cvt_pk_bf16_f32 v{WQ + k}, v{t0}, v{t1}")
    a(f"    s_mov_b32 s{S_IT}, 0")
    a(f"    s_mov_b32 s{S_LO}, 0x{f32bits(L_LO):08x}")
    a(f"    s_mov_b32 s{S_HI}, 0x{f32bits(L_HI):08x}")
    if STAMP:
        a("    s_waitcnt lgkmcnt(0)")
        a("    s_memtime s[88:89]")
    if PROG:
        a(f"    s_mov_b32 s{S_E1}, s{S_NXT}")
        a(f"    s_add_u32 s{S_NXT}, s{S_NXT}, {NWG * 2 * 12800}")
        a(f"    s_add_u32 s{S_L1 + 1}, s{S_LDSP}, {BSTR}")
        a(f"    s_lshl_b32 s{S_T0}, s{S_HEAD}, 10")
        a(f"    s_add_u32 s{S_L1}, s{S_L1 + 1}, s{S_T0}")
        a(f"    s_add_u32 s{S_LDSN}, s{S_LDSP}, {2 * BSTR}")
        a("    s_waitcnt vmcnt(5) lgkmcnt(0)")
    elif INDMA:
        a("    s_waitcnt vmcnt(7)")
        a(f"    s_add_u32 s{S_LDSN}, s{S_LDSP}, {2 * BSTR}")
    return P


def main():
    out = []
    a = out.append
    hdr = open('standalone__attention_interact_autoint__recsys.s.ref').read().split('\n')
    for line in hdr:
        if line.startswith('; @launch'):
            a(f"; @launch grid=({NWG},1,1) block=(256,1,1) lds={LDS_TOTAL}")
        elif line.startswith(';'):
            a(line)
        else:
            break
    a('.amdgcn_target "amdgcn-amd-amdhsa--gfx950"')
    a(".text")
    a(f".globl {KN}")
    a(".p2align 8")
    a(f".type {KN},@function")
    a(f"{KN}:")
    out += prologue()
    if STAMP:
        a("    s_memtime s[68:69]")
        a("    s_waitcnt lgkmcnt(0)")
    if NOBAR:
        a("    s_barrier")
    a("L_loop:")
    if STAMP == 2:
        a("    s_memtime s[90:91]")
        a("    s_waitcnt lgkmcnt(0)")
    if INDMA:
        if CONDDMA:
            a(f"    s_cmp_lg_u32 s{S_IT}, 3")
            a("    s_cbranch_scc1 L_w14")
            a("    s_waitcnt vmcnt(7)")
            a("L_w14:")
        a("    s_waitcnt vmcnt(14)")
    else:
        a(f"    s_cmp_eq_u32 s{S_IT}, 2")
        a("    s_cbranch_scc1 L_w21")
        a("    s_waitcnt vmcnt(14)")
        a("L_w21:")
        a("    s_waitcnt vmcnt(21)")
    if not NOBAR:
        a("    s_barrier")
    if STAMP:
        a("    s_memtime s[80:81]")
        a("    s_waitcnt lgkmcnt(0)")
        for k in range(4):
            a(f"    s_cmp_eq_u32 s{S_IT}, {k}")
            a(f"    s_cselect_b32 s{70+k}, s80, s{70+k}")
            if STAMP == 2 and k >= 1:
                a(f"    s_cselect_b32 s{82+2*k}, s90, s{82+2*k}")
    if INDMA:
        a(f"    s_lshl_b32 s{S_T0}, s{S_HEAD}, 10")
        a(f"    s_add_u32 s{S_LDSH}, s{S_LDSN}, s{S_T0}")
    else:
        a(f"    s_cmp_lg_u32 s{S_IT}, 1")
        a("    s_cbranch_scc1 L_nodma")
        out += dma_lines(0)
        a("L_nodma:")
    a(f"    v_mov_b32 v{V_LMAX}, 0")
    a(f"    v_mov_b32 v{V_LMIN}, 1.0")
    body = unit_body()
    if NOMEM & 1:
        body = [x for x in body if x.kind != 'dma']
    if NOMEM & 2:
        body = [x for x in body if x.kind != 'store']
    if NOSCHED:
        sched, est = body, 0
    else:
        sched, est = schedule2(body, window=WINDOW, mfma_bias=float(opts.get('mb', 400)), noise=float(opts.get('noise', 0)), seed=int(opts.get('seed', 0)))
    lines, nnop = finalize(sched)
    for nw in (1, 2):
        T, marks, busy = sim.simulate(lines, nwaves=nw)
        sys.stderr.write(f"sim waves={nw}: per unit {T/(4*nw):.0f} busy {busy/(4*nw):.0f}\n")
    sys.stderr.write(f"unit body: {len(body)} instrs, est {est} cycles, {nnop} nop states, vgprs {A.n}\n")
    out += lines
    if SAFE:
        a(f"    v_cmp_lt_f32 vcc, s{S_HI}, v{V_LMAX}")
        a(f"    v_cmp_gt_f32 s[50:51], s{S_LO}, v{V_LMIN}")
        a("    s_nop 1")
        a("    s_or_b64 vcc, vcc, s[50:51]")
        if FORCE_SAFE:
            a("    s_branch L_safe")
        a("    s_cbranch_scc1 L_safe")
        a("L_next:")
    a(f"    s_cmp_eq_u32 s{S_IT}, 2")
    a(f"    s_cselect_b32 s{S_DEL}, {(-2 * BSTR) & 0xffffffff}, {BSTR}" if False else f"    s_mov_b32 s{S_DEL}, {BSTR}")
    a(f"    s_cselect_b32 s{S_DEL}, {(-2 * BSTR) & 0xffffffff}, s{S_DEL}")
    for k in range(4):
        a(f"    v_add_u32 v{V_LA[k]}, s{S_DEL}, v{V_LA[k]}")
    a(f"    s_add_u32 s{S_CUR}, s{S_CUR}, {NWG * 2 * 12800}")
    if INDMA:
        a(f"    s_add_u32 s{S_NXT}, s{S_NXT}, {NWG * 2 * 12800}")
        a(f"    s_cmp_eq_u32 s{S_IT}, 0")
        a(f"    s_mov_b32 s{S_DEL}, {BSTR}")
        a(f"    s_cselect_b32 s{S_DEL}, {(-2 * BSTR) & 0xffffffff}, s{S_DEL}")
        a(f"    s_add_u32 s{S_LDSN}, s{S_LDSN}, s{S_DEL}")
    a(f"    s_add_u32 s{S_IT}, s{S_IT}, 1")
    if PRIO:
        for k in (1, 2, 3):
            a(f"    s_cmp_lg_u32 s{S_IT}, {k}")
            a(f"    s_cbranch_scc1 L_p{k}")
            a(f"    s_setprio {3 - k}")
            a(f"L_p{k}:")
    a(f"    s_cmp_lt_u32 s{S_IT}, {NIT}")
    a("    s_cbranch_scc1 L_loop")
    if STAMP:
        a("    s_memtime s[74:75]")
        a("    s_waitcnt vmcnt(0)")
        a("    s_memtime s[76:77]")
        a("    s_memrealtime s[78:79]")
        a("    s_waitcnt lgkmcnt(0)")
        a(f"    s_lshl_b32 s82, s2, 2")
        a(f"    s_add_u32 s82, s82, s{S_WAVE}")
        a(f"    s_lshl_b32 s82, s82, 6")
        a(f"    v_mov_b32 v2, s82")
        regs = [60, 61, 64, 66, 68, 70, 71, 72, 73, 74, 76, 78, 84, 86, 88]
        for k, r in enumerate(regs):
            a(f"    v_mov_b32 v3, s{r}")
            a(f"    global_store_dword v2, v3, s[62:63] offset:{4*k}")
    if DBGT:
        a("    s_waitcnt vmcnt(0)")
        a("    s_memrealtime s[78:79]")
        a("    s_memtime s[76:77]")
        a("    s_waitcnt lgkmcnt(0)")
        a("    s_and_b32 s70, s2, 63")
        a("    s_cmp_lg_u32 s70, 63")
        a("    s_cbranch_scc1 L_done")
        a(f"    s_cmp_lg_u32 s{S_WAVE}, 0")
        a("    s_cbranch_scc1 L_done")
        a("    s_lshr_b32 s70, s2, 6")
        a("    s_lshl_b32 s70, s70, 3")
        a("    v_mov_b32 v2, s70")
        a("    v_mov_b32 v4, s66")
        a("    v_mov_b32 v5, s78")
        a("    s_mov_b64 exec, 1")
        a("    global_store_dwordx2 v2, v[4:5], s[62:63]")
    a("L_done:")
    a("    s_endpgm")
    if SAFE:
        a("L_safe:")
        a("    s_waitcnt vmcnt(0)")
        lines, _ = finalize(safe_body())
        out += lines
        a("    s_nop 7")
        a("    s_branch L_next")
    a('.section .rodata,"a"')
    a(".p2align 6")
    a(f".amdhsa_kernel {KN}")
    a(f"  .amdhsa_next_free_vgpr {NVGPR}")
    a(f"  .amdhsa_next_free_sgpr {96 if (STAMP or DBGT) else 64}")
    a(f"  .amdhsa_accum_offset {NVGPR}")
    a("  .amdhsa_group_segment_fixed_size 0")
    a("  .amdhsa_kernarg_size 64")
    a("  .amdhsa_user_sgpr_count 2")
    a("  .amdhsa_user_sgpr_kernarg_segment_ptr 1")
    a("  .amdhsa_system_sgpr_workgroup_id_x 1")
    a(".end_amdhsa_kernel")
    open(sys.argv[1], 'w').write("\n".join(out) + "\n")


main()
```

```python
from sched import Ins, vr, PORT, PIPE, MF, VAL, ws_needed, build_deps
import random
NONV = {'sync', 'wait', 'dsr', 'dsw', 'store', 'dma', 'salu', 'load', 'bar'}

def schedule3(ins, window=300, dslat=160, seed=0, noise=0.0, pool_lo=64, horizon=48, prebuilt=False, nvcost=None):
    if not prebuilt:
        build_deps(ins)
    rnd = random.Random(seed)
    for x in reversed(ins):
        x.prio = PORT[x.kind] + max([s.prio + l for s, w, l in x.succs], default=0)
    pr = {x.idx: x.prio + (noise * rnd.random() if noise else 0) for x in ins}
    yld = {}
    for x in ins:
        if x.kind in MF:
            seen = set(); tot = 0
            st = [s for s, w, l in x.succs if s.kind in VAL and w >= 8]
            for s in st:
                if s.idx not in seen:
                    seen.add(s.idx); tot += PORT[s.kind]
                    for s2, w2, l2 in s.succs:
                        if s2.kind in VAL and s2.idx not in seen:
                            seen.add(s2.idx); tot += PORT[s2.kind] // 2
            yld[x.idx] = tot
    for x in reversed(ins):
        if x.kind in MF:
            for s, w, l in x.succs:
                if s.kind in MF and s.cuses == x.defs:
                    yld[x.idx] = max(yld[x.idx], 0.6 * yld[s.idx])
    for x in ins:
        x.npred = len(x.preds); x.ready = 0
    out = []; pos = {}
    avail = [x for x in ins if x.npred == 0]
    n = len(ins); sched = [False]*n; lowest = 0
    t = 0; port = 0; pipe = 0; slot = 0; done = 0
    while done < n:
        while lowest < n and sched[lowest]: lowest += 1
        cands = []
        base = max(t, port)
        pool = 0
        for x in avail:
            if x.idx > lowest + window: continue
            st = max(t, x.ready)
            if x.kind not in NONV: st = max(st, port)
            if x.kind in MF: st = max(st, pipe)
            need = 0
            for p, w, l in x.preds:
                if w:
                    gap = slot - pos[p.idx] - 1
                    if w - gap > need: need = w - gap
            if need > 0: st = max(st, t + 4*need)
            cands.append((st, x, need))
            if x.kind in VAL and st <= base + horizon: pool += PORT[x.kind]
        free_slot = port > t
        best = None
        if free_slot:
            c = [(st, x, need) for st, x, need in cands if x.kind in NONV and st <= t]
            if c: best = max(c, key=lambda c: (pr[c[1].idx], -c[1].idx))
        if best is None:
            ok = [c for c in cands if c[0] <= base and c[1].kind not in NONV]
            mf = [c for c in ok if c[1].kind in MF]
            va = [c for c in ok if c[1].kind not in MF]
            if mf:
                if pool < pool_lo:
                    best = max(mf, key=lambda c: (yld[c[1].idx], pr[c[1].idx]))
                else:
                    best = max(mf, key=lambda c: (pr[c[1].idx], -c[1].idx))
            elif va:
                gap = pipe - base
                best = max(va, key=lambda c: (pr[c[1].idx] - (30 if (0 < gap < PORT[c[1].kind]) else 0), -c[1].idx))
                nv = [c for c in cands if c[1].kind in NONV and c[0] <= t]
                if nv:
                    bn = max(nv, key=lambda c: (pr[c[1].idx], -c[1].idx))
                    if pr[bn[1].idx] > pr[best[1].idx] + 250: best = bn
            else:
                nv = [c for c in cands if c[1].kind in NONV and c[0] <= base]
                if nv: best = max(nv, key=lambda c: (pr[c[1].idx], -c[1].idx))
                else: best = min(cands, key=lambda c: (c[0], -pr[c[1].idx], c[1].idx))
        st, x, need = best
        avail.remove(x)
        slot += max(need, 0)
        pos[x.idx] = slot; slot += 1
        out.append(x); sched[x.idx] = True
        if x.kind in MF:
            pipe = st + PIPE[x.kind]; port = st + PORT[x.kind]; t = st + 4
        elif x.kind in NONV:
            t = st + (16 if x.kind in ('store',) else (8 if '\n' in x.text else 4))
        else:
            port = st + PORT[x.kind]; t = port
        for s, w, l in x.succs:
            ll = l
            if x.kind == 'dsr' and l > 100: ll = dslat
            s.ready = max(s.ready, st + ll)
            s.npred -= 1
            if s.npred == 0: avail.append(s)
        done += 1
    return out, max(t, port)
```

```python
import sys, struct, math
sys.path.insert(0, 'gen')
from sched import Ins, vr, schedule, finalize
from sched2 import schedule2
from sched3 import schedule3
import sim

KN = "standalone__attention_interact_autoint__recsys_kernel"
NWG = 512
NIT = 4
EBYTES = 4096 * 100 * 64 * 2
BSTR = 12928
PSTR = 3 * BSTR
LDS_TOTAL = 81920
XSCR = 2 * PSTR
XROW = 224
WOFF = [BSTR, BSTR + 8192, BSTR + 16384, PSTR + BSTR]

opts = dict(a.split('=') for a in sys.argv[2:]) if len(sys.argv) > 2 else {}
G = int(opts.get('g', 2))
INDMA = int(opts.get('indma', 1))
PROG = int(opts.get('prog', 1))
CONDDMA = int(opts.get('conddma', 1))
DMAG = int(opts.get('dmag', 4))
REP = int(opts.get('rep', 1))
TQI = int(opts.get('tqi', 3))
TQ = int(opts.get('tq', 1))
ICW = int(opts.get('icw', 0))
ZTAIL = int(opts.get('ztail', 1))
DELAY = int(opts.get('delay', 1))
SAFE = int(opts.get('safe', 1))
FORCE_SAFE = int(opts.get('force_safe', 0))
NOSCHED = int(opts.get('nosched', 0))
WINDOW = int(opts.get('window', 300))
STAMP = int(opts.get('stamp', 0))
PRIO = int(opts.get('prio', 1))
STF = opts.get('stf', 'sc1').replace('+', ' ')
LDF = opts.get('ldf', 'nt').replace('+', ' ')
DBGT = int(opts.get('dbgt', 0))
NOMEM = int(opts.get('nomem', 0))
NOBAR = int(opts.get('nobar', 0))


def f32bits(x):
    return struct.unpack('<I', struct.pack('<f', x))[0]


class Alloc:
    def __init__(self, start):
        self.n = start

    def get(self, k, align=2):
        self.n = (self.n + align - 1) // align * align
        r = self.n
        self.n += k
        return r


A = Alloc(2)
WQ = A.get(16); WK = A.get(16); WV = A.get(16); WR = A.get(16)
KP = A.get(28)
VP = [A.get(14), A.get(14)]
EB = [A.get(8) for _ in range(int(opts.get('neb', 2)))]
PD = [A.get(4) for _ in range(int(opts.get('npd', 4)))]
QP = [A.get(4) for _ in range(int(opts.get('nq', 3)))]
SB = [A.get(8) for _ in range(int(opts.get('nsb', 3)))]
PT = [A.get(2) for _ in range(2)]
OA = [A.get(8) for _ in range(int(opts.get('no', 3)))]
RA = [A.get(8) for _ in range(int(opts.get('nr', 1)))]
LA = [A.get(4) for _ in range(int(opts.get('no', 3)))]
ONES = A.get(4)
CB = A.get(4)
V_LA = [A.get(1, 1) for _ in range(4)]
V_DMA = A.get(1, 1)
V_DMAT = A.get(1, 1)
V_ST = A.get(1, 1)
V_STT = A.get(1, 1)
V_XW = A.get(1, 1)
V_XR = A.get(1, 1)
V_LMAX = 0
V_LMIN = 1
assert A.n <= 256, A.n
NVGPR = 256

S_E = 8; S_O = 12; S_W = 16
S_HEAD = 32; S_CUR = 33; S_NXT = 34; S_IT = 35; S_STO = 36
S_LDSN = 44; S_T0 = 45; S_T1 = 46; S_T2 = 47
S_LO = 48; S_HI = 49; S_WAVE = 52; S_PAIR = 53; S_LDSP = 54; S_LDSH = 55; S_DEL = 56; S_E1 = 57; S_L1 = 58; S_TMASK = 60; S_DMASK = 50

BSHIFT = 40.0
L_LO = 2.0 ** -56
L_HI = 1.0
CSCALE = math.log2(math.e) / math.sqrt(32.0)


def r4(a): return f"v[{a}:{a + 3}]"
def r2(a): return f"v[{a}:{a + 1}]"


def mfma(d, a, b, c=None, tag=''):
    if c is None:
        return Ins(f"v_mfma_f32_16x16x32_bf16 {r4(d)}, {r4(a)}, {r4(b)}, 0", 'mfma', vr(d, 4), vr(a, 4) + vr(b, 4), tag=tag)
    return Ins(f"v_mfma_f32_16x16x32_bf16 {r4(d)}, {r4(a)}, {r4(b)}, {r4(c)}", 'mfma', vr(d, 4), vr(a, 4) + vr(b, 4), vr(c, 4), tag=tag)


def mfmas(d, a, b, c, tag=''):
    return Ins(f"v_mfma_f32_16x16x16_bf16 {r4(d)}, {r2(a)}, {r2(b)}, {r4(c)}", 'mfmas', vr(d, 4), vr(a, 2) + vr(b, 2), vr(c, 4), tag=tag)


def cvt(d, a, b):
    if b is None:
        return Ins(f"v_cvt_pk_bf16_f32 v{d}, v{a}, 0", 'valu', vr(d), vr(a))
    return Ins(f"v_cvt_pk_bf16_f32 v{d}, v{a}, v{b}", 'valu', vr(d), vr(a) + vr(b))


def vexp(d, a):
    return Ins(f"v_exp_f32 v{d}, v{a}", 'trans', vr(d), vr(a))


def dsread(d, t, s_):
    if t < 6:
        va, off = V_LA[s_], t * 2048
    else:
        va, off = V_LA[2 + s_], 0
    return Ins(f"ds_read_b128 {r4(d)}, v{va} offset:{off}", 'dsr', vr(d, 4), vr(va))


def salu(text, defs, uses):
    return Ins(text, 'salu', defs, uses)


class Ring:
    def __init__(self, items):
        self.items = items
        self.i = 0

    def next(self):
        r = self.items[self.i % len(self.items)]
        self.i += 1
        return r


def dma_block():
    L = []
    srd = [f's{S_E + i}' for i in range(4)]
    for m in (0, 2, 4, 6):
        if m < 6:
            L.append(salu(f"s_add_u32 m0, s{S_LDSH}, {m * 2048}", ['m0', 'scc'], [f's{S_LDSH}']))
        else:
            L.append(salu(f"s_add_u32 m0, s{S_LDSN}, {12288}", ['m0', 'scc'], [f's{S_LDSN}']))
        if m == 0:
            so = S_NXT
        else:
            L.append(salu(f"s_add_u32 s{S_T0}, s{S_NXT}, {m * 2048}", [f's{S_T0}', 'scc'], [f's{S_NXT}']))
            so = S_T0
        if m < 6:
            L.append(Ins(f"buffer_load_dwordx4 v{V_DMA}, s[{S_E}:{S_E + 3}], s{so} offen {LDF} lds", 'dma', [], vr(V_DMA) + srd + [f's{so}', 'm0']))
            L.append(Ins(f"buffer_load_dwordx4 v{V_DMA}, s[{S_E}:{S_E + 3}], s{so} offen offset:2048 {LDF} lds", 'dma', [], vr(V_DMA) + srd + [f's{so}', 'm0']))
        else:
            L.append(Ins(f"s_mov_b64 exec, s[{S_DMASK}:{S_DMASK + 1}]\n    buffer_load_dwordx4 v{V_DMAT}, s[{S_E}:{S_E + 3}], s{so} offen {LDF} lds\n    s_mov_b64 exec, -1", 'dma', [], vr(V_DMAT) + srd + [f's{so}', 'm0']))
    return L


def dma_lines(bufidx):
    X = [f"    s_add_u32 s{S_LDSN}, s{S_LDSP}, {bufidx * BSTR}",
         f"    s_lshl_b32 s{S_T0}, s{S_HEAD}, 10",
         f"    s_add_u32 s{S_LDSH}, s{S_LDSN}, s{S_T0}"]
    dl, _ = finalize(dma_block())
    return X + dl + [f"    s_add_u32 s{S_NXT}, s{S_NXT}, {NWG * 2 * 12800}"]


def store(i, data):
    srd = [f's{S_O + k}' for k in range(4)]
    va = V_ST if i < 6 else V_STT
    return Ins(f"buffer_store_dwordx4 {r4(data)}, v{va}, s[{S_O}:{S_O + 3}], s{S_STO + i} offen {STF}", 'store', [],
               vr(data, 4) + vr(va) + srd + [f's{S_STO + i}'])


def kv_tile(t, eb, pd):
    L = []
    d0, d1 = pd.next(), pd.next()
    L.append(mfma(d0, WK + 0, eb + 0)); L.append(mfma(d1, WK + 4, eb + 0))
    L.append(mfma(d0, WK + 8, eb + 4, d0)); L.append(mfma(d1, WK + 12, eb + 4, d1))
    k = KP + 4 * t
    L += [cvt(k, d0, d0 + 1), cvt(k + 1, d0 + 2, d0 + 3), cvt(k + 2, d1, d1 + 1), cvt(k + 3, d1 + 2, d1 + 3)]
    d0, d1 = pd.next(), pd.next()
    L.append(mfma(d0, eb + 0, WV + 0)); L.append(mfma(d1, eb + 0, WV + 4))
    L.append(mfma(d0, eb + 4, WV + 8, d0)); L.append(mfma(d1, eb + 4, WV + 12, d1))
    for u, d in ((0, d0), (1, d1)):
        v = VP[u] + 2 * t
        L.append(cvt(v, d, d + 1))
        if t < 6:
            L.append(cvt(v + 1, d + 2, d + 3))
    return L


def q_proj(eb, pd, q):
    L = []
    d0, d1 = pd.next(), pd.next()
    L.append(mfma(d0, WQ + 0, eb + 0)); L.append(mfma(d1, WQ + 4, eb + 0))
    L.append(mfma(d0, WQ + 8, eb + 4, d0)); L.append(mfma(d1, WQ + 12, eb + 4, d1))
    L += [cvt(q, d0, d0 + 1), cvt(q + 1, d0 + 2, d0 + 3), cvt(q + 2, d1, d1 + 1), cvt(q + 3, d1 + 2, d1 + 3)]
    return L


def res_proj(eb, r):
    return [mfma(r, WR + 0, eb + 0), mfma(r + 4, WR + 4, eb + 0), mfma(r, WR + 8, eb + 4, r), mfma(r + 4, WR + 12, eb + 4, r + 4)]


def epilogue(i, o, r, l, inv):
    L = [Ins(f"v_rcp_f32 v{inv}, v{l}", 'trans', vr(inv), vr(l))]
    for j in range(8):
        L.append(Ins(f"v_fma_f32 v{o + j}, v{o + j}, v{inv}, v{r + j}", 'valu', vr(o + j), vr(o + j) + vr(inv) + vr(r + j)))
    for j in range(4):
        L.append(cvt(o + j, o + 2 * j, o + 2 * j + 1))
    for j in range(4):
        L.append(Ins(f"v_pk_max_i16 v{o + j}, v{o + j}, 0", 'valu', vr(o + j), vr(o + j)))
    L.append(store(i, o))
    return L


def unit_body():
    L = []
    eb = Ring(EB); pd = Ring(PD); qp = Ring(QP); sb = Ring(SB); pt = Ring(PT)
    oa = Ring(OA); ra = Ring(RA); la = Ring(LA)
    for i in range(7):
        if i == 0:
            L.append(salu(f"s_mov_b32 s{S_STO}, s{S_CUR}", [f's{S_STO}'], [f's{S_CUR}']))
        else:
            L.append(salu(f"s_add_u32 s{S_STO + i}, s{S_CUR}, {i * 2048}", [f's{S_STO + i}', 'scc'], [f's{S_CUR}']))
    Q = {}; O = {}; LL = {}
    state = {'lprev': None}

    def readE(t):
        if PROG and t in (2, 4) and t not in state:
            state[t] = 1
            e, X = readE(t)
            k = t // 2
            txt = [f"s_cmp_lg_u32 s{S_IT}, 0", f"    s_cbranch_scc1 L_sync{k}", f"    s_waitcnt vmcnt({3 if t == 2 else 0})", "    s_barrier"]
            dfs = ['scc']
            txt.append(f"L_sync{k}:")
            return e, [Ins("\n".join(txt), 'sync', dfs + vr(e, 4), [])] + X
        e = eb.next()
        return e, [dsread(e, t, 0), dsread(e + 4, t, 1), Ins("wait", 'wait', vr(e, 8), vr(e, 8))]

    def e1piece(m):
        txt = [f"s_cmp_lg_u32 s{S_IT}, 0", f"    s_cbranch_scc1 L_e1_{m}"]
        if m < 3:
            txt += [f"    s_add_u32 m0, s{S_L1}, {m * 4096}", f"    s_add_u32 s{S_T1}, s{S_E1}, {m * 4096}",
                    f"    buffer_load_dwordx4 v{V_DMA}, s[{S_E}:{S_E + 3}], s{S_T1} offen {LDF} lds",
                    f"    buffer_load_dwordx4 v{V_DMA}, s[{S_E}:{S_E + 3}], s{S_T1} offen offset:2048 {LDF} lds"]
        else:
            txt += [f"    s_add_u32 m0, s{S_L1 + 1}, 12288", f"    s_add_u32 s{S_T1}, s{S_E1}, 12288",
                    f"    s_mov_b64 exec, s[{S_DMASK}:{S_DMASK + 1}]",
                    f"    buffer_load_dwordx4 v{V_DMAT}, s[{S_E}:{S_E + 3}], s{S_T1} offen {LDF} lds",
                    "    s_mov_b64 exec, -1"]
        txt.append(f"L_e1_{m}:")
        x = Ins("\n".join(txt), 'dma', ['scc', 'm0', f's{S_T1}'], [])
        x.order_after.append(L[-1])
        return [x]

    def qproj(i, e):
        Q[i] = qp.next()
        return q_proj(e, pd, Q[i])

    def step(i, p):
        X = []
        q = Q[i]
        if p == 0:
            O[i] = oa.next(); LL[i] = la.next()
        o = O[i]; l = LL[i]
        if p < 3:
            b = sb.next()
            X.append(mfma(b, KP + 8 * p, q, CB)); X.append(mfma(b + 4, KP + 8 * p + 4, q, CB))
            for j in (2, 3, 0, 1, 4, 5, 6, 7):
                X.append(vexp(b + j, b + j))
            X += [cvt(b + 3, b + 2, b + 3), cvt(b + 2, b, b + 1), cvt(b + 4, b + 4, b + 5), cvt(b + 5, b + 6, b + 7)]
            c0 = None if p == 0 else o
            c1 = None if p == 0 else o + 4
            cl = None if p == 0 else l
            X.append(mfma(o, VP[0] + 4 * p, b + 2, c0)); X.append(mfma(o + 4, VP[1] + 4 * p, b + 2, c1))
            X.append(mfma(l, ONES, b + 2, cl))
        else:
            s_ = pd.next(); pp = pt.next()
            X.append(mfma(s_, KP + 24, q, CB))
            X.append(vexp(s_, s_))
            X.append(cvt(pp, s_, None))
            X.append(mfmas(l, ONES, pp, l))
            X.append(mfmas(o, VP[0] + 12, pp, o)); X.append(mfmas(o + 4, VP[1] + 12, pp, o + 4))
        return X

    def tailq_scores():
        X = []
        q = Q[6]
        xs = sb.next()
        for t in range(7):
            d = pd.next()
            X.append(mfma(d, q, KP + 4 * t, CB))
            X.append(vexp(xs + t, d))
        X.append(Ins(f"v_cndmask_b32 v{xs + 6}, 0, v{xs + 6}, s[{S_TMASK}:{S_TMASK + 1}]", 'valu', vr(xs + 6), vr(xs + 6)))
        for k in range(4):
            X.append(cvt(xs + 2 * k, xs + 2 * k, xs + 2 * k + 1 if k < 3 else None))
            X.append(Ins(f"ds_write_b16 v{V_XW}, v{xs + 2 * k} offset:{64 * k}", 'dsw', [], vr(V_XW) + vr(xs + 2 * k)))
            if k < 3:
                X.append(Ins(f"ds_write_b16_d16_hi v{V_XW}, v{xs + 2 * k} offset:{64 * k + 32}", 'dsw', [], vr(V_XW) + vr(xs + 2 * k)))
        return X

    def tailq_pv():
        X = []
        O[6] = oa.next(); LL[6] = la.next()
        o = O[6]; l = LL[6]
        b0 = eb.next(); b1 = eb.next()
        pr = [b0, b0 + 4, b1, b1 + 4]
        for p in range(3):
            X.append(Ins(f"ds_read2_b64 {r4(pr[p])}, v{V_XR} offset0:{8 * p} offset1:{8 * p + 4}", 'dsr', vr(pr[p], 4), vr(V_XR)))
        X.append(Ins(f"ds_read_b64 {r2(pr[3])}, v{V_XR} offset:192", 'dsr', vr(pr[3], 2), vr(V_XR)))
        X.append(Ins("wait", 'wait', vr(b0, 8) + vr(b1, 6), vr(b0, 8) + vr(b1, 6)))
        for p in range(3):
            c0 = None if p == 0 else o
            c1 = None if p == 0 else o + 4
            cl = None if p == 0 else l
            X.append(mfma(l, ONES, pr[p], cl))
            X.append(mfma(o, VP[0] + 4 * p, pr[p], c0)); X.append(mfma(o + 4, VP[1] + 4 * p, pr[p], c1))
        X.append(mfmas(l, ONES, pr[3], l))
        X.append(mfmas(o, VP[0] + 12, pr[3], o)); X.append(mfmas(o + 4, VP[1] + 12, pr[3], o + 4))
        return X

    def res(i):
        e, X = readE(i)
        r = ra.next()
        return r, X + res_proj(e, r)

    def fin(i, r):
        o = O[i]; l = LL[i]
        X = epilogue(i, o, r, l, l + 1)
        lprev = state['lprev']
        state['n'] = state.get('n', 0) + 1
        if state['n'] % 2 == 0:
            X.append(Ins(f"v_max3_f32 v{V_LMAX}, v{V_LMAX}, v{lprev}, v{l}", 'valu', vr(V_LMAX), vr(V_LMAX) + vr(lprev) + vr(l)))
            X.append(Ins(f"v_min3_f32 v{V_LMIN}, v{V_LMIN}, v{lprev}, v{l}", 'valu', vr(V_LMIN), vr(V_LMIN) + vr(lprev) + vr(l)))
        elif state['n'] == 7:
            X.append(Ins(f"v_max_f32 v{V_LMAX}, v{V_LMAX}, v{l}", 'valu', vr(V_LMAX), vr(V_LMAX) + vr(l)))
            X.append(Ins(f"v_min_f32 v{V_LMIN}, v{V_LMIN}, v{l}", 'valu', vr(V_LMIN), vr(V_LMIN) + vr(l)))
        state['lprev'] = l
        return X

    def kv(t):
        e, X = readE(t)
        if t < min(G, 2):
            X += qproj(t, e)
        X += kv_tile(t, e, pd)
        return X
    L += kv(0) + kv(1)
    if G > 2:
        e, X = readE(2)
        L += X + qproj(2, e)
    for p in range(4):
        nxt = [t for t in (2 * p + 2, 2 * p + 3) if t < 7]
        for i in range(G):
            L += step(i, p)
            if PROG and p >= 2:
                L += e1piece((p - 2) * 2 + i)
            if nxt:
                t = nxt.pop(0)
                e, X = readE(t)
                L += X + kv_tile(t, e, pd)
        for t in nxt:
            e, X = readE(t)
            L += X + kv_tile(t, e, pd)
        if p == 2 and len(QP) > G:
            e, X = readE(G)
            L += X + qproj(G, e)
    for i in range(G):
        r, X = res(i)
        L += X + fin(i, r)
        if i == 0 and len(QP) <= G:
            e, X = readE(G)
            L += X + qproj(G, e)
    dm = dma_block()
    groups = [dm[0:3], dm[3:7], dm[7:11], dm[11:]] if DMAG == 4 else ([dm[0:7], dm[7:]] if DMAG == 2 else [dm])
    for i in range(G, 6 if TQ else 7):
        for p in range(4):
            if p == 2 and groups and INDMA:
                g_ = groups.pop(0)
                if CONDDMA:
                    gl, _ = finalize(g_)
                    k_ = len(groups)
                    txt = [f"s_cmp_gt_u32 s{S_IT}, 1", f"    s_cbranch_scc1 L_d{k_}"] + gl + [f"L_d{k_}:"]
                    g_ = [Ins("\n".join(txt), 'dma', ['scc', 'm0', f's{S_T0}'], [f's{S_NXT}', f's{S_LDSN}', f's{S_LDSH}'])]
                g_[0].order_after.append(L[-1])
                L += g_
            L += step(i, p)
            if p == 0 and i < (5 if TQ else 6):
                e, X = readE(i + 1)
                L += X + qproj(i + 1, e)
            if TQ and i == TQI and p == 1:
                e, X = readE(6)
                L += X + qproj(6, e)
            if TQ and i == TQI and p == 3:
                L += tailq_scores()
            if TQ and i == TQI + 1 and p == 0:
                L += tailq_pv()
                r6, X = res(6)
                L += X + fin(6, r6)
            if p == 1:
                r, X = res(i)
                L += X
        L += fin(i, r)
    return L


def safe_body():
    L = []
    pd = Ring(PD)
    e = EB[0]; q = QP[0]; r = RA[0]; o = OA[0]; l = LA[0]; s6 = OA[1]; pp = PT[0]
    m = LA[1]; m2 = LA[1] + 1
    for i in range(7):
        L += [dsread(e, i, 0), dsread(e + 4, i, 1)]
        L += q_proj(e, pd, q) + res_proj(e, r)
        for p in range(3):
            b = SB[p]
            L.append(mfma(b, KP + 8 * p, q)); L.append(mfma(b + 4, KP + 8 * p + 4, q))
        L.append(mfma(s6, KP + 24, q))
        regs = [SB[p] + j for p in range(3) for j in range(8)]
        L.append(Ins(f"v_mov_b32 v{m}, v{s6}", 'valu', vr(m), vr(s6)))
        for k in range(0, 24, 2):
            L.append(Ins(f"v_max3_f32 v{m}, v{m}, v{regs[k]}, v{regs[k + 1]}", 'valu', vr(m), vr(m) + vr(regs[k]) + vr(regs[k + 1])))
        L.append(Ins(f"v_mov_b32 v{m2}, v{m}", 'valu', vr(m2), vr(m)))
        L.append(Ins(f"v_permlane16_swap_b32 v{m}, v{m2}", 'perm', vr(m) + vr(m2), vr(m) + vr(m2)))
        L.append(Ins(f"v_max_f32 v{m}, v{m}, v{m2}", 'valu', vr(m), vr(m) + vr(m2)))
        L.append(Ins(f"v_mov_b32 v{m2}, v{m}", 'valu', vr(m2), vr(m)))
        L.append(Ins(f"v_permlane32_swap_b32 v{m}, v{m2}", 'perm', vr(m) + vr(m2), vr(m) + vr(m2)))
        L.append(Ins(f"v_max_f32 v{m}, v{m}, v{m2}", 'valu', vr(m), vr(m) + vr(m2)))
        for x in regs + [s6]:
            L.append(Ins(f"v_sub_f32 v{x}, v{x}, v{m}", 'valu', vr(x), vr(x) + vr(m)))
            L.append(vexp(x, x))
        for p in range(3):
            b = SB[p]
            L += [cvt(b + 3, b + 2, b + 3), cvt(b + 2, b, b + 1), cvt(b + 4, b + 4, b + 5), cvt(b + 5, b + 6, b + 7)]
            c0 = None if p == 0 else o
            c1 = None if p == 0 else o + 4
            cl = None if p == 0 else l
            L.append(mfma(o, VP[0] + 4 * p, b + 2, c0)); L.append(mfma(o + 4, VP[1] + 4 * p, b + 2, c1))
            L.append(mfma(l, ONES, b + 2, cl))
        L.append(cvt(pp, s6, None))
        L.append(mfmas(o, VP[0] + 12, pp, o)); L.append(mfmas(o + 4, VP[1] + 12, pp, o + 4))
        L.append(mfmas(l, ONES, pp, l))
        L += epilogue(i, o, r, l, l + 1)
    return L


def prologue():
    P = []
    a = P.append
    a(f"    s_cmp_ge_u32 s2, {NWG}")
    a("    s_cbranch_scc1 L_done")
    if REP > 1:
        a("    s_mov_b32 s63, 0")
        a("L_rep:")
    if PRIO:
        a("    s_setprio 3")
    if STAMP:
        a("    s_memtime s[64:65]")
        a("    s_memrealtime s[66:67]")
        a("    s_load_dwordx2 s[62:63], s[0:1], 56")
        a("    s_getreg_b32 s93, hwreg(HW_REG_HW_ID)")
        a("    s_getreg_b32 s92, hwreg(HW_REG_XCC_ID)")
    if DBGT:
        a("    s_memrealtime s[66:67]")
        a("    s_memtime s[64:65]")
        a("    s_load_dwordx2 s[62:63], s[0:1], 48")
    a("    v_lshrrev_b32 v1, 6, v0")
    a("    s_load_dwordx2 s[4:5], s[0:1], 0")
    a("    s_load_dwordx2 s[26:27], s[0:1], 40")
    a(f"    v_readfirstlane_b32 s{S_WAVE}, v1")
    a("    v_and_b32 v2, 63, v0")
    a("    v_and_b32 v1, 1, v1")
    a("    v_lshrrev_b32 v3, 4, v2")
    a(f"    s_lshl_b32 s{S_T0}, s{S_WAVE}, 3")
    a(f"    s_add_u32 s20, s0, s{S_T0}")
    a("    s_addc_u32 s21, s1, 0")
    a("    s_load_dwordx2 s[6:7], s[20:21], 8")
    a(f"    s_and_b32 s{S_HEAD}, s{S_WAVE}, 1")
    a(f"    s_lshr_b32 s{S_PAIR}, s{S_WAVE}, 1")
    a("    v_and_b32 v4, 15, v2")
    a("    v_lshlrev_b32 v5, 7, v4")
    a("    v_lshl_add_u32 v5, v3, 4, v5")
    a(f"    v_lshl_add_u32 v{V_ST}, v1, 6, v5")
    a("    v_lshrrev_b32 v6, 2, v4")
    a("    v_lshlrev_b32 v6, 7, v6")
    a("    v_lshl_add_u32 v6, v3, 4, v6")
    a("    v_lshl_add_u32 v6, v1, 6, v6")
    a("    v_and_b32 v7, 3, v4")
    a("    v_cmp_ne_u32 vcc, 0, v7")
    a("    v_mov_b32 v9, 0x7f000000")
    a("    v_lshlrev_b32 v8, 4, v2")
    a(f"    v_cndmask_b32 v{V_STT}, v6, v9, vcc")
    a("    v_lshrrev_b32 v6, 2, v4")
    a(f"    s_not_b64 s[{S_TMASK}:{S_TMASK + 1}], vcc")
    a("    v_cndmask_b32 v6, v6, 4, vcc")
    a(f"    s_mov_b32 s{S_DMASK}, -1")
    a(f"    s_mov_b32 s{S_DMASK + 1}, 0xff")
    a("    v_lshrrev_b32 v7, 1, v6")
    a("    v_xor_b32 v7, v3, v7")
    a("    v_lshlrev_b32 v6, 7, v6")
    a("    v_lshl_add_u32 v6, v7, 4, v6")
    a(f"    s_mul_i32 s{S_LDSP}, s{S_PAIR}, {PSTR}")
    a(f"    v_add_u32 v6, {96 * 128}, v6")
    a(f"    v_add_u32 v{V_LA[2]}, s{S_LDSP}, v6")
    a(f"    v_xor_b32 v{V_LA[3]}, 64, v{V_LA[2]}")
    a("    v_lshrrev_b32 v7, 1, v4")
    a("    v_xor_b32 v7, v3, v7")
    a("    v_lshlrev_b32 v6, 7, v4")
    a("    v_lshl_add_u32 v6, v7, 4, v6")
    a(f"    v_add_u32 v{V_LA[0]}, s{S_LDSP}, v6")
    a(f"    v_xor_b32 v{V_LA[1]}, 64, v{V_LA[0]}")
    a(f"    s_mul_i32 s{S_T0}, s{S_WAVE}, {4 * XROW}")
    a(f"    s_add_u32 s{S_T0}, s{S_T0}, {XSCR}")
    a(f"    v_mul_u32_u24 v6, {XROW}, v3")
    a("    v_lshl_add_u32 v6, v4, 1, v6")
    a(f"    v_add_u32 v{V_XW}, s{S_T0}, v6")
    a("    v_lshrrev_b32 v6, 2, v4")
    a(f"    v_mul_u32_u24 v6, {XROW}, v6")
    a("    v_lshl_add_u32 v6, v3, 3, v6")
    a(f"    v_add_u32 v{V_XR}, s{S_T0}, v6")
    a("    v_lshrrev_b32 v6, 3, v2")
    a("    v_and_b32 v7, 7, v2")
    a("    v_lshrrev_b32 v10, 1, v6")
    a("    v_xor_b32 v7, v7, v10")
    a("    v_lshlrev_b32 v10, 7, v6")
    a("    v_lshl_add_u32 v10, v7, 4, v10")
    a("    v_cmp_lt_u32 vcc, 31, v2")
    a("    v_lshlrev_b32 v11, 6, v1")
    a("    v_xor_b32 v11, v10, v11")
    a(f"    v_cndmask_b32 v{V_DMAT}, v10, v9, vcc")
    a(f"    v_lshl_add_u32 v{V_DMA}, v1, 10, v11")
    a(f"    s_lshl_b32 s{S_NXT}, s2, 1")
    a(f"    s_add_u32 s{S_NXT}, s{S_NXT}, s{S_PAIR}")
    a(f"    s_mul_i32 s{S_NXT}, s{S_NXT}, 12800")
    a(f"    s_lshl_b32 s{S_T1}, s{S_WAVE}, 13")
    a(f"    s_add_u32 s{S_T1}, s{S_T1}, {WOFF[0]}")
    a(f"    s_cmp_eq_u32 s{S_WAVE}, 3")
    a(f"    s_cselect_b32 s{S_T1}, {WOFF[3]}, s{S_T1}")
    a(f"    s_mov_b32 s{S_CUR}, s{S_NXT}")
    a(f"    s_mov_b32 s{S_W + 2}, 8192"); a(f"    s_mov_b32 s{S_W + 3}, 0x00020000")
    a(f"    s_mov_b32 s{S_E + 2}, {EBYTES}"); a(f"    s_mov_b32 s{S_E + 3}, 0x00020000")
    a(f"    s_mov_b32 s{S_O + 2}, {EBYTES}"); a(f"    s_mov_b32 s{S_O + 3}, 0x00020000")
    a(f"    s_movk_i32 s{S_T2}, 4096")
    a(f"    s_mov_b32 m0, s{S_T1}")
    a("    s_waitcnt lgkmcnt(0)")
    if STAMP:
        a("    s_memtime s[84:85]")
    a(f"    s_mov_b32 s{S_W}, s6"); a(f"    s_and_b32 s{S_W + 1}, s7, 0xffff")
    a(f"    s_mov_b32 s{S_E}, s4"); a(f"    s_and_b32 s{S_E + 1}, s5, 0xffff")
    for k in range(4):
        a(f"    buffer_load_dwordx4 v8, s[{S_W}:{S_W + 3}], 0 offen offset:{k * 1024} lds")
    a(f"    s_add_u32 m0, s{S_T1}, 4096")
    a(f"    s_mov_b32 s{S_O}, s26"); a(f"    s_and_b32 s{S_O + 1}, s27, 0xffff")
    for k in range(4):
        a(f"    buffer_load_dwordx4 v8, s[{S_W}:{S_W + 3}], s{S_T2} offen offset:{k * 1024} lds")
    if DELAY:
        a(f"    s_cmp_ge_u32 s2, {NWG // 2}")
        a("    s_cbranch_scc1 L_late0")
    if PRIO:
        a("    s_setprio 2")
    P.extend(dma_lines(0))
    if PRIO:
        a("    s_setprio 3")
    if DELAY:
        a("L_late0:")
    for k in range(4):
        a(f"    v_mov_b32 v{ONES + k}, 0x3f803f80")
        a(f"    v_mov_b32 v{CB + k}, 0x{f32bits(-BSHIFT):08x}")
    for k in range(2):
        a(f"    v_mov_b32 v{PT[k] + 1}, 0")
        a(f"    v_mov_b32 v{VP[k] + 13}, 0")
    A0, A1, A2 = OA[0], OA[0] + 1, OA[0] + 2
    a("    v_lshrrev_b32 v10, 2, v4")
    a("    v_lshl_add_u32 v10, v3, 3, v10")
    a("    v_and_b32 v11, 3, v4")
    a("    v_lshlrev_b32 v12, 6, v10")
    a("    v_lshl_add_u32 v12, v1, 12, v12")
    a(f"    v_add_u32 v12, {WOFF[0]}, v12")
    a(f"    v_lshl_add_u32 v{A0}, v11, 3, v12")
    a(f"    v_lshl_add_u32 v{A1}, v11, 4, v12")
    a("    v_lshlrev_b32 v12, 7, v10")
    a("    v_lshl_add_u32 v12, v1, 6, v12")
    a("    v_lshl_add_u32 v12, v11, 4, v12")
    a(f"    v_add_u32 v{A2}, {WOFF[3]}, v12")
    if ICW:
        a("    ;ICW")
    if DELAY:
        a(f"    s_cmp_ge_u32 s2, {NWG // 2}")
        a("    s_cbranch_scc1 L_late1")
        a("    s_waitcnt vmcnt(7)")
        a("    s_barrier")
        a("    s_branch L_late2")
        a("L_late1:")
        a("    s_waitcnt vmcnt(0)")
        a("    s_barrier")
        P.extend(dma_lines(0))
        a("L_late2:")
    else:
        a("    s_waitcnt vmcnt(7)")
        a("    s_barrier")
    if STAMP:
        a("    s_memtime s[86:87]")
        a("    s_waitcnt lgkmcnt(0)")

    def trread(base, moff, addr, tstride, rowb):
        for s_ in range(2):
            for t in range(2):
                for half in range(2):
                    off = moff + (32 * s_ + 4 * half) * rowb + t * tstride
                    a(f"    ds_read_b64_tr_b16 {r2(base + 8 * s_ + 4 * t + 2 * half)}, v{addr} offset:{off}")
    trread(WQ, 0, A0, 32, 64)
    trread(WK, 8192, A0, 32, 64)
    trread(WV, 16384, A1, 8, 64)
    trread(WR, 0, A2, 8, 128)
    if PROG:
        a("    s_waitcnt lgkmcnt(15)")
        a("    s_waitcnt lgkmcnt(12)")
    else:
        a("    s_waitcnt lgkmcnt(0)")
        a("    s_barrier")
        if PRIO:
            a("    s_setprio 1")
        P.extend(dma_lines(1))
        if not INDMA:
            P.extend(dma_lines(2))
        if PRIO:
            a("    s_setprio 3")
    t0, t1 = OA[1], OA[1] + 1
    a(f"    s_mov_b32 s{S_T0}, 0x{f32bits(CSCALE):08x}")
    for k in range(16):
        a(f"    v_lshlrev_b32 v{t0}, 16, v{WQ + k}")
        a(f"    v_and_b32 v{t1}, 0xffff0000, v{WQ + k}")
        a(f"    v_mul_f32 v{t0}, s{S_T0}, v{t0}")
        a(f"    v_mul_f32 v{t1}, s{S_T0}, v{t1}")
        a(f"    v_cvt_pk_bf16_f32 v{WQ + k}, v{t0}, v{t1}")
    a(f"    s_mov_b32 s{S_IT}, 0")
    a(f"    s_mov_b32 s{S_LO}, 0x{f32bits(L_LO):08x}")
    a(f"    s_mov_b32 s{S_HI}, 0x{f32bits(L_HI):08x}")
    if STAMP:
        a("    s_waitcnt lgkmcnt(0)")
        a("    s_memtime s[88:89]")
    if PROG:
        a(f"    s_mov_b32 s{S_E1}, s{S_NXT}")
        a(f"    s_add_u32 s{S_NXT}, s{S_NXT}, {NWG * 2 * 12800}")
        a(f"    s_add_u32 s{S_L1 + 1}, s{S_LDSP}, {BSTR}")
        a(f"    s_lshl_b32 s{S_T0}, s{S_HEAD}, 10")
        a(f"    s_add_u32 s{S_L1}, s{S_L1 + 1}, s{S_T0}")
        a(f"    s_add_u32 s{S_LDSN}, s{S_LDSP}, {2 * BSTR}")
        a("    s_waitcnt vmcnt(5) lgkmcnt(0)")
    elif INDMA:
        a("    s_waitcnt vmcnt(7)")
        a(f"    s_add_u32 s{S_LDSN}, s{S_LDSP}, {2 * BSTR}")
    return P


def main():
    out = []
    a = out.append
    hdr = open('standalone__attention_interact_autoint__recsys.s.ref').read().split('\n')
    for line in hdr:
        if line.startswith('; @launch'):
            a(f"; @launch grid=({NWG},1,1) block=(256,1,1) lds={LDS_TOTAL}")
        elif line.startswith(';'):
            a(line)
        else:
            break
    a('.amdgcn_target "amdgcn-amd-amdhsa--gfx950"')
    a(".text")
    a(f".globl {KN}")
    a(".p2align 8")
    a(f".type {KN},@function")
    a(f"{KN}:")
    out += prologue()
    if STAMP:
        a("    s_memtime s[68:69]")
        a("    s_waitcnt lgkmcnt(0)")
    if NOBAR:
        a("    s_barrier")
    a("L_loop:")
    if STAMP == 2:
        a("    s_memtime s[90:91]")
        a("    s_waitcnt lgkmcnt(0)")
    if INDMA:
        if CONDDMA:
            a(f"    s_cmp_lg_u32 s{S_IT}, 3")
            a("    s_cbranch_scc1 L_w14")
            a("    s_waitcnt vmcnt(7)")
            a("L_w14:")
        a("    s_waitcnt vmcnt(14)")
    else:
        a(f"    s_cmp_eq_u32 s{S_IT}, 2")
        a("    s_cbranch_scc1 L_w21")
        a("    s_waitcnt vmcnt(14)")
        a("L_w21:")
        a("    s_waitcnt vmcnt(21)")
    if not NOBAR:
        a("    s_barrier")
    if STAMP:
        a("    s_memtime s[80:81]")
        a("    s_waitcnt lgkmcnt(0)")
        for k in range(4):
            a(f"    s_cmp_eq_u32 s{S_IT}, {k}")
            a(f"    s_cselect_b32 s{70+k}, s80, s{70+k}")
            if STAMP == 2 and k >= 1:
                a(f"    s_cselect_b32 s{82+2*k}, s90, s{82+2*k}")
    if INDMA:
        a(f"    s_lshl_b32 s{S_T0}, s{S_HEAD}, 10")
        a(f"    s_add_u32 s{S_LDSH}, s{S_LDSN}, s{S_T0}")
    else:
        a(f"    s_cmp_lg_u32 s{S_IT}, 1")
        a("    s_cbranch_scc1 L_nodma")
        out += dma_lines(0)
        a("L_nodma:")
    a(f"    v_mov_b32 v{V_LMAX}, 0")
    a(f"    v_mov_b32 v{V_LMIN}, 1.0")
    body = unit_body()
    if NOMEM & 1:
        body = [x for x in body if x.kind != 'dma']
    if NOMEM & 2:
        body = [x for x in body if x.kind != 'store']
    if NOSCHED:
        sched, est = body, 0
    else:
        best = None
        for sd in range(int(opts.get('seed', 0)), int(opts.get('seed', 0)) + int(opts.get('tries', 1))):
            sc, es = schedule3(body, window=WINDOW, noise=float(opts.get('noise', 0)), seed=sd, pool_lo=int(opts.get('pool', 64)), horizon=int(opts.get('hor', 48)), prebuilt=best is not None)
            ln, _ = finalize(sc)
            T2 = sim.simulate(ln, nwaves=2)[0]
            if best is None or T2 < best[0]:
                best = (T2, sc, es, sd)
        _, sched, est, sd = best
        sys.stderr.write(f"best seed {sd}\n")
    lines, nnop = finalize(sched)
    for nw in (1, 2):
        T, marks, busy = sim.simulate(lines, nwaves=nw)
        sys.stderr.write(f"sim waves={nw}: per unit {T/(4*nw):.0f} busy {busy/(4*nw):.0f}\n")
    if ICW:
        cand = [i for i in range(len(lines) - 1) if lines[i].strip().startswith('v_mfma_f32_16x16x32') and lines[i + 1].strip().startswith('v_')]
        pick = cand[ICW // 2::ICW]
        nst = len(pick) // 4 * 4
        pick = pick[:nst]
        per = nst // 4
        for k, i in reversed(list(enumerate(pick))):
            tgt = "L_tret" if (k + 1) % per == 0 else f"L_t{k + 1}"
            lines.insert(i + 1, f"L_t{k}:\n    s_cbranch_execz {tgt}")
        idx = out.index("    ;ICW")
        hop = ["    s_mov_b64 exec, 0"]
        for w in range(4):
            hop += [f"    s_cmp_eq_u32 s{S_WAVE}, {w}", f"    s_cbranch_scc1 L_t{w * per}"]
        hop += ["L_tret:", "    s_mov_b64 exec, -1"]
        out[idx:idx + 1] = hop
        sys.stderr.write(f"icw stubs {nst}\n")
    sys.stderr.write(f"unit body: {len(body)} instrs, est {est} cycles, {nnop} nop states, vgprs {A.n}\n")
    out += lines
    if SAFE:
        a(f"    v_cmp_lt_f32 vcc, s{S_HI}, v{V_LMAX}")
        a(f"    v_cmp_gt_f32 s[28:29], s{S_LO}, v{V_LMIN}")
        a("    s_nop 1")
        a("    s_or_b64 vcc, vcc, s[28:29]")
        if FORCE_SAFE:
            a("    s_branch L_safe")
        a("    s_cbranch_scc1 L_safe")
        a("L_next:")
    a(f"    s_cmp_eq_u32 s{S_IT}, 2")
    a(f"    s_cselect_b32 s{S_DEL}, {(-2 * BSTR) & 0xffffffff}, {BSTR}" if False else f"    s_mov_b32 s{S_DEL}, {BSTR}")
    a(f"    s_cselect_b32 s{S_DEL}, {(-2 * BSTR) & 0xffffffff}, s{S_DEL}")
    for k in range(4):
        a(f"    v_add_u32 v{V_LA[k]}, s{S_DEL}, v{V_LA[k]}")
    a(f"    s_add_u32 s{S_CUR}, s{S_CUR}, {NWG * 2 * 12800}")
    if INDMA:
        a(f"    s_add_u32 s{S_NXT}, s{S_NXT}, {NWG * 2 * 12800}")
        a(f"    s_cmp_eq_u32 s{S_IT}, 0")
        a(f"    s_mov_b32 s{S_DEL}, {BSTR}")
        a(f"    s_cselect_b32 s{S_DEL}, {(-2 * BSTR) & 0xffffffff}, s{S_DEL}")
        a(f"    s_add_u32 s{S_LDSN}, s{S_LDSN}, s{S_DEL}")
    a(f"    s_add_u32 s{S_IT}, s{S_IT}, 1")
    if PRIO:
        for k in (1, 2, 3):
            a(f"    s_cmp_lg_u32 s{S_IT}, {k}")
            a(f"    s_cbranch_scc1 L_p{k}")
            a(f"    s_setprio {3 - k}")
            a(f"L_p{k}:")
    a(f"    s_cmp_lt_u32 s{S_IT}, {NIT}")
    a("    s_cbranch_scc1 L_loop")
    if STAMP:
        a("    s_memtime s[74:75]")
        a("    s_waitcnt vmcnt(0)")
        a("    s_memtime s[76:77]")
        a("    s_memrealtime s[78:79]")
        a("    s_waitcnt lgkmcnt(0)")
        a(f"    s_lshl_b32 s82, s2, 2")
        a(f"    s_add_u32 s82, s82, s{S_WAVE}")
        a(f"    s_lshl_b32 s82, s82, 6")
        a(f"    v_mov_b32 v2, s82")
        regs = [92, 93, 64, 66, 68, 70, 71, 72, 73, 74, 76, 78, 84, 86, 88]
        for k, r in enumerate(regs):
            a(f"    v_mov_b32 v3, s{r}")
            a(f"    global_store_dword v2, v3, s[62:63] offset:{4*k}")
    if DBGT:
        a("    s_waitcnt vmcnt(0)")
        a("    s_memrealtime s[78:79]")
        a("    s_memtime s[76:77]")
        a("    s_waitcnt lgkmcnt(0)")
        a("    s_and_b32 s70, s2, 63")
        a("    s_cmp_lg_u32 s70, 63")
        a("    s_cbranch_scc1 L_done")
        a(f"    s_cmp_lg_u32 s{S_WAVE}, 0")
        a("    s_cbranch_scc1 L_done")
        a("    s_lshr_b32 s70, s2, 6")
        a("    s_lshl_b32 s70, s70, 3")
        a("    v_mov_b32 v2, s70")
        a("    v_mov_b32 v4, s66")
        a("    v_mov_b32 v5, s78")
        a("    s_mov_b64 exec, 1")
        a("    global_store_dwordx2 v2, v[4:5], s[62:63]")
    if REP > 1:
        a("    s_add_u32 s63, s63, 1")
        a(f"    s_cmp_ge_u32 s63, {REP}")
        a("    s_cbranch_scc1 L_done")
        a("    s_waitcnt vmcnt(0) lgkmcnt(0)")
        a("    s_barrier")
        a("    v_mbcnt_lo_u32_b32 v0, -1, 0")
        a("    v_mbcnt_hi_u32_b32 v0, -1, v0")
        a(f"    s_lshl_b32 s62, s{S_WAVE}, 6")
        a("    v_add_u32 v0, s62, v0")
        a("    s_branch L_rep")
    a("L_done:")
    a("    s_endpgm")
    if SAFE:
        a("L_safe:")
        a("    s_waitcnt vmcnt(0)")
        lines, _ = finalize(safe_body())
        out += lines
        a("    s_nop 7")
        a("    s_branch L_next")
    a('.section .rodata,"a"')
    a(".p2align 6")
    a(f".amdhsa_kernel {KN}")
    a(f"  .amdhsa_next_free_vgpr {NVGPR}")
    a(f"  .amdhsa_next_free_sgpr {100 if (STAMP or DBGT) else 64}")
    a(f"  .amdhsa_accum_offset {NVGPR}")
    a("  .amdhsa_group_segment_fixed_size 0")
    a("  .amdhsa_kernarg_size 64")
    a("  .amdhsa_user_sgpr_count 2")
    a("  .amdhsa_user_sgpr_kernarg_segment_ptr 1")
    a("  .amdhsa_system_sgpr_workgroup_id_x 1")
    a(".end_amdhsa_kernel")
    open(sys.argv[1], 'w').write("\n".join(out) + "\n")


main()
```

```python
import re
from sim import classify
def simulate(lines, nwaves=2, dslat=128, offset=1500, vmcost=16, dmacost=60):
    L2 = []
    for l in lines: L2 += l.split('\n')
    prog = []
    for l in L2:
        c = classify(l)
        if not c: continue
        t = l.strip()
        if t.startswith('s_setprio'): c = ('prio', int(t.split()[1]), 0)
        elif c[0] == 'vm' and t.endswith('lds'): c = ('dma', 0, 0)
        prog.append(c)
    n = len(prog)
    pc = [0]*nwaves; nxt = [offset*w for w in range(nwaves)]; pr = [3]*nwaves
    dsq = [[] for _ in range(nwaves)]
    port = 0; pipe = 0; t = 0; busy = 0
    done = [None]*nwaves
    while any(d is None for d in done):
        for w in sorted(range(nwaves), key=lambda w: (-pr[w], w)):
            if done[w] is not None or nxt[w] > t: continue
            k, a, b = prog[pc[w]]
            ok = True
            if k in ('mfma', 'valu', 'trans'):
                if port > t: ok = False
                elif k == 'mfma' and pipe > t: ok = False
                else:
                    port = t + a; busy += a
                    if k == 'mfma': pipe = t + b; nxt[w] = t + 4
                    else: nxt[w] = t + a
            elif k == 'nop': nxt[w] = t + 4*a
            elif k == 'wait':
                q = [x for x in dsq[w] if x > t]; dsq[w] = q
                if len(q) > a: ok = False
                else: nxt[w] = t + 4
            elif k == 'ds': dsq[w].append(t + dslat); nxt[w] = t + 4
            elif k == 'vm': nxt[w] = t + vmcost
            elif k == 'dma': nxt[w] = t + dmacost
            elif k == 'prio': pr[w] = a; nxt[w] = t + 4
            else: nxt[w] = t + 4
            if ok:
                pc[w] += 1
                if pc[w] == n: done[w] = t
        t += 4
    return max(done), done, busy
```

```python
import sys, struct, math
sys.path.insert(0, 'gen')
from sched import Ins, vr, finalize
from sched3 import schedule3
import sim2

KN = "standalone__attention_interact_autoint__recsys_kernel"
NWG = 512
NIT = 4
EBYTES = 4096 * 100 * 64 * 2
ITSTR = NWG * 2 * 12800
BSTR = 12288
PSTR = 3 * BSTR
LDS_TOTAL = 81920
XSCR = 2 * PSTR
XROW = 224
WOFF = [BSTR, BSTR + 8192, BSTR + 16384, PSTR + BSTR]

opts = dict(a.split('=') for a in sys.argv[2:]) if len(sys.argv) > 2 else {}
def opt(k, d): return int(opts.get(k, d))
G = 2
TQI = opt('tqi', 3)
AH = opt('ah', 4)
QAH = opt('qah', 2)
QP2 = opt('qp2', 2)
E1E = opt('e1e', 1)
DELAY = opt('delay', 1)
FORCE_SAFE = opt('force_safe', 0)
NOSCHED = opt('nosched', 0)
WINDOW = opt('window', 300)
STAMP = opt('stamp', 0)
PRIO = opt('prio', 1)
RSB = opt('rsb', 0)
STF = opts.get('stf', 'sc1').replace('+', ' ')
LDF = opts.get('ldf', 'nt').replace('+', ' ')
NOMEM = opt('nomem', 0)


def f32bits(x):
    return struct.unpack('<I', struct.pack('<f', x))[0]


class Alloc:
    def __init__(self, start):
        self.n = start

    def get(self, k, align=2):
        self.n = (self.n + align - 1) // align * align
        r = self.n
        self.n += k
        return r


A = Alloc(2)
WQ = A.get(16); WK = A.get(16); WV = A.get(16); WR = A.get(16)
KP = A.get(28)
VP = [A.get(14), A.get(14)]
QT = A.get(4)
RT = A.get(8)
EB = [A.get(8) for _ in range(opt('neb', 2))]
PD = [A.get(4) for _ in range(opt('npd', 4))]
QP = [A.get(4) for _ in range(opt('nq', 3))]
SB = [A.get(8) for _ in range(opt('nsb', 3))]
PT = [A.get(2) for _ in range(opt('npt', 2))]
OA = [A.get(8) for _ in range(opt('no', 2))]
RA = [] if RSB else [A.get(8)]
LA = [A.get(4) for _ in range(opt('no', 2))]
ONES = A.get(4)
CB = A.get(4)
V_LA = [A.get(1, 1) for _ in range(2)]
V_DMA = A.get(1, 1)
V_ST = A.get(1, 1)
V_XW = A.get(1, 1)
V_XR = A.get(1, 1)
V_LMAX = 0
V_LMIN = 1
assert A.n <= 256, A.n
NVGPR = 256

S_E = 8; S_O = 12; S_W = 16
S_HEAD = 32; S_CUR = 33; S_IT = 35
S_RING = list(range(36, 44))
S_T0 = 45; S_T1 = 46; S_T2 = 47
S_LO = 48; S_HI = 49; S_WAVE = 52; S_PAIR = 53; S_LDSP = 54; S_LDSH = 55
S_TM = [56, 58, 60, 62]

BSHIFT = 40.0
L_LO = 2.0 ** -56
L_HI = 1.0
CSCALE = math.log2(math.e) / math.sqrt(32.0)


def r4(a): return f"v[{a}:{a + 3}]"
def r2(a): return f"v[{a}:{a + 1}]"


def mfma(d, a, b, c=None):
    if c is None:
        return Ins(f"v_mfma_f32_16x16x32_bf16 {r4(d)}, {r4(a)}, {r4(b)}, 0", 'mfma', vr(d, 4), vr(a, 4) + vr(b, 4))
    return Ins(f"v_mfma_f32_16x16x32_bf16 {r4(d)}, {r4(a)}, {r4(b)}, {r4(c)}", 'mfma', vr(d, 4), vr(a, 4) + vr(b, 4), vr(c, 4))


def mfmas(d, a, b, c):
    return Ins(f"v_mfma_f32_16x16x16_bf16 {r4(d)}, {r2(a)}, {r2(b)}, {r4(c)}", 'mfmas', vr(d, 4), vr(a, 2) + vr(b, 2), vr(c, 4))


def cvt(d, a, b):
    sa = "0" if a is None else f"v{a}"
    sb_ = "0" if b is None else f"v{b}"
    return Ins(f"v_cvt_pk_bf16_f32 v{d}, {sa}, {sb_}", 'valu', vr(d), ([] if a is None else vr(a)) + ([] if b is None else vr(b)))


def vexp(d, a):
    return Ins(f"v_exp_f32 v{d}, v{a}", 'trans', vr(d), vr(a))


def valu(text, defs, uses):
    return Ins(text, 'valu', defs, uses)


def salu(text, defs, uses):
    return Ins(text, 'salu', defs, uses)


class Ring:
    def __init__(self, items):
        self.items = items
        self.i = 0

    def next(self):
        r = self.items[self.i % len(self.items)]
        self.i += 1
        return r


SRD_E = [f's{S_E + i}' for i in range(4)]
SRD_O = [f's{S_O + i}' for i in range(4)]


def dma_pair(it, m, so):
    return [salu(f"s_add_u32 m0, s{S_LDSH}, {(it % 3) * BSTR + m * 4096}", ['m0', 'scc'], []),
            salu(f"s_add_u32 s{so}, s{S_CUR}, {it * ITSTR + m * 4096}", [f's{so}', 'scc'], []),
            Ins(f"buffer_load_dwordx4 v{V_DMA}, s[{S_E}:{S_E + 3}], s{so} offen {LDF} lds", 'dma', [], vr(V_DMA) + [f's{so}', 'm0']),
            Ins(f"buffer_load_dwordx4 v{V_DMA}, s[{S_E}:{S_E + 3}], s{so} offen offset:2048 {LDF} lds", 'dma', [], vr(V_DMA) + [f's{so}', 'm0'])]


def proj_t(w, eb, d0, d1):
    return [mfma(d0, w + 0, eb + 0), mfma(d1, w + 4, eb + 0), mfma(d0, w + 8, eb + 4, d0), mfma(d1, w + 12, eb + 4, d1)]


def pack4(k, d0, d1):
    return [cvt(k, d0, d0 + 1), cvt(k + 1, d0 + 2, d0 + 3), cvt(k + 2, d1, d1 + 1), cvt(k + 3, d1 + 2, d1 + 3)]


def kv_tile(t, eb, pd):
    d0, d1 = pd.next(), pd.next()
    L = proj_t(WK, eb, d0, d1) + pack4(KP + 4 * t, d0, d1)
    d0, d1 = pd.next(), pd.next()
    L += [mfma(d0, eb + 0, WV + 0), mfma(d1, eb + 0, WV + 4), mfma(d0, eb + 4, WV + 8, d0), mfma(d1, eb + 4, WV + 12, d1)]
    for u, d in ((0, d0), (1, d1)):
        v = VP[u] + 2 * t
        L += [cvt(v, d, d + 1), cvt(v + 1, d + 2, d + 3)]
    return L


def q_proj(eb, pd, q):
    d0, d1 = pd.next(), pd.next()
    return proj_t(WQ, eb, d0, d1) + pack4(q, d0, d1)


def out_pack(o):
    L = [cvt(o + j, o + 2 * j, o + 2 * j + 1) for j in range(4)]
    L += [valu(f"v_pk_max_i16 v{o + j}, v{o + j}, 0", vr(o + j), vr(o + j)) for j in range(4)]
    return L


def main_program():
    L = []
    eb = Ring(EB); pd = Ring(PD); qp = Ring(QP); sb = Ring(SB); pt = Ring(PT)
    oa = Ring(OA); la = Ring(LA); sr = Ring(S_RING)
    Q = {}; O = {}; LL = {}
    st = {'lprev': None, 'n': 0}
    done_kv = set()
    vm_marks = {}

    def nvm():
        return sum(1 for x in L if x.kind in ('dma', 'store') )

    FREE = 'free' if opt('freeds', 1) else ''
    gate = {}
    rdw = {}

    def sync(text, fake=()):
        return Ins(text, 'sync', list(fake), [], tag=FREE)

    def readE(it, t):
        e = eb.next()
        off = (it % 3) * BSTR + t * 2048
        X = []
        if it == 0 and t in (2, 4) and ('s', t) not in st:
            st[('s', t)] = 1
            X.append(sync(f"s_waitcnt vmcnt({(4 if t == 2 else 2) + nvm()})\n    s_barrier", vr(e, 4)))
            gate[0, t] = gate[0, t + 1] = X[-1]
        if it > 0 and ('b', it) not in st:
            st[('b', it)] = 1
            n = nvm() - vm_marks[it]
            txt = f"s_waitcnt vmcnt({n})\n    s_barrier"
            if PRIO:
                txt += f"\n    s_setprio {3 - it}"
            if STAMP:
                txt += f"\n    s_memtime s[{68 + 2 * it}:{69 + 2 * it}]\n    s_waitcnt lgkmcnt(0)"
            X.append(sync(txt, vr(e, 4)))
            for tt in range(6):
                gate[it, tt] = X[-1]
            X[-1].order_after += rdw.get(it - 2, [])
        R = [Ins(f"ds_read_b128 {r4(e)}, v{V_LA[0]} offset:{off}", 'dsr', vr(e, 4), vr(V_LA[0]), tag=FREE),
             Ins(f"ds_read_b128 {r4(e + 4)}, v{V_LA[1]} offset:{off}", 'dsr', vr(e + 4, 4), vr(V_LA[1]), tag=FREE),
             Ins("wait", 'wait', vr(e, 8), vr(e, 8))]
        if (it, t) in gate:
            R[0].order_after.append(gate[it, t]); R[1].order_after.append(gate[it, t])
        rdw.setdefault(it, []).append(R[2])
        X += R
        return e, X

    def qproj(it, i, e):
        Q[it, i] = qp.next()
        return q_proj(e, pd, Q[it, i])

    def kv(it, t):
        if (it, t) in done_kv or t > 5:
            return []
        done_kv.add((it, t))
        e, X = readE(it, t)
        if t < G:
            X += qproj(it, t, e)
        return X + kv_tile(t, e, pd)

    def step(it, i, p):
        X = []
        q = Q[it, i]
        if p == 0:
            O[it, i] = oa.next(); LL[it, i] = la.next()
        o = O[it, i]; l = LL[it, i]
        if p < 3:
            b = sb.next()
            X += [mfma(b, KP + 8 * p, q, CB), mfma(b + 4, KP + 8 * p + 4, q, CB)]
            X += [vexp(b + j, b + j) for j in (2, 3, 0, 1, 4, 5, 6, 7)]
            X += [cvt(b + 3, b + 2, b + 3), cvt(b + 2, b, b + 1), cvt(b + 4, b + 4, b + 5), cvt(b + 5, b + 6, b + 7)]
            z = p == 0
            X += [mfma(o, VP[0] + 4 * p, b + 2, None if z else o), mfma(o + 4, VP[1] + 4 * p, b + 2, None if z else o + 4),
                  mfma(l, ONES, b + 2, None if z else l)]
        else:
            s_ = pd.next(); pp = pt.next()
            X += [mfma(s_, KP + 24, q, CB), vexp(s_ + it, s_ + it)]
            X.append(cvt(pp + (it >> 1), s_ + it, None) if it % 2 == 0 else cvt(pp + (it >> 1), None, s_ + it))
            X += [mfmas(l, ONES, pp, l), mfmas(o, VP[0] + 12, pp, o), mfmas(o + 4, VP[1] + 12, pp, o + 4)]
        return X

    def lrange(l):
        X = []
        st['n'] += 1
        if st['n'] % 2 == 0:
            lp = st['lprev']
            X.append(valu(f"v_max3_f32 v{V_LMAX}, v{V_LMAX}, v{lp}, v{l}", vr(V_LMAX), vr(V_LMAX) + vr(lp) + vr(l)))
            X.append(valu(f"v_min3_f32 v{V_LMIN}, v{V_LMIN}, v{lp}, v{l}", vr(V_LMIN), vr(V_LMIN) + vr(lp) + vr(l)))
        st['lprev'] = l
        return X

    def lrange1(l):
        return [valu(f"v_max_f32 v{V_LMAX}, v{V_LMAX}, v{l}", vr(V_LMAX), vr(V_LMAX) + vr(l)),
                valu(f"v_min_f32 v{V_LMIN}, v{V_LMIN}, v{l}", vr(V_LMIN), vr(V_LMIN) + vr(l))]

    def res(it, i):
        e, X = readE(it, i)
        r = sb.next() if RSB else RA[0]
        return r, X + proj_t(WR, e, r, r + 4)

    def fin(it, i, r):
        o = O[it, i]; l = LL[it, i]; inv = l + 1
        X = [Ins(f"v_rcp_f32 v{inv}, v{l}", 'trans', vr(inv), vr(l))]
        X += [valu(f"v_fma_f32 v{o + j}, v{o + j}, v{inv}, v{r + j}", vr(o + j), vr(o + j) + vr(inv) + vr(r + j)) for j in range(8)]
        X += out_pack(o)
        so = sr.next()
        X.append(salu(f"s_add_u32 s{so}, s{S_CUR}, {it * ITSTR + i * 2048}", [f's{so}', 'scc'], []))
        X.append(Ins(f"buffer_store_dwordx4 {r4(o)}, v{V_ST}, s[{S_O}:{S_O + 3}], s{so} offen {STF}", 'store', [], vr(o, 4) + vr(V_ST) + [f's{so}']))
        return X + lrange(l)

    def tailq_scores(it):
        X = []
        xs = sb.next()
        for t in range(7):
            d = pd.next()
            X += [mfma(d, QT, KP + 4 * t, CB), vexp(xs + t, d + it)]
        X.append(valu(f"v_cndmask_b32 v{xs + 6}, 0, v{xs + 6}, s[{S_TM[it]}:{S_TM[it] + 1}]", vr(xs + 6), vr(xs + 6)))
        for k in range(4):
            X.append(cvt(xs + 2 * k, xs + 2 * k, xs + 2 * k + 1 if k < 3 else None))
            X.append(Ins(f"ds_write_b16 v{V_XW}, v{xs + 2 * k} offset:{64 * k}", 'dsw', [], vr(V_XW) + vr(xs + 2 * k)))
            if k < 3:
                X.append(Ins(f"ds_write_b16_d16_hi v{V_XW}, v{xs + 2 * k} offset:{64 * k + 32}", 'dsw', [], vr(V_XW) + vr(xs + 2 * k)))
        return X

    def tailq_pv(it):
        X = []
        o = oa.next(); l = la.next()
        b0 = eb.next(); b1 = eb.next()
        pr = [b0, b0 + 4, b1, b1 + 4]
        for p in range(3):
            X.append(Ins(f"ds_read2_b64 {r4(pr[p])}, v{V_XR} offset0:{8 * p} offset1:{8 * p + 4}", 'dsr', vr(pr[p], 4), vr(V_XR)))
        X.append(Ins(f"ds_read_b64 {r2(pr[3])}, v{V_XR} offset:192", 'dsr', vr(pr[3], 2), vr(V_XR)))
        X.append(Ins("wait", 'wait', vr(b0, 8) + vr(b1, 6), vr(b0, 8) + vr(b1, 6)))
        for p in range(3):
            z = p == 0
            X += [mfma(l, ONES, pr[p], None if z else l), mfma(o, VP[0] + 4 * p, pr[p], None if z else o),
                  mfma(o + 4, VP[1] + 4 * p, pr[p], None if z else o + 4)]
        X += [mfmas(l, ONES, pr[3], l), mfmas(o, VP[0] + 12, pr[3], o), mfmas(o + 4, VP[1] + 12, pr[3], o + 4)]
        inv = l + 1
        X.append(Ins(f"v_rcp_f32 v{inv}, v{l}", 'trans', vr(inv), vr(l)))
        X.append(valu(f"v_cndmask_b32 v{inv}, 0, v{inv}, s[{S_TM[it]}:{S_TM[it] + 1}]", vr(inv), vr(inv)))
        X += [valu(f"v_fma_f32 v{RT + j}, v{o + j}, v{inv}, v{RT + j}", vr(RT + j), vr(o + j) + vr(inv) + vr(RT + j)) for j in range(8)]
        return X + lrange(l)

    def dma(it, m):
        X = dma_pair(it, m, sr.next())
        X[0].order_after.append(L[-1])
        return X

    et = RA[0]

    def tail_proj():
        X = [Ins(f"s_waitcnt vmcnt({nvm()})", 'sync', vr(et, 8), [], tag=FREE)]
        X[0].order_after.append(L[-1])
        return X + kv_tile(6, et, pd) + q_proj(et, pd, QT) + proj_t(WR, et, RT, RT + 4)

    def tail_store():
        x = pd.next()
        x0, x1, x2, x3 = x, x + 1, x + 2, x + 3
        so = sr.next(); s1 = sr.next(); s2_ = sr.next()
        X = out_pack(RT)
        X += [valu(f"v_mbcnt_lo_u32_b32 v{x0}, -1, 0", vr(x0), []),
              valu(f"v_mbcnt_hi_u32_b32 v{x0}, -1, v{x0}", vr(x0), vr(x0)),
              valu(f"v_lshrrev_b32 v{x1}, 4, v{x0}", vr(x1), vr(x0)),
              valu(f"v_bfe_u32 v{x2}, v{x0}, 2, 2", vr(x2), vr(x0)),
              valu(f"v_and_b32 v{x0}, 3, v{x0}", vr(x0), vr(x0)),
              salu(f"s_mov_b32 s{s1}, {ITSTR}", [f's{s1}'], []),
              valu(f"v_mul_lo_u32 v{x3}, v{x0}, s{s1}", vr(x3), vr(x0) + [f's{s1}']),
              valu(f"v_lshl_add_u32 v{x3}, v{x2}, 7, v{x3}", vr(x3), vr(x2) + vr(x3)),
              valu(f"v_lshl_add_u32 v{x3}, v{x1}, 4, v{x3}", vr(x3), vr(x1) + vr(x3)),
              salu(f"s_lshl_b32 s{s2_}, s{S_HEAD}, 6", [f's{s2_}', 'scc'], []),
              salu(f"s_add_u32 s{so}, s{S_CUR}, s{s2_}", [f's{so}', 'scc'], [f's{s2_}']),
              salu(f"s_add_u32 s{so}, s{so}, {96 * 128}", [f's{so}', 'scc'], [f's{so}']),
              Ins(f"buffer_store_dwordx4 {r4(RT)}, v{x3}, s[{S_O}:{S_O + 3}], s{so} offen {STF}", 'store', [], vr(RT, 4) + vr(x3) + [f's{so}'])]
        return X
    for it in range(NIT):
        dq = []
        if it == 0:
            dq = [(1, 0), (1, 1), (1, 2), (2, 0), (2, 1), (2, 2)]
        elif it == 2:
            dq = [(3, 0), (3, 1), (3, 2)]

        def pop_dma():
            if dq:
                b, m = dq.pop(0)
                X = dma(b, m)
                L.extend(X)
                if m == 2:
                    vm_marks[b] = nvm()
        L += kv(it, 0)
        if it == 0 and E1E >= 2:
            pop_dma()
        L += kv(it, 1)
        if it == 0 and E1E >= 2:
            pop_dma()
        if it == 2:
            for pp in PT:
                L.append(valu(f"v_mov_b32 v{pp}, 0", vr(pp), []))
        for p in range(4):
            nxt = [t for t in (2 * p + 2, 2 * p + 3) if t < 6]
            for i in range(G):
                L += step(it, i, p)
                if it > 0 or (len(dq) > 3 and (p >= 2 or E1E)):
                    pop_dma()
                if nxt:
                    L += kv(it, nxt.pop(0))
            if p == 1 and it == 0:
                L += tail_proj()
            if p == 2:
                e, X = readE(it, G)
                L += X + qproj(it, G, e)
        for i in range(G):
            if QAH == 2 and i == 0:
                e, X = readE(it, G + 1)
                L += X + qproj(it, G + 1, e)
            r, X = res(it, i)
            L += X + fin(it, i, r)
        for i in range(G, 6):
            for p in range(4):
                L += step(it, i, p)
                if p == 2:
                    pop_dma()
                if QAH == 1 and p == 0 and i < 5:
                    e, X = readE(it, i + 1)
                    L += X + qproj(it, i + 1, e)
                if QAH == 2 and p == QP2 and i < 4:
                    e, X = readE(it, i + 2)
                    L += X + qproj(it, i + 2, e)
                if i == TQI and p == 1:
                    L += tailq_scores(it)
                if p == 1:
                    r, X = res(it, i)
                    L += X
                if i == 5 and it + 1 < NIT:
                    for t in (2 * p, 2 * p + 1):
                        if t < AH:
                            L += kv(it + 1, t)
            L += fin(it, i, r)
            if i == TQI:
                L += tailq_pv(it)
                if it == NIT - 1:
                    L += tail_store()
        assert not dq
    return L


def safe_program():
    L = []
    pd = Ring(PD)
    e = EB[0]; q = QP[0]; r = RT; o = OA[0]; l = LA[0]; s6 = OA[1]; pp = PT[0]
    m = LA[1]; m2 = LA[1] + 1
    va, vt, vst = V_XW, V_XR, V_DMA

    def load(t):
        a_ = va if t < 6 else vt
        X = [salu(f"s_add_u32 s{S_T0}, s{S_T2}, {t * 2048}", [f's{S_T0}', 'scc'], [])]
        X.append(Ins(f"buffer_load_dwordx4 {r4(e)}, v{a_}, s[{S_E}:{S_E + 3}], s{S_T0} offen\n"
                     f"    buffer_load_dwordx4 {r4(e + 4)}, v{a_}, s[{S_E}:{S_E + 3}], s{S_T0} offen offset:64\n"
                     f"    s_waitcnt vmcnt(0)", 'load', vr(e, 8), vr(a_) + [f's{S_T0}']))
        return X
    for t in range(7):
        L += load(t) + kv_tile(t, e, pd)
    for i in range(7):
        L += load(i) + q_proj(e, pd, q) + proj_t(WR, e, r, r + 4)
        for p in range(3):
            b = SB[p]
            L += [mfma(b, KP + 8 * p, q), mfma(b + 4, KP + 8 * p + 4, q)]
        L.append(mfma(s6, KP + 24, q))
        regs = [SB[p] + j for p in range(3) for j in range(8)]
        L.append(valu(f"v_mov_b32 v{m}, v{s6}", vr(m), vr(s6)))
        for k in range(0, 24, 2):
            L.append(valu(f"v_max3_f32 v{m}, v{m}, v{regs[k]}, v{regs[k + 1]}", vr(m), vr(m) + vr(regs[k]) + vr(regs[k + 1])))
        for sw in ("v_permlane16_swap_b32", "v_permlane32_swap_b32"):
            L.append(valu(f"v_mov_b32 v{m2}, v{m}", vr(m2), vr(m)))
            L.append(Ins(f"{sw} v{m}, v{m2}", 'perm', vr(m) + vr(m2), vr(m) + vr(m2)))
            L.append(valu(f"v_max_f32 v{m}, v{m}, v{m2}", vr(m), vr(m) + vr(m2)))
        for x in regs + [s6]:
            L.append(valu(f"v_sub_f32 v{x}, v{x}, v{m}", vr(x), vr(x) + vr(m)))
            L.append(vexp(x, x))
        for p in range(3):
            b = SB[p]
            L += [cvt(b + 3, b + 2, b + 3), cvt(b + 2, b, b + 1), cvt(b + 4, b + 4, b + 5), cvt(b + 5, b + 6, b + 7)]
            z = p == 0
            L += [mfma(o, VP[0] + 4 * p, b + 2, None if z else o), mfma(o + 4, VP[1] + 4 * p, b + 2, None if z else o + 4),
                  mfma(l, ONES, b + 2, None if z else l)]
        L.append(cvt(pp, s6, None))
        L += [mfmas(o, VP[0] + 12, pp, o), mfmas(o + 4, VP[1] + 12, pp, o + 4), mfmas(l, ONES, pp, l)]
        inv = l + 1
        L.append(Ins(f"v_rcp_f32 v{inv}, v{l}", 'trans', vr(inv), vr(l)))
        L += [valu(f"v_fma_f32 v{o + j}, v{o + j}, v{inv}, v{r + j}", vr(o + j), vr(o + j) + vr(inv) + vr(r + j)) for j in range(8)]
        L += out_pack(o)
        a_ = V_ST if i < 6 else vst
        L.append(salu(f"s_add_u32 s{S_T1}, s{S_T2}, {i * 2048}", [f's{S_T1}', 'scc'], []))
        L.append(Ins(f"buffer_store_dwordx4 {r4(o)}, v{a_}, s[{S_O}:{S_O + 3}], s{S_T1} offen {STF}", 'store', [], vr(o, 4) + vr(a_) + [f's{S_T1}']))
    return L


def lane_ids(a, lane, g, c):
    a(f"    v_mbcnt_lo_u32_b32 v{lane}, -1, 0")
    a(f"    v_mbcnt_hi_u32_b32 v{lane}, -1, v{lane}")
    a(f"    v_lshrrev_b32 v{g}, 4, v{lane}")
    a(f"    v_and_b32 v{c}, 15, v{lane}")


def prologue():
    P = []
    a = P.append
    a(f"    s_cmp_ge_u32 s2, {NWG}")
    a("    s_cbranch_scc1 L_done")
    if PRIO:
        a("    s_setprio 3")
    if STAMP:
        a("    s_memtime s[64:65]")
        a("    s_memrealtime s[66:67]")
        a("    s_load_dwordx2 s[90:91], s[0:1], 56")
        a("    s_getreg_b32 s93, hwreg(HW_REG_HW_ID)")
        a("    s_getreg_b32 s92, hwreg(HW_REG_XCC_ID)")
    a("    v_lshrrev_b32 v1, 6, v0")
    a("    s_load_dwordx2 s[4:5], s[0:1], 0")
    a("    s_load_dwordx2 s[26:27], s[0:1], 40")
    a(f"    v_readfirstlane_b32 s{S_WAVE}, v1")
    a("    v_and_b32 v2, 63, v0")
    a("    v_and_b32 v1, 1, v1")
    a("    v_lshrrev_b32 v3, 4, v2")
    a(f"    s_lshl_b32 s{S_T0}, s{S_WAVE}, 3")
    a(f"    s_add_u32 s20, s0, s{S_T0}")
    a("    s_addc_u32 s21, s1, 0")
    a("    s_load_dwordx2 s[6:7], s[20:21], 8")
    a(f"    s_and_b32 s{S_HEAD}, s{S_WAVE}, 1")
    a(f"    s_lshr_b32 s{S_PAIR}, s{S_WAVE}, 1")
    a("    v_and_b32 v4, 15, v2")
    a("    v_lshlrev_b32 v8, 4, v2")
    a(f"    s_mul_i32 s{S_LDSP}, s{S_PAIR}, {PSTR}")
    a(f"    s_lshl_b32 s{S_T0}, s{S_HEAD}, 10")
    a(f"    s_add_u32 s{S_LDSH}, s{S_LDSP}, s{S_T0}")
    a("    v_lshrrev_b32 v6, 3, v2")
    a("    v_and_b32 v7, 7, v2")
    a("    v_lshrrev_b32 v10, 1, v6")
    a("    v_xor_b32 v7, v7, v10")
    a("    v_lshlrev_b32 v10, 7, v6")
    a("    v_lshl_add_u32 v10, v7, 4, v10")
    a("    v_lshlrev_b32 v11, 6, v1")
    a("    v_xor_b32 v11, v10, v11")
    a(f"    v_lshl_add_u32 v{V_DMA}, v1, 10, v11")
    a("    v_and_b32 v7, 3, v4")
    a(f"    s_mov_b32 s{S_T0}, {ITSTR}")
    a(f"    v_mul_lo_u32 v7, v7, s{S_T0}")
    a("    v_lshrrev_b32 v6, 2, v4")
    a("    v_lshl_add_u32 v7, v6, 7, v7")
    a("    v_lshl_add_u32 v9, v3, 4, v7")
    a(f"    s_lshl_b32 s{S_CUR}, s2, 1")
    a(f"    s_add_u32 s{S_CUR}, s{S_CUR}, s{S_PAIR}")
    a(f"    s_mul_i32 s{S_CUR}, s{S_CUR}, 12800")
    a(f"    s_lshl_b32 s{S_T1}, s{S_WAVE}, 13")
    a(f"    s_add_u32 s{S_T1}, s{S_T1}, {WOFF[0]}")
    a(f"    s_cmp_eq_u32 s{S_WAVE}, 3")
    a(f"    s_cselect_b32 s{S_T1}, {WOFF[3]}, s{S_T1}")
    a(f"    s_mov_b32 s{S_W + 2}, 8192"); a(f"    s_mov_b32 s{S_W + 3}, 0x00020000")
    a(f"    s_mov_b32 s{S_E + 2}, {EBYTES}"); a(f"    s_mov_b32 s{S_E + 3}, 0x00020000")
    a(f"    s_mov_b32 s{S_O + 2}, {EBYTES}"); a(f"    s_mov_b32 s{S_O + 3}, 0x00020000")
    a(f"    s_movk_i32 s{S_T2}, 4096")
    a(f"    s_mov_b32 m0, s{S_T1}")
    a(f"    s_add_u32 s{S_RING[3]}, s{S_CUR}, {96 * 128}")
    a("    s_waitcnt lgkmcnt(0)")
    if STAMP:
        a("    s_memtime s[84:85]")
    a(f"    s_mov_b32 s{S_W}, s6"); a(f"    s_and_b32 s{S_W + 1}, s7, 0xffff")
    a(f"    s_mov_b32 s{S_E}, s4"); a(f"    s_and_b32 s{S_E + 1}, s5, 0xffff")
    for k in range(4):
        a(f"    buffer_load_dwordx4 v8, s[{S_W}:{S_W + 3}], 0 offen offset:{k * 1024} lds")
    a(f"    s_add_u32 m0, s{S_T1}, 4096")
    a(f"    s_mov_b32 s{S_O}, s26"); a(f"    s_and_b32 s{S_O + 1}, s27, 0xffff")
    for k in range(4):
        a(f"    buffer_load_dwordx4 v8, s[{S_W}:{S_W + 3}], s{S_T2} offen offset:{k * 1024} lds")
    et = RA[0]
    e0 = []
    for m in range(3):
        e0 += finalize(dma_pair(0, m, S_RING[m]))[0]
    e0 += [f"    buffer_load_dwordx4 {r4(et)}, v{LA[0]}, s[{S_E}:{S_E + 3}], s{S_RING[3]} offen",
           f"    buffer_load_dwordx4 {r4(et + 4)}, v{LA[0]}, s[{S_E}:{S_E + 3}], s{S_RING[3]} offen offset:64"]
    a(f"    v_mov_b32 v{LA[0]}, v9")
    if DELAY:
        a(f"    s_cmp_ge_u32 s2, {NWG // 2}")
        a("    s_cbranch_scc1 L_late0")
    if PRIO:
        a("    s_setprio 2")
    P.extend(e0)
    if PRIO:
        a("    s_setprio 3")
    if DELAY:
        a("L_late0:")
    a("    v_lshlrev_b32 v5, 7, v4")
    a("    v_lshl_add_u32 v5, v3, 4, v5")
    a(f"    v_lshl_add_u32 v{V_ST}, v1, 6, v5")
    a("    v_lshrrev_b32 v7, 1, v4")
    a("    v_xor_b32 v7, v3, v7")
    a("    v_lshlrev_b32 v6, 7, v4")
    a("    v_lshl_add_u32 v6, v7, 4, v6")
    a(f"    v_add_u32 v{V_LA[0]}, s{S_LDSP}, v6")
    a(f"    v_xor_b32 v{V_LA[1]}, 64, v{V_LA[0]}")
    a(f"    s_mul_i32 s{S_T0}, s{S_WAVE}, {4 * XROW}")
    a(f"    s_add_u32 s{S_T0}, s{S_T0}, {XSCR}")
    a(f"    v_mul_u32_u24 v6, {XROW}, v3")
    a("    v_lshl_add_u32 v6, v4, 1, v6")
    a(f"    v_add_u32 v{V_XW}, s{S_T0}, v6")
    a("    v_lshrrev_b32 v6, 2, v4")
    a(f"    v_mul_u32_u24 v6, {XROW}, v6")
    a("    v_lshl_add_u32 v6, v3, 3, v6")
    a(f"    v_add_u32 v{V_XR}, s{S_T0}, v6")
    for k in range(4):
        a(f"    v_mov_b32 v{ONES + k}, 0x3f803f80")
        a(f"    v_mov_b32 v{CB + k}, 0x{f32bits(-BSHIFT):08x}")
        a(f"    s_mov_b32 s{S_TM[k]}, 0x{0x11111111 << k:08x}")
        a(f"    s_mov_b32 s{S_TM[k] + 1}, 0x{0x11111111 << k:08x}")
    for pp in PT:
        a(f"    v_mov_b32 v{pp + 1}, 0")
    A0, A1, A2 = OA[0], OA[0] + 1, OA[0] + 2
    a("    v_lshrrev_b32 v10, 2, v4")
    a("    v_lshl_add_u32 v10, v3, 3, v10")
    a("    v_and_b32 v11, 3, v4")
    a("    v_lshlrev_b32 v12, 6, v10")
    a("    v_lshl_add_u32 v12, v1, 12, v12")
    a(f"    v_add_u32 v12, {WOFF[0]}, v12")
    a(f"    v_lshl_add_u32 v{A0}, v11, 3, v12")
    a(f"    v_lshl_add_u32 v{A1}, v11, 4, v12")
    a("    v_lshlrev_b32 v12, 7, v10")
    a("    v_lshl_add_u32 v12, v1, 6, v12")
    a("    v_lshl_add_u32 v12, v11, 4, v12")
    a(f"    v_add_u32 v{A2}, {WOFF[3]}, v12")
    a(f"    v_mov_b32 v{V_LMAX}, 0")
    a(f"    v_mov_b32 v{V_LMIN}, 1.0")
    if DELAY:
        a(f"    s_cmp_ge_u32 s2, {NWG // 2}")
        a("    s_cbranch_scc1 L_late1")
        a("    s_waitcnt vmcnt(8)")
        a("    s_barrier")
        a("    s_branch L_late2")
        a("L_late1:")
        a("    s_waitcnt vmcnt(0)")
        a("    s_barrier")
        P.extend(e0)
        a("L_late2:")
    else:
        a("    s_waitcnt vmcnt(8)")
        a("    s_barrier")
    if STAMP:
        a("    s_memtime s[86:87]")
        a("    s_waitcnt lgkmcnt(0)")

    def trread(base, moff, addr, tstride, rowb):
        for s_ in range(2):
            for t in range(2):
                for half in range(2):
                    off = moff + (32 * s_ + 4 * half) * rowb + t * tstride
                    a(f"    ds_read_b64_tr_b16 {r2(base + 8 * s_ + 4 * t + 2 * half)}, v{addr} offset:{off}")
    trread(WQ, 0, A0, 32, 64)
    trread(WK, 8192, A0, 32, 64)
    trread(WV, 16384, A1, 8, 64)
    trread(WR, 0, A2, 8, 128)
    a("    s_waitcnt lgkmcnt(15)")
    a("    s_waitcnt lgkmcnt(12)")
    t0, t1 = OA[1], OA[1] + 1
    a(f"    s_mov_b32 s{S_T0}, 0x{f32bits(CSCALE):08x}")
    for k in range(16):
        a(f"    v_lshlrev_b32 v{t0}, 16, v{WQ + k}")
        a(f"    v_and_b32 v{t1}, 0xffff0000, v{WQ + k}")
        a(f"    v_mul_f32 v{t0}, s{S_T0}, v{t0}")
        a(f"    v_mul_f32 v{t1}, s{S_T0}, v{t1}")
        a(f"    v_cvt_pk_bf16_f32 v{WQ + k}, v{t0}, v{t1}")
    a(f"    s_mov_b32 s{S_LO}, 0x{f32bits(L_LO):08x}")
    a(f"    s_mov_b32 s{S_HI}, 0x{f32bits(L_HI):08x}")
    a("    s_waitcnt vmcnt(6) lgkmcnt(0)")
    a("    s_barrier")
    if STAMP:
        a("    s_memtime s[68:69]")
        a("    s_waitcnt lgkmcnt(0)")
    return P


def main():
    out = []
    a = out.append
    hdr = open('standalone__attention_interact_autoint__recsys.s.ref').read().split('\n')
    for line in hdr:
        if line.startswith('; @launch'):
            a(f"; @launch grid=({NWG},1,1) block=(256,1,1) lds={LDS_TOTAL}")
        elif line.startswith(';'):
            a(line)
        else:
            break
    a('.amdgcn_target "amdgcn-amd-amdhsa--gfx950"')
    a(".text")
    a(f".globl {KN}")
    a(".p2align 8")
    a(f".type {KN},@function")
    a(f"{KN}:")
    out += prologue()
    body = main_program()
    if NOSCHED:
        sched, est = body, 0
    else:
        best = None
        for sd in range(opt('seed', 0), opt('seed', 0) + opt('tries', 1)):
            sc, es = schedule3(body, window=WINDOW, noise=float(opts.get('noise', 0)), seed=sd, pool_lo=opt('pool', 64), horizon=opt('hor', 48), prebuilt=best is not None)
            ln, _ = finalize(sc)
            T2 = sim2.simulate(ln, nwaves=2)[0]
            if best is None or T2 < best[0]:
                best = (T2, sc, es, sd)
        _, sched, est, sd = best
    lines, nnop = finalize(sched)
    msg = ""
    for nw in (1, 2):
        T, done, busy = sim2.simulate(lines, nwaves=nw)
        msg += f"sim{nw}: {T / (4 * nw):.0f}/unit (busy {busy / (4 * nw):.0f}) "
    sys.stderr.write(msg + f"| {len(body)} instrs, {nnop} nops, vgprs {A.n}\n")
    out += lines
    a(f"    v_cmp_lt_f32 vcc, s{S_HI}, v{V_LMAX}")
    a(f"    v_cmp_gt_f32 s[28:29], s{S_LO}, v{V_LMIN}")
    a("    s_nop 1")
    a("    s_or_b64 vcc, vcc, s[28:29]")
    if FORCE_SAFE:
        a("    s_branch L_safe")
    a("    s_cbranch_scc1 L_safe")
    a("L_end:")
    if STAMP:
        a("    s_memtime s[76:77]")
        a("    s_waitcnt vmcnt(0)")
        a("    s_memtime s[78:79]")
        a("    s_memrealtime s[80:81]")
        a("    s_waitcnt lgkmcnt(0)")
        a(f"    s_lshl_b32 s82, s2, 2")
        a(f"    s_add_u32 s82, s82, s{S_WAVE}")
        a(f"    s_lshl_b32 s82, s82, 6")
        a(f"    v_mov_b32 v2, s82")
        regs = [92, 93, 64, 66, 68, 68, 70, 72, 74, 76, 78, 80, 84, 86, 68]
        for k, r in enumerate(regs):
            a(f"    v_mov_b32 v3, s{r}")
            a(f"    global_store_dword v2, v3, s[90:91] offset:{4 * k}")
    a("L_done:")
    a("    s_endpgm")
    a("L_safe:")
    a("    s_waitcnt vmcnt(0)")
    x0, x1, x2, x3 = PD[0], PD[0] + 1, PD[0] + 2, PD[0] + 3
    lane_ids(a, x0, x1, x2)
    a(f"    v_and_b32 v{x0}, 3, v{x2}")
    a(f"    v_lshrrev_b32 v{x2}, 2, v{x2}")
    a(f"    v_lshlrev_b32 v{x2}, 7, v{x2}")
    a(f"    v_lshl_add_u32 v{x2}, v{x1}, 4, v{x2}")
    a(f"    s_lshl_b32 s{S_T0}, s{S_HEAD}, 6")
    a(f"    v_cmp_ne_u32 vcc, 0, v{x0}")
    a(f"    v_mov_b32 v{x3}, 0x7f000000")
    a(f"    v_subrev_u32 v{V_XW}, s{S_T0}, v{V_ST}")
    a(f"    v_cndmask_b32 v{V_XR}, v{x2}, v{x3}, vcc")
    a(f"    v_add_u32 v{V_DMA}, s{S_T0}, v{V_XR}")
    a(f"    v_mov_b32 v{PT[0] + 1}, 0")
    a(f"    s_mov_b32 s{S_T2}, s{S_CUR}")
    a(f"    s_mov_b32 s{S_IT}, 0")
    a("L_safe_loop:")
    lines, _ = finalize(safe_program())
    out += lines
    a("    s_nop 7")
    a(f"    s_add_u32 s{S_T2}, s{S_T2}, {ITSTR}")
    a(f"    s_add_u32 s{S_IT}, s{S_IT}, 1")
    a(f"    s_cmp_lt_u32 s{S_IT}, {NIT}")
    a("    s_cbranch_scc1 L_safe_loop")
    a("    s_branch L_end")
    a('.section .rodata,"a"')
    a(".p2align 6")
    a(f".amdhsa_kernel {KN}")
    a(f"  .amdhsa_next_free_vgpr {NVGPR}")
    a(f"  .amdhsa_next_free_sgpr {100 if STAMP else 64}")
    a(f"  .amdhsa_accum_offset {NVGPR}")
    a("  .amdhsa_group_segment_fixed_size 0")
    a("  .amdhsa_kernarg_size 64")
    a("  .amdhsa_user_sgpr_count 2")
    a("  .amdhsa_user_sgpr_kernarg_segment_ptr 1")
    a("  .amdhsa_system_sgpr_workgroup_id_x 1")
    a(".end_amdhsa_kernel")
    open(sys.argv[1], 'w').write("\n".join(out) + "\n")


main()
```

```python
import sys, struct, math
sys.path.insert(0, 'gen')
from sched import Ins, vr, finalize
from sched3 import schedule3
import sim2

KN = "standalone__attention_interact_autoint__recsys_kernel"
NWG = 512
NIT = 4
EBYTES = 4096 * 100 * 64 * 2
ITSTR = NWG * 2 * 12800
BSTR = 12288
PSTR = 3 * BSTR
LDS_TOTAL = 81920
XSCR = 2 * PSTR
XROW = 224
WOFF = [BSTR, BSTR + 8192, BSTR + 16384, PSTR + BSTR]

opts = dict(a.split('=') for a in sys.argv[2:]) if len(sys.argv) > 2 else {}
def opt(k, d): return int(opts.get(k, d))
G = 2
MAP = opt('map', 2)
if MAP:
    ITSTR = 2 * 12800
TQI = opt('tqi', 3)
AH = opt('ah', 4)
QAH = opt('qah', 2)
QP2 = opt('qp2', 2)
E1E = opt('e1e', 0)
DELAY = opt('delay', 1)
FORCE_SAFE = opt('force_safe', 0)
NOSCHED = opt('nosched', 0)
WINDOW = opt('window', 300)
STAMP = opt('stamp', 0)
PRIO = opt('prio', 1)
RSB = opt('rsb', 0)
STF = opts.get('stf', 'sc1').replace('+', ' ')
LDF = opts.get('ldf', 'nt').replace('+', ' ')
NOMEM = opt('nomem', 0)


def f32bits(x):
    return struct.unpack('<I', struct.pack('<f', x))[0]


class Alloc:
    def __init__(self, start):
        self.n = start

    def get(self, k, align=2):
        self.n = (self.n + align - 1) // align * align
        r = self.n
        self.n += k
        return r


A = Alloc(2)
WQ = A.get(16); WK = A.get(16); WV = A.get(16); WR = A.get(16)
KP = A.get(28)
VP = [A.get(14), A.get(14)]
QT = A.get(4)
RT = A.get(8)
EB = [A.get(8) for _ in range(opt('neb', 2))]
PD = [A.get(4) for _ in range(opt('npd', 4))]
QP = [A.get(4) for _ in range(opt('nq', 3))]
SB = [A.get(8) for _ in range(opt('nsb', 3))]
PT = [A.get(2) for _ in range(opt('npt', 2))]
OA = [A.get(8) for _ in range(opt('no', 2))]
RA = [] if RSB else [A.get(8)]
LA = [A.get(4) for _ in range(opt('no', 2))]
ONES = A.get(4)
CB = A.get(4)
V_LA = [A.get(1, 1) for _ in range(2)]
V_DMA = A.get(1, 1)
V_ST = A.get(1, 1)
V_XW = A.get(1, 1)
V_XR = A.get(1, 1)
V_LMAX = 0
V_LMIN = 1
assert A.n <= 256, A.n
NVGPR = 256

S_E = 8; S_O = 12; S_W = 16
S_HEAD = 32; S_CUR = 33; S_IT = 35
S_RING = list(range(36, 44))
S_T0 = 45; S_T1 = 46; S_T2 = 47
S_LO = 48; S_HI = 49; S_WAVE = 52; S_PAIR = 53; S_LDSP = 54; S_LDSH = 55
S_TM = [56, 58, 60, 62]

BSHIFT = 40.0
L_LO = 2.0 ** -56
L_HI = 1.0
CSCALE = math.log2(math.e) / math.sqrt(32.0)


def r4(a): return f"v[{a}:{a + 3}]"
def r2(a): return f"v[{a}:{a + 1}]"


def mfma(d, a, b, c=None):
    if c is None:
        return Ins(f"v_mfma_f32_16x16x32_bf16 {r4(d)}, {r4(a)}, {r4(b)}, 0", 'mfma', vr(d, 4), vr(a, 4) + vr(b, 4))
    return Ins(f"v_mfma_f32_16x16x32_bf16 {r4(d)}, {r4(a)}, {r4(b)}, {r4(c)}", 'mfma', vr(d, 4), vr(a, 4) + vr(b, 4), vr(c, 4))


def mfmas(d, a, b, c):
    return Ins(f"v_mfma_f32_16x16x16_bf16 {r4(d)}, {r2(a)}, {r2(b)}, {r4(c)}", 'mfmas', vr(d, 4), vr(a, 2) + vr(b, 2), vr(c, 4))


def cvt(d, a, b):
    sa = "0" if a is None else f"v{a}"
    sb_ = "0" if b is None else f"v{b}"
    return Ins(f"v_cvt_pk_bf16_f32 v{d}, {sa}, {sb_}", 'valu', vr(d), ([] if a is None else vr(a)) + ([] if b is None else vr(b)))


def vexp(d, a):
    return Ins(f"v_exp_f32 v{d}, v{a}", 'trans', vr(d), vr(a))


def valu(text, defs, uses):
    return Ins(text, 'valu', defs, uses)


def salu(text, defs, uses):
    return Ins(text, 'salu', defs, uses)


class Ring:
    def __init__(self, items):
        self.items = items
        self.i = 0

    def next(self):
        r = self.items[self.i % len(self.items)]
        self.i += 1
        return r


SRD_E = [f's{S_E + i}' for i in range(4)]
SRD_O = [f's{S_O + i}' for i in range(4)]


def dma_pair(it, m, so):
    return [salu(f"s_add_u32 m0, s{S_LDSH}, {(it % 3) * BSTR + m * 4096}", ['m0', 'scc'], []),
            salu(f"s_add_u32 s{so}, s{S_CUR}, {it * ITSTR + m * 4096}", [f's{so}', 'scc'], []),
            Ins(f"buffer_load_dwordx4 v{V_DMA}, s[{S_E}:{S_E + 3}], s{so} offen {LDF} lds", 'dma', [], vr(V_DMA) + [f's{so}', 'm0']),
            Ins(f"buffer_load_dwordx4 v{V_DMA}, s[{S_E}:{S_E + 3}], s{so} offen offset:2048 {LDF} lds", 'dma', [], vr(V_DMA) + [f's{so}', 'm0'])]


def proj_t(w, eb, d0, d1):
    return [mfma(d0, w + 0, eb + 0), mfma(d1, w + 4, eb + 0), mfma(d0, w + 8, eb + 4, d0), mfma(d1, w + 12, eb + 4, d1)]


def pack4(k, d0, d1):
    return [cvt(k, d0, d0 + 1), cvt(k + 1, d0 + 2, d0 + 3), cvt(k + 2, d1, d1 + 1), cvt(k + 3, d1 + 2, d1 + 3)]


def kv_tile(t, eb, pd):
    d0, d1 = pd.next(), pd.next()
    L = proj_t(WK, eb, d0, d1) + pack4(KP + 4 * t, d0, d1)
    d0, d1 = pd.next(), pd.next()
    L += [mfma(d0, eb + 0, WV + 0), mfma(d1, eb + 0, WV + 4), mfma(d0, eb + 4, WV + 8, d0), mfma(d1, eb + 4, WV + 12, d1)]
    for u, d in ((0, d0), (1, d1)):
        v = VP[u] + 2 * t
        L += [cvt(v, d, d + 1), cvt(v + 1, d + 2, d + 3)]
    return L


def q_proj(eb, pd, q):
    d0, d1 = pd.next(), pd.next()
    return proj_t(WQ, eb, d0, d1) + pack4(q, d0, d1)


def out_pack(o):
    L = [cvt(o + j, o + 2 * j, o + 2 * j + 1) for j in range(4)]
    L += [valu(f"v_pk_max_i16 v{o + j}, v{o + j}, 0", vr(o + j), vr(o + j)) for j in range(4)]
    return L


def main_program():
    L = []
    eb = Ring(EB); pd = Ring(PD); qp = Ring(QP); sb = Ring(SB); pt = Ring(PT)
    oa = Ring(OA); la = Ring(LA); sr = Ring(S_RING)
    Q = {}; O = {}; LL = {}
    st = {'lprev': None, 'n': 0}
    done_kv = set()
    vm_marks = {}

    def nvm():
        return sum(1 for x in L if x.kind in ('dma', 'store') )

    FREE = 'free' if opt('freeds', 1) else ''
    gate = {}
    rdw = {}

    def sync(text, fake=()):
        return Ins(text, 'sync', list(fake), [], tag=FREE)

    def readE(it, t):
        e = eb.next()
        off = (it % 3) * BSTR + t * 2048
        X = []
        if it == 0 and t in (2, 4) and ('s', t) not in st:
            st[('s', t)] = 1
            X.append(sync(f"s_waitcnt vmcnt({(4 if t == 2 else 2) + nvm()})\n    s_barrier", vr(e, 4)))
            gate[0, t] = gate[0, t + 1] = X[-1]
        if it > 0 and ('b', it) not in st:
            st[('b', it)] = 1
            n = nvm() - vm_marks[it]
            txt = f"s_waitcnt vmcnt({n})\n    s_barrier"
            if PRIO:
                txt += f"\n    s_setprio {3 - it}"
            if STAMP:
                txt += f"\n    s_memtime s[{68 + 2 * it}:{69 + 2 * it}]\n    s_waitcnt lgkmcnt(0)"
            X.append(sync(txt, vr(e, 4)))
            for tt in range(6):
                gate[it, tt] = X[-1]
            X[-1].order_after += rdw.get(it - 2, [])
        R = [Ins(f"ds_read_b128 {r4(e)}, v{V_LA[0]} offset:{off}", 'dsr', vr(e, 4), vr(V_LA[0]), tag=FREE),
             Ins(f"ds_read_b128 {r4(e + 4)}, v{V_LA[1]} offset:{off}", 'dsr', vr(e + 4, 4), vr(V_LA[1]), tag=FREE),
             Ins("wait", 'wait', vr(e, 8), vr(e, 8))]
        if (it, t) in gate:
            R[0].order_after.append(gate[it, t]); R[1].order_after.append(gate[it, t])
        rdw.setdefault(it, []).append(R[2])
        X += R
        return e, X

    def qproj(it, i, e):
        Q[it, i] = qp.next()
        return q_proj(e, pd, Q[it, i])

    def kv(it, t):
        if (it, t) in done_kv or t > 5:
            return []
        done_kv.add((it, t))
        e, X = readE(it, t)
        if t < G:
            X += qproj(it, t, e)
        return X + kv_tile(t, e, pd)

    def step(it, i, p):
        X = []
        q = Q[it, i]
        if p == 0:
            O[it, i] = oa.next(); LL[it, i] = la.next()
        o = O[it, i]; l = LL[it, i]
        if p < 3:
            b = sb.next()
            X += [mfma(b, KP + 8 * p, q, CB), mfma(b + 4, KP + 8 * p + 4, q, CB)]
            X += [vexp(b + j, b + j) for j in (2, 3, 0, 1, 4, 5, 6, 7)]
            X += [cvt(b + 3, b + 2, b + 3), cvt(b + 2, b, b + 1), cvt(b + 4, b + 4, b + 5), cvt(b + 5, b + 6, b + 7)]
            z = p == 0
            X += [mfma(o, VP[0] + 4 * p, b + 2, None if z else o), mfma(o + 4, VP[1] + 4 * p, b + 2, None if z else o + 4),
                  mfma(l, ONES, b + 2, None if z else l)]
        else:
            s_ = pd.next(); pp = pt.next()
            X += [mfma(s_, KP + 24, q, CB), vexp(s_ + it, s_ + it)]
            X.append(cvt(pp + (it >> 1), s_ + it, None) if it % 2 == 0 else cvt(pp + (it >> 1), None, s_ + it))
            X += [mfmas(l, ONES, pp, l), mfmas(o, VP[0] + 12, pp, o), mfmas(o + 4, VP[1] + 12, pp, o + 4)]
        return X

    def lrange(l):
        X = []
        st['n'] += 1
        if st['n'] % 2 == 0:
            lp = st['lprev']
            X.append(valu(f"v_max3_f32 v{V_LMAX}, v{V_LMAX}, v{lp}, v{l}", vr(V_LMAX), vr(V_LMAX) + vr(lp) + vr(l)))
            X.append(valu(f"v_min3_f32 v{V_LMIN}, v{V_LMIN}, v{lp}, v{l}", vr(V_LMIN), vr(V_LMIN) + vr(lp) + vr(l)))
        st['lprev'] = l
        return X

    def lrange1(l):
        return [valu(f"v_max_f32 v{V_LMAX}, v{V_LMAX}, v{l}", vr(V_LMAX), vr(V_LMAX) + vr(l)),
                valu(f"v_min_f32 v{V_LMIN}, v{V_LMIN}, v{l}", vr(V_LMIN), vr(V_LMIN) + vr(l))]

    def res(it, i):
        e, X = readE(it, i)
        r = sb.next() if RSB else RA[0]
        return r, X + proj_t(WR, e, r, r + 4)

    def fin(it, i, r):
        o = O[it, i]; l = LL[it, i]; inv = l + 1
        X = [Ins(f"v_rcp_f32 v{inv}, v{l}", 'trans', vr(inv), vr(l))]
        X += [valu(f"v_fma_f32 v{o + j}, v{o + j}, v{inv}, v{r + j}", vr(o + j), vr(o + j) + vr(inv) + vr(r + j)) for j in range(8)]
        X += out_pack(o)
        so = sr.next()
        X.append(salu(f"s_add_u32 s{so}, s{S_CUR}, {it * ITSTR + i * 2048}", [f's{so}', 'scc'], []))
        X.append(Ins(f"buffer_store_dwordx4 {r4(o)}, v{V_ST}, s[{S_O}:{S_O + 3}], s{so} offen {STF}", 'store', [], vr(o, 4) + vr(V_ST) + [f's{so}']))
        return X + lrange(l)

    def tailq_scores(it):
        X = []
        xs = sb.next()
        for t in range(7):
            d = pd.next()
            X += [mfma(d, QT, KP + 4 * t, CB), vexp(xs + t, d + it)]
        X.append(valu(f"v_cndmask_b32 v{xs + 6}, 0, v{xs + 6}, s[{S_TM[it]}:{S_TM[it] + 1}]", vr(xs + 6), vr(xs + 6)))
        for k in range(4):
            X.append(cvt(xs + 2 * k, xs + 2 * k, xs + 2 * k + 1 if k < 3 else None))
            X.append(Ins(f"ds_write_b16 v{V_XW}, v{xs + 2 * k} offset:{64 * k}", 'dsw', [], vr(V_XW) + vr(xs + 2 * k)))
            if k < 3:
                X.append(Ins(f"ds_write_b16_d16_hi v{V_XW}, v{xs + 2 * k} offset:{64 * k + 32}", 'dsw', [], vr(V_XW) + vr(xs + 2 * k)))
        return X

    def tailq_pv(it):
        X = []
        o = oa.next(); l = la.next()
        b0 = eb.next(); b1 = eb.next()
        pr = [b0, b0 + 4, b1, b1 + 4]
        for p in range(3):
            X.append(Ins(f"ds_read2_b64 {r4(pr[p])}, v{V_XR} offset0:{8 * p} offset1:{8 * p + 4}", 'dsr', vr(pr[p], 4), vr(V_XR)))
        X.append(Ins(f"ds_read_b64 {r2(pr[3])}, v{V_XR} offset:192", 'dsr', vr(pr[3], 2), vr(V_XR)))
        X.append(Ins("wait", 'wait', vr(b0, 8) + vr(b1, 6), vr(b0, 8) + vr(b1, 6)))
        for p in range(3):
            z = p == 0
            X += [mfma(l, ONES, pr[p], None if z else l), mfma(o, VP[0] + 4 * p, pr[p], None if z else o),
                  mfma(o + 4, VP[1] + 4 * p, pr[p], None if z else o + 4)]
        X += [mfmas(l, ONES, pr[3], l), mfmas(o, VP[0] + 12, pr[3], o), mfmas(o + 4, VP[1] + 12, pr[3], o + 4)]
        inv = l + 1
        X.append(Ins(f"v_rcp_f32 v{inv}, v{l}", 'trans', vr(inv), vr(l)))
        X.append(valu(f"v_cndmask_b32 v{inv}, 0, v{inv}, s[{S_TM[it]}:{S_TM[it] + 1}]", vr(inv), vr(inv)))
        X += [valu(f"v_fma_f32 v{RT + j}, v{o + j}, v{inv}, v{RT + j}", vr(RT + j), vr(o + j) + vr(inv) + vr(RT + j)) for j in range(8)]
        return X + lrange(l)

    def dma(it, m):
        X = dma_pair(it, m, sr.next())
        X[0].order_after.append(L[-1])
        return X

    et = RA[0]

    def tail_proj():
        X = [Ins(f"s_waitcnt vmcnt({nvm()})", 'sync', vr(et, 8), [], tag=FREE)]
        X[0].order_after.append(L[-1])
        return X + kv_tile(6, et, pd) + q_proj(et, pd, QT) + proj_t(WR, et, RT, RT + 4)

    def tail_store():
        x = pd.next()
        x0, x1, x2, x3 = x, x + 1, x + 2, x + 3
        so = sr.next(); s1 = sr.next(); s2_ = sr.next()
        X = out_pack(RT)
        X += [valu(f"v_mbcnt_lo_u32_b32 v{x0}, -1, 0", vr(x0), []),
              valu(f"v_mbcnt_hi_u32_b32 v{x0}, -1, v{x0}", vr(x0), vr(x0)),
              valu(f"v_lshrrev_b32 v{x1}, 4, v{x0}", vr(x1), vr(x0)),
              valu(f"v_bfe_u32 v{x2}, v{x0}, 2, 2", vr(x2), vr(x0)),
              valu(f"v_and_b32 v{x0}, 3, v{x0}", vr(x0), vr(x0)),
              salu(f"s_mov_b32 s{s1}, {ITSTR}", [f's{s1}'], []),
              valu(f"v_mul_lo_u32 v{x3}, v{x0}, s{s1}", vr(x3), vr(x0) + [f's{s1}']),
              valu(f"v_lshl_add_u32 v{x3}, v{x2}, 7, v{x3}", vr(x3), vr(x2) + vr(x3)),
              valu(f"v_lshl_add_u32 v{x3}, v{x1}, 4, v{x3}", vr(x3), vr(x1) + vr(x3)),
              salu(f"s_lshl_b32 s{s2_}, s{S_HEAD}, 6", [f's{s2_}', 'scc'], []),
              salu(f"s_add_u32 s{so}, s{S_CUR}, s{s2_}", [f's{so}', 'scc'], [f's{s2_}']),
              salu(f"s_add_u32 s{so}, s{so}, {96 * 128}", [f's{so}', 'scc'], [f's{so}']),
              Ins(f"buffer_store_dwordx4 {r4(RT)}, v{x3}, s[{S_O}:{S_O + 3}], s{so} offen {STF}", 'store', [], vr(RT, 4) + vr(x3) + [f's{so}'])]
        return X
    for it in range(NIT):
        dq = []
        if it == 0:
            dq = [(1, 0), (1, 1), (1, 2), (2, 0), (2, 1), (2, 2)]
        elif it == 2:
            dq = [(3, 0), (3, 1), (3, 2)]

        def pop_dma():
            if dq:
                b, m = dq.pop(0)
                X = dma(b, m)
                L.extend(X)
                if m == 2:
                    vm_marks[b] = nvm()
        L += kv(it, 0)
        if it == 0 and E1E >= 2:
            pop_dma()
        L += kv(it, 1)
        if it == 0 and E1E >= 2:
            pop_dma()
        if it == 2:
            for pp in PT:
                L.append(valu(f"v_mov_b32 v{pp}, 0", vr(pp), []))
        for p in range(4):
            nxt = [t for t in (2 * p + 2, 2 * p + 3) if t < 6]
            for i in range(G):
                L += step(it, i, p)
                if it > 0 or (len(dq) > 3 and (p >= 2 or E1E)):
                    pop_dma()
                if nxt:
                    L += kv(it, nxt.pop(0))
            if p == 1 and it == 0:
                L += tail_proj()
            if p == 2:
                e, X = readE(it, G)
                L += X + qproj(it, G, e)
        for i in range(G):
            if QAH == 2 and i == 0:
                e, X = readE(it, G + 1)
                L += X + qproj(it, G + 1, e)
            r, X = res(it, i)
            L += X + fin(it, i, r)
        for i in range(G, 6):
            for p in range(4):
                L += step(it, i, p)
                if p == 2:
                    pop_dma()
                if QAH == 1 and p == 0 and i < 5:
                    e, X = readE(it, i + 1)
                    L += X + qproj(it, i + 1, e)
                if QAH == 2 and p == QP2 and i < 4:
                    e, X = readE(it, i + 2)
                    L += X + qproj(it, i + 2, e)
                if i == TQI and p == 1:
                    L += tailq_scores(it)
                if p == 1:
                    r, X = res(it, i)
                    L += X
                if i == 5 and it + 1 < NIT:
                    for t in (2 * p, 2 * p + 1):
                        if t < AH:
                            L += kv(it + 1, t)
            L += fin(it, i, r)
            if i == TQI:
                L += tailq_pv(it)
                if it == NIT - 1:
                    L += tail_store()
        assert not dq
    return L


def safe_program():
    L = []
    pd = Ring(PD)
    e = EB[0]; q = QP[0]; r = RT; o = OA[0]; l = LA[0]; s6 = OA[1]; pp = PT[0]
    m = LA[1]; m2 = LA[1] + 1
    va, vt, vst = V_XW, V_XR, V_DMA

    def load(t):
        a_ = va if t < 6 else vt
        X = [salu(f"s_add_u32 s{S_T0}, s{S_T2}, {t * 2048}", [f's{S_T0}', 'scc'], [])]
        X.append(Ins(f"buffer_load_dwordx4 {r4(e)}, v{a_}, s[{S_E}:{S_E + 3}], s{S_T0} offen\n"
                     f"    buffer_load_dwordx4 {r4(e + 4)}, v{a_}, s[{S_E}:{S_E + 3}], s{S_T0} offen offset:64\n"
                     f"    s_waitcnt vmcnt(0)", 'load', vr(e, 8), vr(a_) + [f's{S_T0}']))
        return X
    for t in range(7):
        L += load(t) + kv_tile(t, e, pd)
    for i in range(7):
        L += load(i) + q_proj(e, pd, q) + proj_t(WR, e, r, r + 4)
        for p in range(3):
            b = SB[p]
            L += [mfma(b, KP + 8 * p, q), mfma(b + 4, KP + 8 * p + 4, q)]
        L.append(mfma(s6, KP + 24, q))
        regs = [SB[p] + j for p in range(3) for j in range(8)]
        L.append(valu(f"v_mov_b32 v{m}, v{s6}", vr(m), vr(s6)))
        for k in range(0, 24, 2):
            L.append(valu(f"v_max3_f32 v{m}, v{m}, v{regs[k]}, v{regs[k + 1]}", vr(m), vr(m) + vr(regs[k]) + vr(regs[k + 1])))
        for sw in ("v_permlane16_swap_b32", "v_permlane32_swap_b32"):
            L.append(valu(f"v_mov_b32 v{m2}, v{m}", vr(m2), vr(m)))
            L.append(Ins(f"{sw} v{m}, v{m2}", 'perm', vr(m) + vr(m2), vr(m) + vr(m2)))
            L.append(valu(f"v_max_f32 v{m}, v{m}, v{m2}", vr(m), vr(m) + vr(m2)))
        for x in regs + [s6]:
            L.append(valu(f"v_sub_f32 v{x}, v{x}, v{m}", vr(x), vr(x) + vr(m)))
            L.append(vexp(x, x))
        for p in range(3):
            b = SB[p]
            L += [cvt(b + 3, b + 2, b + 3), cvt(b + 2, b, b + 1), cvt(b + 4, b + 4, b + 5), cvt(b + 5, b + 6, b + 7)]
            z = p == 0
            L += [mfma(o, VP[0] + 4 * p, b + 2, None if z else o), mfma(o + 4, VP[1] + 4 * p, b + 2, None if z else o + 4),
                  mfma(l, ONES, b + 2, None if z else l)]
        L.append(cvt(pp, s6, None))
        L += [mfmas(o, VP[0] + 12, pp, o), mfmas(o + 4, VP[1] + 12, pp, o + 4), mfmas(l, ONES, pp, l)]
        inv = l + 1
        L.append(Ins(f"v_rcp_f32 v{inv}, v{l}", 'trans', vr(inv), vr(l)))
        L += [valu(f"v_fma_f32 v{o + j}, v{o + j}, v{inv}, v{r + j}", vr(o + j), vr(o + j) + vr(inv) + vr(r + j)) for j in range(8)]
        L += out_pack(o)
        a_ = V_ST if i < 6 else vst
        L.append(salu(f"s_add_u32 s{S_T1}, s{S_T2}, {i * 2048}", [f's{S_T1}', 'scc'], []))
        L.append(Ins(f"buffer_store_dwordx4 {r4(o)}, v{a_}, s[{S_O}:{S_O + 3}], s{S_T1} offen {STF}", 'store', [], vr(o, 4) + vr(a_) + [f's{S_T1}']))
    return L


def lane_ids(a, lane, g, c):
    a(f"    v_mbcnt_lo_u32_b32 v{lane}, -1, 0")
    a(f"    v_mbcnt_hi_u32_b32 v{lane}, -1, v{lane}")
    a(f"    v_lshrrev_b32 v{g}, 4, v{lane}")
    a(f"    v_and_b32 v{c}, 15, v{lane}")


def prologue():
    P = []
    a = P.append
    a(f"    s_cmp_ge_u32 s2, {NWG}")
    a("    s_cbranch_scc1 L_done")
    if PRIO:
        a("    s_setprio 3")
    if STAMP:
        a("    s_memtime s[64:65]")
        a("    s_memrealtime s[66:67]")
        a("    s_load_dwordx2 s[90:91], s[0:1], 56")
        a("    s_getreg_b32 s93, hwreg(HW_REG_HW_ID)")
        a("    s_getreg_b32 s92, hwreg(HW_REG_XCC_ID)")
    a("    v_lshrrev_b32 v1, 6, v0")
    a("    s_load_dwordx2 s[4:5], s[0:1], 0")
    a("    s_load_dwordx2 s[26:27], s[0:1], 40")
    a(f"    v_readfirstlane_b32 s{S_WAVE}, v1")
    a("    v_and_b32 v2, 63, v0")
    a("    v_and_b32 v1, 1, v1")
    a("    v_lshrrev_b32 v3, 4, v2")
    a(f"    s_lshl_b32 s{S_T0}, s{S_WAVE}, 3")
    a(f"    s_add_u32 s20, s0, s{S_T0}")
    a("    s_addc_u32 s21, s1, 0")
    a("    s_load_dwordx2 s[6:7], s[20:21], 8")
    a(f"    s_and_b32 s{S_HEAD}, s{S_WAVE}, 1")
    a(f"    s_lshr_b32 s{S_PAIR}, s{S_WAVE}, 1")
    a("    v_and_b32 v4, 15, v2")
    a("    v_lshlrev_b32 v8, 4, v2")
    a(f"    s_mul_i32 s{S_LDSP}, s{S_PAIR}, {PSTR}")
    a(f"    s_lshl_b32 s{S_T0}, s{S_HEAD}, 10")
    a(f"    s_add_u32 s{S_LDSH}, s{S_LDSP}, s{S_T0}")
    a("    v_lshrrev_b32 v6, 3, v2")
    a("    v_and_b32 v7, 7, v2")
    a("    v_lshrrev_b32 v10, 1, v6")
    a("    v_xor_b32 v7, v7, v10")
    a("    v_lshlrev_b32 v10, 7, v6")
    a("    v_lshl_add_u32 v10, v7, 4, v10")
    a("    v_lshlrev_b32 v11, 6, v1")
    a("    v_xor_b32 v11, v10, v11")
    a(f"    v_lshl_add_u32 v{V_DMA}, v1, 10, v11")
    a("    v_and_b32 v7, 3, v4")
    a(f"    s_mov_b32 s{S_T0}, {ITSTR}")
    a(f"    v_mul_lo_u32 v7, v7, s{S_T0}")
    a("    v_lshrrev_b32 v6, 2, v4")
    a("    v_lshl_add_u32 v7, v6, 7, v7")
    a("    v_lshl_add_u32 v9, v3, 4, v7")
    if MAP == 2:
        a(f"    s_and_b32 s{S_CUR}, s2, 7")
        a(f"    s_lshl_b32 s{S_CUR}, s{S_CUR}, 6")
        a(f"    s_lshr_b32 s{S_T1}, s2, 3")
        a(f"    s_add_u32 s{S_CUR}, s{S_CUR}, s{S_T1}")
        a(f"    s_lshl_b32 s{S_CUR}, s{S_CUR}, 3")
    elif MAP == 1:
        a(f"    s_lshl_b32 s{S_CUR}, s2, 3")
    else:
        a(f"    s_lshl_b32 s{S_CUR}, s2, 1")
    a(f"    s_add_u32 s{S_CUR}, s{S_CUR}, s{S_PAIR}")
    a(f"    s_mul_i32 s{S_CUR}, s{S_CUR}, 12800")
    a(f"    s_lshl_b32 s{S_T1}, s{S_WAVE}, 13")
    a(f"    s_add_u32 s{S_T1}, s{S_T1}, {WOFF[0]}")
    a(f"    s_cmp_eq_u32 s{S_WAVE}, 3")
    a(f"    s_cselect_b32 s{S_T1}, {WOFF[3]}, s{S_T1}")
    a(f"    s_mov_b32 s{S_W + 2}, 8192"); a(f"    s_mov_b32 s{S_W + 3}, 0x00020000")
    a(f"    s_mov_b32 s{S_E + 2}, {EBYTES}"); a(f"    s_mov_b32 s{S_E + 3}, 0x00020000")
    a(f"    s_mov_b32 s{S_O + 2}, {EBYTES}"); a(f"    s_mov_b32 s{S_O + 3}, 0x00020000")
    a(f"    s_movk_i32 s{S_T2}, 4096")
    a(f"    s_mov_b32 m0, s{S_T1}")
    a(f"    s_add_u32 s{S_RING[3]}, s{S_CUR}, {96 * 128}")
    a("    s_waitcnt lgkmcnt(0)")
    if STAMP:
        a("    s_memtime s[84:85]")
    a(f"    s_mov_b32 s{S_W}, s6"); a(f"    s_and_b32 s{S_W + 1}, s7, 0xffff")
    a(f"    s_mov_b32 s{S_E}, s4"); a(f"    s_and_b32 s{S_E + 1}, s5, 0xffff")
    for k in range(4):
        a(f"    buffer_load_dwordx4 v8, s[{S_W}:{S_W + 3}], 0 offen offset:{k * 1024} lds")
    a(f"    s_add_u32 m0, s{S_T1}, 4096")
    a(f"    s_mov_b32 s{S_O}, s26"); a(f"    s_and_b32 s{S_O + 1}, s27, 0xffff")
    for k in range(4):
        a(f"    buffer_load_dwordx4 v8, s[{S_W}:{S_W + 3}], s{S_T2} offen offset:{k * 1024} lds")
    et = RA[0]
    e0 = []
    for m in range(3):
        e0 += finalize(dma_pair(0, m, S_RING[m]))[0]
    e0 += [f"    buffer_load_dwordx4 {r4(et)}, v{LA[0]}, s[{S_E}:{S_E + 3}], s{S_RING[3]} offen",
           f"    buffer_load_dwordx4 {r4(et + 4)}, v{LA[0]}, s[{S_E}:{S_E + 3}], s{S_RING[3]} offen offset:64"]
    a(f"    v_mov_b32 v{LA[0]}, v9")
    if DELAY:
        a(f"    s_cmp_ge_u32 s2, {NWG // 2}")
        a("    s_cbranch_scc1 L_late0")
    if PRIO:
        a("    s_setprio 2")
    P.extend(e0)
    if PRIO:
        a("    s_setprio 3")
    if DELAY:
        a("L_late0:")
    a("    v_lshlrev_b32 v5, 7, v4")
    a("    v_lshl_add_u32 v5, v3, 4, v5")
    a(f"    v_lshl_add_u32 v{V_ST}, v1, 6, v5")
    a("    v_lshrrev_b32 v7, 1, v4")
    a("    v_xor_b32 v7, v3, v7")
    a("    v_lshlrev_b32 v6, 7, v4")
    a("    v_lshl_add_u32 v6, v7, 4, v6")
    a(f"    v_add_u32 v{V_LA[0]}, s{S_LDSP}, v6")
    a(f"    v_xor_b32 v{V_LA[1]}, 64, v{V_LA[0]}")
    a(f"    s_mul_i32 s{S_T0}, s{S_WAVE}, {4 * XROW}")
    a(f"    s_add_u32 s{S_T0}, s{S_T0}, {XSCR}")
    a(f"    v_mul_u32_u24 v6, {XROW}, v3")
    a("    v_lshl_add_u32 v6, v4, 1, v6")
    a(f"    v_add_u32 v{V_XW}, s{S_T0}, v6")
    a("    v_lshrrev_b32 v6, 2, v4")
    a(f"    v_mul_u32_u24 v6, {XROW}, v6")
    a("    v_lshl_add_u32 v6, v3, 3, v6")
    a(f"    v_add_u32 v{V_XR}, s{S_T0}, v6")
    for k in range(4):
        a(f"    v_mov_b32 v{ONES + k}, 0x3f803f80")
        a(f"    v_mov_b32 v{CB + k}, 0x{f32bits(-BSHIFT):08x}")
        a(f"    s_mov_b32 s{S_TM[k]}, 0x{0x11111111 << k:08x}")
        a(f"    s_mov_b32 s{S_TM[k] + 1}, 0x{0x11111111 << k:08x}")
    for pp in PT:
        a(f"    v_mov_b32 v{pp + 1}, 0")
    A0, A1, A2 = OA[0], OA[0] + 1, OA[0] + 2
    a("    v_lshrrev_b32 v10, 2, v4")
    a("    v_lshl_add_u32 v10, v3, 3, v10")
    a("    v_and_b32 v11, 3, v4")
    a("    v_lshlrev_b32 v12, 6, v10")
    a("    v_lshl_add_u32 v12, v1, 12, v12")
    a(f"    v_add_u32 v12, {WOFF[0]}, v12")
    a(f"    v_lshl_add_u32 v{A0}, v11, 3, v12")
    a(f"    v_lshl_add_u32 v{A1}, v11, 4, v12")
    a("    v_lshlrev_b32 v12, 7, v10")
    a("    v_lshl_add_u32 v12, v1, 6, v12")
    a("    v_lshl_add_u32 v12, v11, 4, v12")
    a(f"    v_add_u32 v{A2}, {WOFF[3]}, v12")
    a(f"    v_mov_b32 v{V_LMAX}, 0")
    a(f"    v_mov_b32 v{V_LMIN}, 1.0")
    if DELAY:
        a(f"    s_cmp_ge_u32 s2, {NWG // 2}")
        a("    s_cbranch_scc1 L_late1")
        a("    s_waitcnt vmcnt(8)")
        a("    s_barrier")
        a("    s_branch L_late2")
        a("L_late1:")
        a("    s_waitcnt vmcnt(0)")
        a("    s_barrier")
        P.extend(e0)
        a("L_late2:")
    else:
        a("    s_waitcnt vmcnt(8)")
        a("    s_barrier")
    if STAMP:
        a("    s_memtime s[86:87]")
        a("    s_waitcnt lgkmcnt(0)")

    def trread(base, moff, addr, tstride, rowb):
        for s_ in range(2):
            for t in range(2):
                for half in range(2):
                    off = moff + (32 * s_ + 4 * half) * rowb + t * tstride
                    a(f"    ds_read_b64_tr_b16 {r2(base + 8 * s_ + 4 * t + 2 * half)}, v{addr} offset:{off}")
    trread(WQ, 0, A0, 32, 64)
    trread(WK, 8192, A0, 32, 64)
    trread(WV, 16384, A1, 8, 64)
    trread(WR, 0, A2, 8, 128)
    a("    s_waitcnt lgkmcnt(15)")
    a("    s_waitcnt lgkmcnt(12)")
    t0, t1 = OA[1], OA[1] + 1
    a(f"    s_mov_b32 s{S_T0}, 0x{f32bits(CSCALE):08x}")
    for k in range(16):
        a(f"    v_lshlrev_b32 v{t0}, 16, v{WQ + k}")
        a(f"    v_and_b32 v{t1}, 0xffff0000, v{WQ + k}")
        a(f"    v_mul_f32 v{t0}, s{S_T0}, v{t0}")
        a(f"    v_mul_f32 v{t1}, s{S_T0}, v{t1}")
        a(f"    v_cvt_pk_bf16_f32 v{WQ + k}, v{t0}, v{t1}")
    a(f"    s_mov_b32 s{S_LO}, 0x{f32bits(L_LO):08x}")
    a(f"    s_mov_b32 s{S_HI}, 0x{f32bits(L_HI):08x}")
    a("    s_waitcnt vmcnt(6) lgkmcnt(0)")
    a("    s_barrier")
    if STAMP:
        a("    s_memtime s[68:69]")
        a("    s_waitcnt lgkmcnt(0)")
    return P


def main():
    out = []
    a = out.append
    hdr = open('standalone__attention_interact_autoint__recsys.s.ref').read().split('\n')
    for line in hdr:
        if line.startswith('; @launch'):
            a(f"; @launch grid=({NWG},1,1) block=(256,1,1) lds={LDS_TOTAL}")
        elif line.startswith(';'):
            a(line)
        else:
            break
    a('.amdgcn_target "amdgcn-amd-amdhsa--gfx950"')
    a(".text")
    a(f".globl {KN}")
    a(".p2align 8")
    a(f".type {KN},@function")
    a(f"{KN}:")
    out += prologue()
    body = main_program()
    if NOSCHED:
        sched, est = body, 0
    else:
        best = None
        for sd in range(opt('seed', 0), opt('seed', 0) + opt('tries', 1)):
            sc, es = schedule3(body, window=WINDOW, noise=float(opts.get('noise', 0)), seed=sd, pool_lo=opt('pool', 64), horizon=opt('hor', 48), prebuilt=best is not None)
            ln, _ = finalize(sc)
            T2 = sim2.simulate(ln, nwaves=2)[0]
            if best is None or T2 < best[0]:
                best = (T2, sc, es, sd)
        _, sched, est, sd = best
    lines, nnop = finalize(sched)
    msg = ""
    for nw in (1, 2):
        T, done, busy = sim2.simulate(lines, nwaves=nw)
        msg += f"sim{nw}: {T / (4 * nw):.0f}/unit (busy {busy / (4 * nw):.0f}) "
    sys.stderr.write(msg + f"| {len(body)} instrs, {nnop} nops, vgprs {A.n}\n")
    out += lines
    a(f"    v_cmp_lt_f32 vcc, s{S_HI}, v{V_LMAX}")
    a(f"    v_cmp_gt_f32 s[28:29], s{S_LO}, v{V_LMIN}")
    a("    s_nop 1")
    a("    s_or_b64 vcc, vcc, s[28:29]")
    if FORCE_SAFE:
        a("    s_branch L_safe")
    a("    s_cbranch_scc1 L_safe")
    a("L_end:")
    if STAMP:
        a("    s_memtime s[76:77]")
        a("    s_waitcnt vmcnt(0)")
        a("    s_memtime s[78:79]")
        a("    s_memrealtime s[80:81]")
        a("    s_waitcnt lgkmcnt(0)")
        a(f"    s_lshl_b32 s82, s2, 2")
        a(f"    s_add_u32 s82, s82, s{S_WAVE}")
        a(f"    s_lshl_b32 s82, s82, 6")
        a(f"    v_mov_b32 v2, s82")
        regs = [92, 93, 64, 66, 68, 68, 70, 72, 74, 76, 78, 80, 84, 86, 68]
        for k, r in enumerate(regs):
            a(f"    v_mov_b32 v3, s{r}")
            a(f"    global_store_dword v2, v3, s[90:91] offset:{4 * k}")
    a("L_done:")
    a("    s_endpgm")
    a("L_safe:")
    a("    s_waitcnt vmcnt(0)")
    x0, x1, x2, x3 = PD[0], PD[0] + 1, PD[0] + 2, PD[0] + 3
    lane_ids(a, x0, x1, x2)
    a(f"    v_and_b32 v{x0}, 3, v{x2}")
    a(f"    v_lshrrev_b32 v{x2}, 2, v{x2}")
    a(f"    v_lshlrev_b32 v{x2}, 7, v{x2}")
    a(f"    v_lshl_add_u32 v{x2}, v{x1}, 4, v{x2}")
    a(f"    s_lshl_b32 s{S_T0}, s{S_HEAD}, 6")
    a(f"    v_cmp_ne_u32 vcc, 0, v{x0}")
    a(f"    v_mov_b32 v{x3}, 0x7f000000")
    a(f"    v_subrev_u32 v{V_XW}, s{S_T0}, v{V_ST}")
    a(f"    v_cndmask_b32 v{V_XR}, v{x2}, v{x3}, vcc")
    a(f"    v_add_u32 v{V_DMA}, s{S_T0}, v{V_XR}")
    a(f"    v_mov_b32 v{PT[0] + 1}, 0")
    a(f"    s_mov_b32 s{S_T2}, s{S_CUR}")
    a(f"    s_mov_b32 s{S_IT}, 0")
    a("L_safe_loop:")
    lines, _ = finalize(safe_program())
    out += lines
    a("    s_nop 7")
    a(f"    s_add_u32 s{S_T2}, s{S_T2}, {ITSTR}")
    a(f"    s_add_u32 s{S_IT}, s{S_IT}, 1")
    a(f"    s_cmp_lt_u32 s{S_IT}, {NIT}")
    a("    s_cbranch_scc1 L_safe_loop")
    a("    s_branch L_end")
    a('.section .rodata,"a"')
    a(".p2align 6")
    a(f".amdhsa_kernel {KN}")
    a(f"  .amdhsa_next_free_vgpr {NVGPR}")
    a(f"  .amdhsa_next_free_sgpr {100 if STAMP else 64}")
    a(f"  .amdhsa_accum_offset {NVGPR}")
    a("  .amdhsa_group_segment_fixed_size 0")
    a("  .amdhsa_kernarg_size 64")
    a("  .amdhsa_user_sgpr_count 2")
    a("  .amdhsa_user_sgpr_kernarg_segment_ptr 1")
    a("  .amdhsa_system_sgpr_workgroup_id_x 1")
    a(".end_amdhsa_kernel")
    open(sys.argv[1], 'w').write("\n".join(out) + "\n")


main()
```

```python
from sched import Ins, vr, PORT, PIPE, MF, VAL, ws_needed, build_deps
import random
NONV = {'dma6', 'sync', 'wait', 'dsr', 'dsw', 'store', 'dma', 'salu', 'load', 'bar'}

def schedule3(ins, window=300, dslat=160, seed=0, noise=0.0, pool_lo=64, horizon=48, prebuilt=False, nvcost=None):
    if not prebuilt:
        build_deps(ins)
    rnd = random.Random(seed)
    for x in reversed(ins):
        x.prio = PORT[x.kind] + max([s.prio + l for s, w, l in x.succs], default=0)
    pr = {x.idx: x.prio + (noise * rnd.random() if noise else 0) for x in ins}
    yld = {}
    for x in ins:
        if x.kind in MF:
            seen = set(); tot = 0
            st = [s for s, w, l in x.succs if s.kind in VAL and w >= 8]
            for s in st:
                if s.idx not in seen:
                    seen.add(s.idx); tot += PORT[s.kind]
                    for s2, w2, l2 in s.succs:
                        if s2.kind in VAL and s2.idx not in seen:
                            seen.add(s2.idx); tot += PORT[s2.kind] // 2
            yld[x.idx] = tot
    for x in reversed(ins):
        if x.kind in MF:
            for s, w, l in x.succs:
                if s.kind in MF and s.cuses == x.defs:
                    yld[x.idx] = max(yld[x.idx], 0.6 * yld[s.idx])
    for x in ins:
        x.npred = len(x.preds); x.ready = 0
    out = []; pos = {}
    avail = [x for x in ins if x.npred == 0]
    n = len(ins); sched = [False]*n; lowest = 0
    t = 0; port = 0; pipe = 0; slot = 0; done = 0
    while done < n:
        while lowest < n and sched[lowest]: lowest += 1
        cands = []
        base = max(t, port)
        pool = 0
        for x in avail:
            if x.idx > lowest + window: continue
            st = max(t, x.ready)
            if x.kind not in NONV: st = max(st, port)
            if x.kind in MF: st = max(st, pipe)
            need = 0
            for p, w, l in x.preds:
                if w:
                    gap = slot - pos[p.idx] - 1
                    if w - gap > need: need = w - gap
            if need > 0: st = max(st, t + 4*need)
            cands.append((st, x, need))
            if x.kind in VAL and st <= base + horizon: pool += PORT[x.kind]
        free_slot = port > t
        best = None
        if free_slot:
            c = [(st, x, need) for st, x, need in cands if x.kind in NONV and st <= t]
            if c: best = max(c, key=lambda c: (pr[c[1].idx], -c[1].idx))
        if best is None:
            ok = [c for c in cands if c[0] <= base and c[1].kind not in NONV]
            mf = [c for c in ok if c[1].kind in MF]
            va = [c for c in ok if c[1].kind not in MF]
            if mf:
                if pool < pool_lo:
                    best = max(mf, key=lambda c: (yld[c[1].idx], pr[c[1].idx]))
                else:
                    best = max(mf, key=lambda c: (pr[c[1].idx], -c[1].idx))
            elif va:
                gap = pipe - base
                best = max(va, key=lambda c: (pr[c[1].idx] - (30 if (0 < gap < PORT[c[1].kind]) else 0), -c[1].idx))
                nv = [c for c in cands if c[1].kind in NONV and c[0] <= t]
                if nv:
                    bn = max(nv, key=lambda c: (pr[c[1].idx], -c[1].idx))
                    if pr[bn[1].idx] > pr[best[1].idx] + 250: best = bn
                    elif pipe <= base:
                        wv = [c for c in nv if c[1].kind in ('wait', 'dsr')]
                        if wv: best = max(wv, key=lambda c: (pr[c[1].idx], -c[1].idx))
            else:
                nv = [c for c in cands if c[1].kind in NONV and c[0] <= base]
                if nv: best = max(nv, key=lambda c: (pr[c[1].idx], -c[1].idx))
                else: best = min(cands, key=lambda c: (c[0], -pr[c[1].idx], c[1].idx))
        st, x, need = best
        avail.remove(x)
        slot += max(need, 0)
        pos[x.idx] = slot; slot += 1
        out.append(x); sched[x.idx] = True
        if x.kind in MF:
            pipe = st + PIPE[x.kind]; port = st + PORT[x.kind]; t = st + 4
        elif x.kind in NONV:
            t = st + (16 if x.kind in ('store',) else 4 * (1 + min(x.text.count('\n'), 3)))
        else:
            port = st + PORT[x.kind]; t = port
        for s, w, l in x.succs:
            ll = l
            if x.kind == 'dsr' and l > 100: ll = dslat
            s.ready = max(s.ready, st + ll)
            s.npred -= 1
            if s.npred == 0: avail.append(s)
        done += 1
    return out, max(t, port)
```

```python
import sys, struct, math
sys.path.insert(0, 'gen')
from sched import Ins, vr, finalize
from sched3 import schedule3
import sim2

KN = "standalone__attention_interact_autoint__recsys_kernel"
NWG = 512
NIT = 4
EBYTES = 4096 * 100 * 64 * 2
ITSTR = NWG * 2 * 12800
BSTR = 12288
PSTR = 3 * BSTR
LDS_TOTAL = 81920
XSCR = 2 * PSTR
XROW = 224
WOFF = [BSTR, BSTR + 8192, BSTR + 16384, PSTR + BSTR]

opts = dict(a.split('=') for a in sys.argv[2:]) if len(sys.argv) > 2 else {}
def opt(k, d): return int(opts.get(k, d))
G = 2
MAP = opt('map', 0)
if MAP:
    ITSTR = 2 * 12800
TQI = opt('tqi', 3)
AH = opt('ah', 4)
QAH = opt('qah', 2)
QP2 = opt('qp2', 2)
E1E = opt('e1e', 0)
E3E = opt('e3e', 1)
AH0 = opt('ah0', 4)
BD = opt('bd', 1)
DELAY = opt('delay', 1)
FORCE_SAFE = opt('force_safe', 0)
NOSCHED = opt('nosched', 0)
WINDOW = opt('window', 300)
STAMP = opt('stamp', 0)
PRIO = opt('prio', 1)
RSB = opt('rsb', 0)
STF = opts.get('stf', 'sc1').replace('+', ' ')
LDF = opts.get('ldf', 'nt').replace('+', ' ')
NOMEM = opt('nomem', 0)


def f32bits(x):
    return struct.unpack('<I', struct.pack('<f', x))[0]


class Alloc:
    def __init__(self, start):
        self.n = start

    def get(self, k, align=2):
        self.n = (self.n + align - 1) // align * align
        r = self.n
        self.n += k
        return r


A = Alloc(2)
WQ = A.get(16); WK = A.get(16); WV = A.get(16); WR = A.get(16)
KP = A.get(28)
VP = [A.get(14), A.get(14)]
QT = A.get(4)
RT = A.get(8)
EB = [A.get(8) for _ in range(opt('neb', 2))]
PD = [A.get(4) for _ in range(opt('npd', 4))]
QP = [A.get(4) for _ in range(opt('nq', 3))]
SB = [A.get(8) for _ in range(opt('nsb', 3))]
PT = [A.get(2) for _ in range(opt('npt', 2))]
OA = [A.get(8) for _ in range(opt('no', 2))]
RA = [] if RSB else [A.get(8)]
LA = [A.get(4) for _ in range(opt('no', 2))]
ONES = A.get(4)
CB = A.get(4)
V_LA = [A.get(1, 1) for _ in range(2)]
V_DMA = A.get(1, 1)
V_ST = A.get(1, 1)
V_XW = A.get(1, 1)
V_XR = A.get(1, 1)
V_LMAX = 0
V_LMIN = 1
assert A.n <= 256, A.n
NVGPR = 256

S_E = 8; S_O = 12; S_W = 16
S_HEAD = 32; S_CUR = 33; S_IT = 35
S_RING = list(range(36, 44))
S_T0 = 45; S_T1 = 46; S_T2 = 47
S_LO = 48; S_HI = 49; S_WAVE = 52; S_PAIR = 53; S_LDSP = 54; S_LDSH = 55
S_TM = [56, 58, 60, 62]

BSHIFT = 40.0
L_LO = 2.0 ** -56
L_HI = 1.0
CSCALE = math.log2(math.e) / math.sqrt(32.0)


def r4(a): return f"v[{a}:{a + 3}]"
def r2(a): return f"v[{a}:{a + 1}]"


def mfma(d, a, b, c=None):
    if c is None:
        return Ins(f"v_mfma_f32_16x16x32_bf16 {r4(d)}, {r4(a)}, {r4(b)}, 0", 'mfma', vr(d, 4), vr(a, 4) + vr(b, 4))
    return Ins(f"v_mfma_f32_16x16x32_bf16 {r4(d)}, {r4(a)}, {r4(b)}, {r4(c)}", 'mfma', vr(d, 4), vr(a, 4) + vr(b, 4), vr(c, 4))


def mfmas(d, a, b, c):
    return Ins(f"v_mfma_f32_16x16x16_bf16 {r4(d)}, {r2(a)}, {r2(b)}, {r4(c)}", 'mfmas', vr(d, 4), vr(a, 2) + vr(b, 2), vr(c, 4))


def cvt(d, a, b):
    sa = "0" if a is None else f"v{a}"
    sb_ = "0" if b is None else f"v{b}"
    return Ins(f"v_cvt_pk_bf16_f32 v{d}, {sa}, {sb_}", 'valu', vr(d), ([] if a is None else vr(a)) + ([] if b is None else vr(b)))


def vexp(d, a):
    return Ins(f"v_exp_f32 v{d}, v{a}", 'trans', vr(d), vr(a))


def valu(text, defs, uses):
    return Ins(text, 'valu', defs, uses)


def salu(text, defs, uses):
    return Ins(text, 'salu', defs, uses)


class Ring:
    def __init__(self, items):
        self.items = items
        self.i = 0

    def next(self):
        r = self.items[self.i % len(self.items)]
        self.i += 1
        return r


SRD_E = [f's{S_E + i}' for i in range(4)]
SRD_O = [f's{S_O + i}' for i in range(4)]


def dma_pair(it, m, so):
    return [salu(f"s_add_u32 m0, s{S_LDSH}, {(it % 3) * BSTR + m * 4096}", ['m0', 'scc'], []),
            salu(f"s_add_u32 s{so}, s{S_CUR}, {it * ITSTR + m * 4096}", [f's{so}', 'scc'], []),
            Ins(f"buffer_load_dwordx4 v{V_DMA}, s[{S_E}:{S_E + 3}], s{so} offen {LDF} lds", 'dma', [], vr(V_DMA) + [f's{so}', 'm0']),
            Ins(f"buffer_load_dwordx4 v{V_DMA}, s[{S_E}:{S_E + 3}], s{so} offen offset:2048 {LDF} lds", 'dma', [], vr(V_DMA) + [f's{so}', 'm0'])]


def proj_t(w, eb, d0, d1):
    return [mfma(d0, w + 0, eb + 0), mfma(d1, w + 4, eb + 0), mfma(d0, w + 8, eb + 4, d0), mfma(d1, w + 12, eb + 4, d1)]


def pack4(k, d0, d1):
    return [cvt(k, d0, d0 + 1), cvt(k + 1, d0 + 2, d0 + 3), cvt(k + 2, d1, d1 + 1), cvt(k + 3, d1 + 2, d1 + 3)]


def kv_tile(t, eb, pd):
    d0, d1 = pd.next(), pd.next()
    L = proj_t(WK, eb, d0, d1) + pack4(KP + 4 * t, d0, d1)
    d0, d1 = pd.next(), pd.next()
    L += [mfma(d0, eb + 0, WV + 0), mfma(d1, eb + 0, WV + 4), mfma(d0, eb + 4, WV + 8, d0), mfma(d1, eb + 4, WV + 12, d1)]
    for u, d in ((0, d0), (1, d1)):
        v = VP[u] + 2 * t
        L += [cvt(v, d, d + 1), cvt(v + 1, d + 2, d + 3)]
    return L


def q_proj(eb, pd, q):
    d0, d1 = pd.next(), pd.next()
    return proj_t(WQ, eb, d0, d1) + pack4(q, d0, d1)


def out_pack(o):
    L = [cvt(o + j, o + 2 * j, o + 2 * j + 1) for j in range(4)]
    L += [valu(f"v_pk_max_i16 v{o + j}, v{o + j}, 0", vr(o + j), vr(o + j)) for j in range(4)]
    return L


def main_program():
    L = []
    eb = Ring(EB); pd = Ring(PD); qp = Ring(QP); sb = Ring(SB); pt = Ring(PT)
    oa = Ring(OA); la = Ring(LA); sr = Ring(S_RING)
    Q = {}; O = {}; LL = {}
    st = {'lprev': None, 'n': 0}
    done_kv = set()
    vm_marks = {}

    six = []

    def nvm():
        return sum(1 for x in L if x.kind in ('dma', 'store')) + 6 * sum(1 for x in L if any(x is y for y in six))

    FREE = 'free' if opt('freeds', 1) else ''
    gate = {}
    rdw = {}

    def sync(text, fake=()):
        return Ins(text, 'sync', list(fake), [], tag=FREE)

    def readE(it, t):
        e = eb.next()
        off = (it % 3) * BSTR + t * 2048
        X = []
        if it == 0 and t in (2, 4) and ('s', t) not in st:
            st[('s', t)] = 1
            X.append(sync(f"s_waitcnt vmcnt({(4 if t == 2 else 2) + nvm()})\n    s_barrier", vr(e, 4)))
            gate[0, t] = gate[0, t + 1] = X[-1]
        if it > 0 and ('b', it) not in st:
            st[('b', it)] = 1
            n = nvm() - vm_marks[it]
            txt = f"s_waitcnt vmcnt({n})\n    s_barrier"
            if PRIO:
                txt += f"\n    s_setprio {3 - it}"
            if STAMP:
                txt += f"\n    s_memtime s[{68 + 2 * it}:{69 + 2 * it}]\n    s_waitcnt lgkmcnt(0)"
            X.append(sync(txt, vr(e, 4)))
            for tt in range(6):
                gate[it, tt] = X[-1]
            X[-1].order_after += rdw.get(it - 2, [])
            if BD and it + 1 < NIT and not (BD == 2 and it == 1):
                D = []
                for m in range(3):
                    D += dma_pair(it + 1, m, S_T0)
                X[-1].text += "\n" + "\n".join(finalize(D)[0])
                X[-1].defs += ['m0', 'scc', f's{S_T0}']
                six.append(X[-1])
                vm_marks[it + 1] = nvm() + 6
        R = [Ins(f"ds_read_b128 {r4(e)}, v{V_LA[0]} offset:{off}", 'dsr', vr(e, 4), vr(V_LA[0]), tag=FREE),
             Ins(f"ds_read_b128 {r4(e + 4)}, v{V_LA[1]} offset:{off}", 'dsr', vr(e + 4, 4), vr(V_LA[1]), tag=FREE),
             Ins("wait", 'wait', vr(e, 8), vr(e, 8))]
        if (it, t) in gate:
            R[0].order_after.append(gate[it, t]); R[1].order_after.append(gate[it, t])
        rdw.setdefault(it, []).append(R[2])
        X += R
        return e, X

    def qproj(it, i, e):
        Q[it, i] = qp.next()
        return q_proj(e, pd, Q[it, i])

    def kv(it, t):
        if (it, t) in done_kv or t > 5:
            return []
        done_kv.add((it, t))
        e, X = readE(it, t)
        if t < G:
            X += qproj(it, t, e)
        return X + kv_tile(t, e, pd)

    def step(it, i, p):
        X = []
        q = Q[it, i]
        if p == 0:
            O[it, i] = oa.next(); LL[it, i] = la.next()
        o = O[it, i]; l = LL[it, i]
        if p < 3:
            b = sb.next()
            X += [mfma(b, KP + 8 * p, q, CB), mfma(b + 4, KP + 8 * p + 4, q, CB)]
            X += [vexp(b + j, b + j) for j in (2, 3, 0, 1, 4, 5, 6, 7)]
            X += [cvt(b + 3, b + 2, b + 3), cvt(b + 2, b, b + 1), cvt(b + 4, b + 4, b + 5), cvt(b + 5, b + 6, b + 7)]
            z = p == 0
            X += [mfma(o, VP[0] + 4 * p, b + 2, None if z else o), mfma(o + 4, VP[1] + 4 * p, b + 2, None if z else o + 4),
                  mfma(l, ONES, b + 2, None if z else l)]
        else:
            s_ = pd.next(); pp = pt.next()
            X += [mfma(s_, KP + 24, q, CB), vexp(s_ + it, s_ + it)]
            X.append(cvt(pp + (it >> 1), s_ + it, None) if it % 2 == 0 else cvt(pp + (it >> 1), None, s_ + it))
            X += [mfmas(l, ONES, pp, l), mfmas(o, VP[0] + 12, pp, o), mfmas(o + 4, VP[1] + 12, pp, o + 4)]
        return X

    def lrange(l):
        X = []
        st['n'] += 1
        if st['n'] % 2 == 0:
            lp = st['lprev']
            X.append(valu(f"v_max3_f32 v{V_LMAX}, v{V_LMAX}, v{lp}, v{l}", vr(V_LMAX), vr(V_LMAX) + vr(lp) + vr(l)))
            X.append(valu(f"v_min3_f32 v{V_LMIN}, v{V_LMIN}, v{lp}, v{l}", vr(V_LMIN), vr(V_LMIN) + vr(lp) + vr(l)))
        st['lprev'] = l
        return X

    def lrange1(l):
        return [valu(f"v_max_f32 v{V_LMAX}, v{V_LMAX}, v{l}", vr(V_LMAX), vr(V_LMAX) + vr(l)),
                valu(f"v_min_f32 v{V_LMIN}, v{V_LMIN}, v{l}", vr(V_LMIN), vr(V_LMIN) + vr(l))]

    def res(it, i):
        e, X = readE(it, i)
        r = sb.next() if RSB else RA[0]
        return r, X + proj_t(WR, e, r, r + 4)

    def fin(it, i, r):
        o = O[it, i]; l = LL[it, i]; inv = l + 1
        X = [Ins(f"v_rcp_f32 v{inv}, v{l}", 'trans', vr(inv), vr(l))]
        X += [valu(f"v_fma_f32 v{o + j}, v{o + j}, v{inv}, v{r + j}", vr(o + j), vr(o + j) + vr(inv) + vr(r + j)) for j in range(8)]
        X += out_pack(o)
        so = sr.next()
        X.append(salu(f"s_add_u32 s{so}, s{S_CUR}, {it * ITSTR + i * 2048}", [f's{so}', 'scc'], []))
        X.append(Ins(f"buffer_store_dwordx4 {r4(o)}, v{V_ST}, s[{S_O}:{S_O + 3}], s{so} offen {STF}", 'store', [], vr(o, 4) + vr(V_ST) + [f's{so}']))
        return X + lrange(l)

    def tailq_scores(it):
        X = []
        xs = sb.next()
        for t in range(7):
            d = pd.next()
            X += [mfma(d, QT, KP + 4 * t, CB), vexp(xs + t, d + it)]
        X.append(valu(f"v_cndmask_b32 v{xs + 6}, 0, v{xs + 6}, s[{S_TM[it]}:{S_TM[it] + 1}]", vr(xs + 6), vr(xs + 6)))
        for k in range(4):
            X.append(cvt(xs + 2 * k, xs + 2 * k, xs + 2 * k + 1 if k < 3 else None))
            X.append(Ins(f"ds_write_b16 v{V_XW}, v{xs + 2 * k} offset:{64 * k}", 'dsw', [], vr(V_XW) + vr(xs + 2 * k)))
            if k < 3:
                X.append(Ins(f"ds_write_b16_d16_hi v{V_XW}, v{xs + 2 * k} offset:{64 * k + 32}", 'dsw', [], vr(V_XW) + vr(xs + 2 * k)))
        return X

    def tailq_pv(it):
        X = []
        o = oa.next(); l = la.next()
        b0 = eb.next(); b1 = eb.next()
        pr = [b0, b0 + 4, b1, b1 + 4]
        for p in range(3):
            X.append(Ins(f"ds_read2_b64 {r4(pr[p])}, v{V_XR} offset0:{8 * p} offset1:{8 * p + 4}", 'dsr', vr(pr[p], 4), vr(V_XR)))
        X.append(Ins(f"ds_read_b64 {r2(pr[3])}, v{V_XR} offset:192", 'dsr', vr(pr[3], 2), vr(V_XR)))
        X.append(Ins("wait", 'wait', vr(b0, 8) + vr(b1, 6), vr(b0, 8) + vr(b1, 6)))
        for p in range(3):
            z = p == 0
            X += [mfma(l, ONES, pr[p], None if z else l), mfma(o, VP[0] + 4 * p, pr[p], None if z else o),
                  mfma(o + 4, VP[1] + 4 * p, pr[p], None if z else o + 4)]
        X += [mfmas(l, ONES, pr[3], l), mfmas(o, VP[0] + 12, pr[3], o), mfmas(o + 4, VP[1] + 12, pr[3], o + 4)]
        inv = l + 1
        X.append(Ins(f"v_rcp_f32 v{inv}, v{l}", 'trans', vr(inv), vr(l)))
        X.append(valu(f"v_cndmask_b32 v{inv}, 0, v{inv}, s[{S_TM[it]}:{S_TM[it] + 1}]", vr(inv), vr(inv)))
        X += [valu(f"v_fma_f32 v{RT + j}, v{o + j}, v{inv}, v{RT + j}", vr(RT + j), vr(o + j) + vr(inv) + vr(RT + j)) for j in range(8)]
        return X + lrange(l)

    def dma(it, m):
        X = dma_pair(it, m, sr.next())
        X[0].order_after.append(L[-1])
        return X

    et = RA[0]

    def tail_proj():
        X = [Ins(f"s_waitcnt vmcnt({nvm()})", 'sync', vr(et, 8), [], tag=FREE)]
        X[0].order_after.append(L[-1])
        return X + kv_tile(6, et, pd) + q_proj(et, pd, QT) + proj_t(WR, et, RT, RT + 4)

    def tail_store():
        x = pd.next()
        x0, x1, x2, x3 = x, x + 1, x + 2, x + 3
        so = sr.next(); s1 = sr.next(); s2_ = sr.next()
        X = out_pack(RT)
        X += [valu(f"v_mbcnt_lo_u32_b32 v{x0}, -1, 0", vr(x0), []),
              valu(f"v_mbcnt_hi_u32_b32 v{x0}, -1, v{x0}", vr(x0), vr(x0)),
              valu(f"v_lshrrev_b32 v{x1}, 4, v{x0}", vr(x1), vr(x0)),
              valu(f"v_bfe_u32 v{x2}, v{x0}, 2, 2", vr(x2), vr(x0)),
              valu(f"v_and_b32 v{x0}, 3, v{x0}", vr(x0), vr(x0)),
              salu(f"s_mov_b32 s{s1}, {ITSTR}", [f's{s1}'], []),
              valu(f"v_mul_lo_u32 v{x3}, v{x0}, s{s1}", vr(x3), vr(x0) + [f's{s1}']),
              valu(f"v_lshl_add_u32 v{x3}, v{x2}, 7, v{x3}", vr(x3), vr(x2) + vr(x3)),
              valu(f"v_lshl_add_u32 v{x3}, v{x1}, 4, v{x3}", vr(x3), vr(x1) + vr(x3)),
              salu(f"s_lshl_b32 s{s2_}, s{S_HEAD}, 6", [f's{s2_}', 'scc'], []),
              salu(f"s_add_u32 s{so}, s{S_CUR}, s{s2_}", [f's{so}', 'scc'], [f's{s2_}']),
              salu(f"s_add_u32 s{so}, s{so}, {96 * 128}", [f's{so}', 'scc'], [f's{so}']),
              Ins(f"buffer_store_dwordx4 {r4(RT)}, v{x3}, s[{S_O}:{S_O + 3}], s{so} offen {STF}", 'store', [], vr(RT, 4) + vr(x3) + [f's{so}'])]
        return X
    for it in range(NIT):
        dq = []
        if it == 0:
            dq = [(1, 0), (1, 1), (1, 2)] + ([] if BD == 1 else [(2, 0), (2, 1), (2, 2)])
        elif it == 2 and not E3E and not BD:
            dq = [(3, 0), (3, 1), (3, 2)]

        def pop_dma():
            if dq:
                b, m = dq.pop(0)
                X = dma(b, m)
                L.extend(X)
                if m == 2:
                    vm_marks[b] = nvm()
        L += kv(it, 0)
        if it == 0 and E1E >= 2:
            pop_dma()
        L += kv(it, 1)
        if it == 0 and E1E >= 2:
            pop_dma()
        if it == 2:
            for pp in PT:
                L.append(valu(f"v_mov_b32 v{pp}, 0", vr(pp), []))
        for p in range(4):
            nxt = [t for t in (2 * p + 2, 2 * p + 3) if t < 6]
            for i in range(G):
                L += step(it, i, p)
                if it > 0 or ((BD == 1 or len(dq) > 3) and (p >= 2 or E1E)):
                    pop_dma()
                if nxt:
                    L += kv(it, nxt.pop(0))
            if p == 1 and it == 0:
                L += tail_proj()
            if p == 2:
                e, X = readE(it, G)
                L += X + qproj(it, G, e)
        for i in range(G):
            if QAH == 2 and i == 0:
                e, X = readE(it, G + 1)
                L += X + qproj(it, G + 1, e)
            r, X = res(it, i)
            L += X + fin(it, i, r)
        for i in range(G, 6):
            for p in range(4):
                L += step(it, i, p)
                if p == 2:
                    pop_dma()
                if QAH == 1 and p == 0 and i < 5:
                    e, X = readE(it, i + 1)
                    L += X + qproj(it, i + 1, e)
                if QAH == 2 and p == QP2 and i < 4:
                    e, X = readE(it, i + 2)
                    L += X + qproj(it, i + 2, e)
                if i == TQI and p == 1:
                    L += tailq_scores(it)
                if p == 1:
                    r, X = res(it, i)
                    L += X
                if i == 5 and it + 1 < NIT:
                    for t in (2 * p, 2 * p + 1):
                        if t < (AH if it > 0 else AH0):
                            L += kv(it + 1, t)
                    if E3E and not BD and it == 1 and p < 3:
                        dq.append((3, p))
                        pop_dma()
            L += fin(it, i, r)
            if i == TQI:
                L += tailq_pv(it)
                if it == NIT - 1:
                    L += tail_store()
        assert not dq
    return L


def safe_program():
    L = []
    pd = Ring(PD)
    e = EB[0]; q = QP[0]; r = RT; o = OA[0]; l = LA[0]; s6 = OA[1]; pp = PT[0]
    m = LA[1]; m2 = LA[1] + 1
    va, vt, vst = V_XW, V_XR, V_DMA

    def load(t):
        a_ = va if t < 6 else vt
        X = [salu(f"s_add_u32 s{S_T0}, s{S_T2}, {t * 2048}", [f's{S_T0}', 'scc'], [])]
        X.append(Ins(f"buffer_load_dwordx4 {r4(e)}, v{a_}, s[{S_E}:{S_E + 3}], s{S_T0} offen\n"
                     f"    buffer_load_dwordx4 {r4(e + 4)}, v{a_}, s[{S_E}:{S_E + 3}], s{S_T0} offen offset:64\n"
                     f"    s_waitcnt vmcnt(0)", 'load', vr(e, 8), vr(a_) + [f's{S_T0}']))
        return X
    for t in range(7):
        L += load(t) + kv_tile(t, e, pd)
    for i in range(7):
        L += load(i) + q_proj(e, pd, q) + proj_t(WR, e, r, r + 4)
        for p in range(3):
            b = SB[p]
            L += [mfma(b, KP + 8 * p, q), mfma(b + 4, KP + 8 * p + 4, q)]
        L.append(mfma(s6, KP + 24, q))
        regs = [SB[p] + j for p in range(3) for j in range(8)]
        L.append(valu(f"v_mov_b32 v{m}, v{s6}", vr(m), vr(s6)))
        for k in range(0, 24, 2):
            L.append(valu(f"v_max3_f32 v{m}, v{m}, v{regs[k]}, v{regs[k + 1]}", vr(m), vr(m) + vr(regs[k]) + vr(regs[k + 1])))
        for sw in ("v_permlane16_swap_b32", "v_permlane32_swap_b32"):
            L.append(valu(f"v_mov_b32 v{m2}, v{m}", vr(m2), vr(m)))
            L.append(Ins(f"{sw} v{m}, v{m2}", 'perm', vr(m) + vr(m2), vr(m) + vr(m2)))
            L.append(valu(f"v_max_f32 v{m}, v{m}, v{m2}", vr(m), vr(m) + vr(m2)))
        for x in regs + [s6]:
            L.append(valu(f"v_sub_f32 v{x}, v{x}, v{m}", vr(x), vr(x) + vr(m)))
            L.append(vexp(x, x))
        for p in range(3):
            b = SB[p]
            L += [cvt(b + 3, b + 2, b + 3), cvt(b + 2, b, b + 1), cvt(b + 4, b + 4, b + 5), cvt(b + 5, b + 6, b + 7)]
            z = p == 0
            L += [mfma(o, VP[0] + 4 * p, b + 2, None if z else o), mfma(o + 4, VP[1] + 4 * p, b + 2, None if z else o + 4),
                  mfma(l, ONES, b + 2, None if z else l)]
        L.append(cvt(pp, s6, None))
        L += [mfmas(o, VP[0] + 12, pp, o), mfmas(o + 4, VP[1] + 12, pp, o + 4), mfmas(l, ONES, pp, l)]
        inv = l + 1
        L.append(Ins(f"v_rcp_f32 v{inv}, v{l}", 'trans', vr(inv), vr(l)))
        L += [valu(f"v_fma_f32 v{o + j}, v{o + j}, v{inv}, v{r + j}", vr(o + j), vr(o + j) + vr(inv) + vr(r + j)) for j in range(8)]
        L += out_pack(o)
        a_ = V_ST if i < 6 else vst
        L.append(salu(f"s_add_u32 s{S_T1}, s{S_T2}, {i * 2048}", [f's{S_T1}', 'scc'], []))
        L.append(Ins(f"buffer_store_dwordx4 {r4(o)}, v{a_}, s[{S_O}:{S_O + 3}], s{S_T1} offen {STF}", 'store', [], vr(o, 4) + vr(a_) + [f's{S_T1}']))
    return L


def lane_ids(a, lane, g, c):
    a(f"    v_mbcnt_lo_u32_b32 v{lane}, -1, 0")
    a(f"    v_mbcnt_hi_u32_b32 v{lane}, -1, v{lane}")
    a(f"    v_lshrrev_b32 v{g}, 4, v{lane}")
    a(f"    v_and_b32 v{c}, 15, v{lane}")


def prologue():
    P = []
    a = P.append
    a(f"    s_cmp_ge_u32 s2, {NWG}")
    a("    s_cbranch_scc1 L_done")
    if PRIO:
        a("    s_setprio 3")
    if STAMP:
        a("    s_memtime s[64:65]")
        a("    s_memrealtime s[66:67]")
        a("    s_load_dwordx2 s[90:91], s[0:1], 56")
        a("    s_getreg_b32 s93, hwreg(HW_REG_HW_ID)")
        a("    s_getreg_b32 s92, hwreg(HW_REG_XCC_ID)")
    a("    v_lshrrev_b32 v1, 6, v0")
    a("    s_load_dwordx2 s[4:5], s[0:1], 0")
    a("    s_load_dwordx2 s[26:27], s[0:1], 40")
    a(f"    v_readfirstlane_b32 s{S_WAVE}, v1")
    a("    v_and_b32 v2, 63, v0")
    a("    v_and_b32 v1, 1, v1")
    a("    v_lshrrev_b32 v3, 4, v2")
    a(f"    s_lshl_b32 s{S_T0}, s{S_WAVE}, 3")
    a(f"    s_add_u32 s20, s0, s{S_T0}")
    a("    s_addc_u32 s21, s1, 0")
    a("    s_load_dwordx2 s[6:7], s[20:21], 8")
    a(f"    s_and_b32 s{S_HEAD}, s{S_WAVE}, 1")
    a(f"    s_lshr_b32 s{S_PAIR}, s{S_WAVE}, 1")
    a("    v_and_b32 v4, 15, v2")
    a("    v_lshlrev_b32 v8, 4, v2")
    a(f"    s_mul_i32 s{S_LDSP}, s{S_PAIR}, {PSTR}")
    a(f"    s_lshl_b32 s{S_T0}, s{S_HEAD}, 10")
    a(f"    s_add_u32 s{S_LDSH}, s{S_LDSP}, s{S_T0}")
    a("    v_lshrrev_b32 v6, 3, v2")
    a("    v_and_b32 v7, 7, v2")
    a("    v_lshrrev_b32 v10, 1, v6")
    a("    v_xor_b32 v7, v7, v10")
    a("    v_lshlrev_b32 v10, 7, v6")
    a("    v_lshl_add_u32 v10, v7, 4, v10")
    a("    v_lshlrev_b32 v11, 6, v1")
    a("    v_xor_b32 v11, v10, v11")
    a(f"    v_lshl_add_u32 v{V_DMA}, v1, 10, v11")
    a("    v_and_b32 v7, 3, v4")
    a(f"    s_mov_b32 s{S_T0}, {ITSTR}")
    a(f"    v_mul_lo_u32 v7, v7, s{S_T0}")
    a("    v_lshrrev_b32 v6, 2, v4")
    a("    v_lshl_add_u32 v7, v6, 7, v7")
    a("    v_lshl_add_u32 v9, v3, 4, v7")
    if MAP == 2:
        a(f"    s_and_b32 s{S_CUR}, s2, 7")
        a(f"    s_lshl_b32 s{S_CUR}, s{S_CUR}, 6")
        a(f"    s_lshr_b32 s{S_T1}, s2, 3")
        a(f"    s_add_u32 s{S_CUR}, s{S_CUR}, s{S_T1}")
        a(f"    s_lshl_b32 s{S_CUR}, s{S_CUR}, 3")
    elif MAP == 1:
        a(f"    s_lshl_b32 s{S_CUR}, s2, 3")
    else:
        a(f"    s_lshl_b32 s{S_CUR}, s2, 1")
    a(f"    s_add_u32 s{S_CUR}, s{S_CUR}, s{S_PAIR}")
    a(f"    s_mul_i32 s{S_CUR}, s{S_CUR}, 12800")
    a(f"    s_lshl_b32 s{S_T1}, s{S_WAVE}, 13")
    a(f"    s_add_u32 s{S_T1}, s{S_T1}, {WOFF[0]}")
    a(f"    s_cmp_eq_u32 s{S_WAVE}, 3")
    a(f"    s_cselect_b32 s{S_T1}, {WOFF[3]}, s{S_T1}")
    a(f"    s_mov_b32 s{S_W + 2}, 8192"); a(f"    s_mov_b32 s{S_W + 3}, 0x00020000")
    a(f"    s_mov_b32 s{S_E + 2}, {EBYTES}"); a(f"    s_mov_b32 s{S_E + 3}, 0x00020000")
    a(f"    s_mov_b32 s{S_O + 2}, {EBYTES}"); a(f"    s_mov_b32 s{S_O + 3}, 0x00020000")
    a(f"    s_movk_i32 s{S_T2}, 4096")
    a(f"    s_mov_b32 m0, s{S_T1}")
    a(f"    s_add_u32 s{S_RING[3]}, s{S_CUR}, {96 * 128}")
    a("    s_waitcnt lgkmcnt(0)")
    if STAMP:
        a("    s_memtime s[84:85]")
    a(f"    s_mov_b32 s{S_W}, s6"); a(f"    s_and_b32 s{S_W + 1}, s7, 0xffff")
    a(f"    s_mov_b32 s{S_E}, s4"); a(f"    s_and_b32 s{S_E + 1}, s5, 0xffff")
    for k in range(4):
        a(f"    buffer_load_dwordx4 v8, s[{S_W}:{S_W + 3}], 0 offen offset:{k * 1024} lds")
    a(f"    s_add_u32 m0, s{S_T1}, 4096")
    a(f"    s_mov_b32 s{S_O}, s26"); a(f"    s_and_b32 s{S_O + 1}, s27, 0xffff")
    for k in range(4):
        a(f"    buffer_load_dwordx4 v8, s[{S_W}:{S_W + 3}], s{S_T2} offen offset:{k * 1024} lds")
    et = RA[0]
    e0 = []
    for m in range(3):
        e0 += finalize(dma_pair(0, m, S_RING[m]))[0]
    e0 += [f"    buffer_load_dwordx4 {r4(et)}, v{LA[0]}, s[{S_E}:{S_E + 3}], s{S_RING[3]} offen",
           f"    buffer_load_dwordx4 {r4(et + 4)}, v{LA[0]}, s[{S_E}:{S_E + 3}], s{S_RING[3]} offen offset:64"]
    a(f"    v_mov_b32 v{LA[0]}, v9")
    if DELAY:
        a(f"    s_cmp_ge_u32 s2, {NWG // 2}")
        a("    s_cbranch_scc1 L_late0")
    if PRIO:
        a("    s_setprio 2")
    P.extend(e0)
    if PRIO:
        a("    s_setprio 3")
    if DELAY:
        a("L_late0:")
    a("    v_lshlrev_b32 v5, 7, v4")
    a("    v_lshl_add_u32 v5, v3, 4, v5")
    a(f"    v_lshl_add_u32 v{V_ST}, v1, 6, v5")
    a("    v_lshrrev_b32 v7, 1, v4")
    a("    v_xor_b32 v7, v3, v7")
    a("    v_lshlrev_b32 v6, 7, v4")
    a("    v_lshl_add_u32 v6, v7, 4, v6")
    a(f"    v_add_u32 v{V_LA[0]}, s{S_LDSP}, v6")
    a(f"    v_xor_b32 v{V_LA[1]}, 64, v{V_LA[0]}")
    a(f"    s_mul_i32 s{S_T0}, s{S_WAVE}, {4 * XROW}")
    a(f"    s_add_u32 s{S_T0}, s{S_T0}, {XSCR}")
    a(f"    v_mul_u32_u24 v6, {XROW}, v3")
    a("    v_lshl_add_u32 v6, v4, 1, v6")
    a(f"    v_add_u32 v{V_XW}, s{S_T0}, v6")
    a("    v_lshrrev_b32 v6, 2, v4")
    a(f"    v_mul_u32_u24 v6, {XROW}, v6")
    a("    v_lshl_add_u32 v6, v3, 3, v6")
    a(f"    v_add_u32 v{V_XR}, s{S_T0}, v6")
    for k in range(4):
        a(f"    v_mov_b32 v{ONES + k}, 0x3f803f80")
        a(f"    v_mov_b32 v{CB + k}, 0x{f32bits(-BSHIFT):08x}")
        a(f"    s_mov_b32 s{S_TM[k]}, 0x{0x11111111 << k:08x}")
        a(f"    s_mov_b32 s{S_TM[k] + 1}, 0x{0x11111111 << k:08x}")
    for pp in PT:
        a(f"    v_mov_b32 v{pp + 1}, 0")
    A0, A1, A2 = OA[0], OA[0] + 1, OA[0] + 2
    a("    v_lshrrev_b32 v10, 2, v4")
    a("    v_lshl_add_u32 v10, v3, 3, v10")
    a("    v_and_b32 v11, 3, v4")
    a("    v_lshlrev_b32 v12, 6, v10")
    a("    v_lshl_add_u32 v12, v1, 12, v12")
    a(f"    v_add_u32 v12, {WOFF[0]}, v12")
    a(f"    v_lshl_add_u32 v{A0}, v11, 3, v12")
    a(f"    v_lshl_add_u32 v{A1}, v11, 4, v12")
    a("    v_lshlrev_b32 v12, 7, v10")
    a("    v_lshl_add_u32 v12, v1, 6, v12")
    a("    v_lshl_add_u32 v12, v11, 4, v12")
    a(f"    v_add_u32 v{A2}, {WOFF[3]}, v12")
    a(f"    v_mov_b32 v{V_LMAX}, 0")
    a(f"    v_mov_b32 v{V_LMIN}, 1.0")
    if DELAY:
        a(f"    s_cmp_ge_u32 s2, {NWG // 2}")
        a("    s_cbranch_scc1 L_late1")
        a("    s_waitcnt vmcnt(8)")
        a("    s_barrier")
        a("    s_branch L_late2")
        a("L_late1:")
        a("    s_waitcnt vmcnt(0)")
        a("    s_barrier")
        P.extend(e0)
        a("L_late2:")
    else:
        a("    s_waitcnt vmcnt(8)")
        a("    s_barrier")
    if STAMP:
        a("    s_memtime s[86:87]")
        a("    s_waitcnt lgkmcnt(0)")

    def trread(base, moff, addr, tstride, rowb):
        for s_ in range(2):
            for t in range(2):
                for half in range(2):
                    off = moff + (32 * s_ + 4 * half) * rowb + t * tstride
                    a(f"    ds_read_b64_tr_b16 {r2(base + 8 * s_ + 4 * t + 2 * half)}, v{addr} offset:{off}")
    trread(WQ, 0, A0, 32, 64)
    trread(WK, 8192, A0, 32, 64)
    trread(WV, 16384, A1, 8, 64)
    trread(WR, 0, A2, 8, 128)
    a("    s_waitcnt lgkmcnt(15)")
    a("    s_waitcnt lgkmcnt(12)")
    t0, t1 = OA[1], OA[1] + 1
    a(f"    s_mov_b32 s{S_T0}, 0x{f32bits(CSCALE):08x}")
    for k in range(16):
        a(f"    v_lshlrev_b32 v{t0}, 16, v{WQ + k}")
        a(f"    v_and_b32 v{t1}, 0xffff0000, v{WQ + k}")
        a(f"    v_mul_f32 v{t0}, s{S_T0}, v{t0}")
        a(f"    v_mul_f32 v{t1}, s{S_T0}, v{t1}")
        a(f"    v_cvt_pk_bf16_f32 v{WQ + k}, v{t0}, v{t1}")
    a(f"    s_mov_b32 s{S_LO}, 0x{f32bits(L_LO):08x}")
    a(f"    s_mov_b32 s{S_HI}, 0x{f32bits(L_HI):08x}")
    a("    s_waitcnt vmcnt(6) lgkmcnt(0)")
    a("    s_barrier")
    if STAMP:
        a("    s_memtime s[68:69]")
        a("    s_waitcnt lgkmcnt(0)")
    return P


def main():
    out = []
    a = out.append
    hdr = open('standalone__attention_interact_autoint__recsys.s.ref').read().split('\n')
    for line in hdr:
        if line.startswith('; @launch'):
            a(f"; @launch grid=({NWG},1,1) block=(256,1,1) lds={LDS_TOTAL}")
        elif line.startswith(';'):
            a(line)
        else:
            break
    a('.amdgcn_target "amdgcn-amd-amdhsa--gfx950"')
    a(".text")
    a(f".globl {KN}")
    a(".p2align 8")
    a(f".type {KN},@function")
    a(f"{KN}:")
    out += prologue()
    body = main_program()
    if NOSCHED:
        sched, est = body, 0
    else:
        best = None
        for sd in range(opt('seed', 0), opt('seed', 0) + opt('tries', 1)):
            sc, es = schedule3(body, window=WINDOW, noise=float(opts.get('noise', 0)), seed=sd, pool_lo=opt('pool', 64), horizon=opt('hor', 48), prebuilt=best is not None)
            ln, _ = finalize(sc)
            T2 = sim2.simulate(ln, nwaves=2)[0]
            if best is None or T2 < best[0]:
                best = (T2, sc, es, sd)
        _, sched, est, sd = best
    lines, nnop = finalize(sched)
    msg = ""
    for nw in (1, 2):
        T, done, busy = sim2.simulate(lines, nwaves=nw)
        msg += f"sim{nw}: {T / (4 * nw):.0f}/unit (busy {busy / (4 * nw):.0f}) "
    sys.stderr.write(msg + f"| {len(body)} instrs, {nnop} nops, vgprs {A.n}\n")
    out += lines
    a(f"    v_cmp_lt_f32 vcc, s{S_HI}, v{V_LMAX}")
    a(f"    v_cmp_gt_f32 s[28:29], s{S_LO}, v{V_LMIN}")
    a("    s_nop 1")
    a("    s_or_b64 vcc, vcc, s[28:29]")
    if FORCE_SAFE:
        a("    s_branch L_safe")
    a("    s_cbranch_scc1 L_safe")
    a("L_end:")
    if STAMP:
        a("    s_memtime s[76:77]")
        a("    s_waitcnt vmcnt(0)")
        a("    s_memtime s[78:79]")
        a("    s_memrealtime s[80:81]")
        a("    s_waitcnt lgkmcnt(0)")
        a(f"    s_lshl_b32 s82, s2, 2")
        a(f"    s_add_u32 s82, s82, s{S_WAVE}")
        a(f"    s_lshl_b32 s82, s82, 6")
        a(f"    v_mov_b32 v2, s82")
        regs = [92, 93, 64, 66, 68, 68, 70, 72, 74, 76, 78, 80, 84, 86, 68]
        for k, r in enumerate(regs):
            a(f"    v_mov_b32 v3, s{r}")
            a(f"    global_store_dword v2, v3, s[90:91] offset:{4 * k}")
    a("L_done:")
    a("    s_endpgm")
    a("L_safe:")
    a("    s_waitcnt vmcnt(0)")
    x0, x1, x2, x3 = PD[0], PD[0] + 1, PD[0] + 2, PD[0] + 3
    lane_ids(a, x0, x1, x2)
    a(f"    v_and_b32 v{x0}, 3, v{x2}")
    a(f"    v_lshrrev_b32 v{x2}, 2, v{x2}")
    a(f"    v_lshlrev_b32 v{x2}, 7, v{x2}")
    a(f"    v_lshl_add_u32 v{x2}, v{x1}, 4, v{x2}")
    a(f"    s_lshl_b32 s{S_T0}, s{S_HEAD}, 6")
    a(f"    v_cmp_ne_u32 vcc, 0, v{x0}")
    a(f"    v_mov_b32 v{x3}, 0x7f000000")
    a(f"    v_subrev_u32 v{V_XW}, s{S_T0}, v{V_ST}")
    a(f"    v_cndmask_b32 v{V_XR}, v{x2}, v{x3}, vcc")
    a(f"    v_add_u32 v{V_DMA}, s{S_T0}, v{V_XR}")
    a(f"    v_mov_b32 v{PT[0] + 1}, 0")
    a(f"    s_mov_b32 s{S_T2}, s{S_CUR}")
    a(f"    s_mov_b32 s{S_IT}, 0")
    a("L_safe_loop:")
    lines, _ = finalize(safe_program())
    out += lines
    a("    s_nop 7")
    a(f"    s_add_u32 s{S_T2}, s{S_T2}, {ITSTR}")
    a(f"    s_add_u32 s{S_IT}, s{S_IT}, 1")
    a(f"    s_cmp_lt_u32 s{S_IT}, {NIT}")
    a("    s_cbranch_scc1 L_safe_loop")
    a("    s_branch L_end")
    a('.section .rodata,"a"')
    a(".p2align 6")
    a(f".amdhsa_kernel {KN}")
    a(f"  .amdhsa_next_free_vgpr {NVGPR}")
    a(f"  .amdhsa_next_free_sgpr {100 if STAMP else 64}")
    a(f"  .amdhsa_accum_offset {NVGPR}")
    a("  .amdhsa_group_segment_fixed_size 0")
    a("  .amdhsa_kernarg_size 64")
    a("  .amdhsa_user_sgpr_count 2")
    a("  .amdhsa_user_sgpr_kernarg_segment_ptr 1")
    a("  .amdhsa_system_sgpr_workgroup_id_x 1")
    a(".end_amdhsa_kernel")
    open(sys.argv[1], 'w').write("\n".join(out) + "\n")


main()
```

```python
import sys, struct, math
sys.path.insert(0, 'gen')
from sched import Ins, vr, finalize
from sched3 import schedule3
import sim2

KN = "standalone__attention_interact_autoint__recsys_kernel"
NWG = 512
NIT = 4
EBYTES = 4096 * 100 * 64 * 2
ITSTR = NWG * 2 * 12800
BSTR = 12288
PSTR = 3 * BSTR
LDS_TOTAL = 81920
XSCR = 2 * PSTR
XROW = 224
WOFF = [BSTR, BSTR + 8192, BSTR + 16384, PSTR + BSTR]

opts = dict(a.split('=') for a in sys.argv[2:]) if len(sys.argv) > 2 else {}
def opt(k, d): return int(opts.get(k, d))
G = 2
MAP = opt('map', 0)
if MAP:
    ITSTR = 2 * 12800
TQI = opt('tqi', 3)
AH = opt('ah', 4)
QAH = opt('qah', 2)
QP2 = opt('qp2', 2)
E1E = opt('e1e', 0)
E3E = opt('e3e', 1)
AH0 = opt('ah0', 4)
BD = opt('bd', 2)
DELAY = opt('delay', 3)
PP = opts.get('pp', '')
FORCE_SAFE = opt('force_safe', 0)
NOSCHED = opt('nosched', 0)
WINDOW = opt('window', 300)
STAMP = opt('stamp', 0)
PRIO = opt('prio', 1)
RSB = opt('rsb', 0)
STF = opts.get('stf', 'sc1').replace('+', ' ')
LDF = opts.get('ldf', 'nt').replace('+', ' ')
NOMEM = opt('nomem', 0)


def f32bits(x):
    return struct.unpack('<I', struct.pack('<f', x))[0]


class Alloc:
    def __init__(self, start):
        self.n = start

    def get(self, k, align=2):
        self.n = (self.n + align - 1) // align * align
        r = self.n
        self.n += k
        return r


A = Alloc(2)
WQ = A.get(16); WK = A.get(16); WV = A.get(16); WR = A.get(16)
KP = A.get(28)
VP = [A.get(14), A.get(14)]
QT = A.get(4)
RT = A.get(8)
EB = [A.get(8) for _ in range(opt('neb', 2))]
PD = [A.get(4) for _ in range(opt('npd', 4))]
QP = [A.get(4) for _ in range(opt('nq', 3))]
SB = [A.get(8) for _ in range(opt('nsb', 3))]
PT = [A.get(2) for _ in range(opt('npt', 2))]
OA = [A.get(8) for _ in range(opt('no', 2))]
RA = [] if RSB else [A.get(8)]
LA = [A.get(4) for _ in range(opt('no', 2))]
ONES = A.get(4)
CB = A.get(4)
V_LA = [A.get(1, 1) for _ in range(2)]
V_DMA = A.get(1, 1)
V_ST = A.get(1, 1)
V_XW = A.get(1, 1)
V_XR = A.get(1, 1)
V_LMAX = 0
V_LMIN = 1
assert A.n <= 256, A.n
NVGPR = 256

S_E = 8; S_O = 12; S_W = 16
S_HEAD = 32; S_CUR = 33; S_IT = 35
S_RING = list(range(36, 44))
S_T0 = 45; S_T1 = 46; S_T2 = 47
S_LO = 48; S_HI = 49; S_WAVE = 52; S_PAIR = 53; S_LDSP = 54; S_LDSH = 55
S_TM = [56, 58, 60, 62]

BSHIFT = 60.0
L_LO = 2.0 ** -76
L_HI = 1.0
CSCALE = math.log2(math.e) / math.sqrt(32.0)


def r4(a): return f"v[{a}:{a + 3}]"
def r2(a): return f"v[{a}:{a + 1}]"


def mfma(d, a, b, c=None):
    if c is None:
        return Ins(f"v_mfma_f32_16x16x32_bf16 {r4(d)}, {r4(a)}, {r4(b)}, 0", 'mfma', vr(d, 4), vr(a, 4) + vr(b, 4))
    return Ins(f"v_mfma_f32_16x16x32_bf16 {r4(d)}, {r4(a)}, {r4(b)}, {r4(c)}", 'mfma', vr(d, 4), vr(a, 4) + vr(b, 4), vr(c, 4))


def mfmas(d, a, b, c):
    return Ins(f"v_mfma_f32_16x16x16_bf16 {r4(d)}, {r2(a)}, {r2(b)}, {r4(c)}", 'mfmas', vr(d, 4), vr(a, 2) + vr(b, 2), vr(c, 4))


def cvt(d, a, b):
    sa = "0" if a is None else f"v{a}"
    sb_ = "0" if b is None else f"v{b}"
    return Ins(f"v_cvt_pk_bf16_f32 v{d}, {sa}, {sb_}", 'valu', vr(d), ([] if a is None else vr(a)) + ([] if b is None else vr(b)))


def vexp(d, a):
    return Ins(f"v_exp_f32 v{d}, v{a}", 'trans', vr(d), vr(a))


def valu(text, defs, uses):
    return Ins(text, 'valu', defs, uses)


def salu(text, defs, uses):
    return Ins(text, 'salu', defs, uses)


class Ring:
    def __init__(self, items):
        self.items = items
        self.i = 0

    def next(self):
        r = self.items[self.i % len(self.items)]
        self.i += 1
        return r


SRD_E = [f's{S_E + i}' for i in range(4)]
SRD_O = [f's{S_O + i}' for i in range(4)]


def dma_pair(it, m, so):
    return [salu(f"s_add_u32 m0, s{S_LDSH}, {(it % 3) * BSTR + m * 4096}", ['m0', 'scc'], []),
            salu(f"s_add_u32 s{so}, s{S_CUR}, {it * ITSTR + m * 4096}", [f's{so}', 'scc'], []),
            Ins(f"buffer_load_dwordx4 v{V_DMA}, s[{S_E}:{S_E + 3}], s{so} offen {LDF} lds", 'dma', [], vr(V_DMA) + [f's{so}', 'm0']),
            Ins(f"buffer_load_dwordx4 v{V_DMA}, s[{S_E}:{S_E + 3}], s{so} offen offset:2048 {LDF} lds", 'dma', [], vr(V_DMA) + [f's{so}', 'm0'])]


def proj_t(w, eb, d0, d1):
    return [mfma(d0, w + 0, eb + 0), mfma(d1, w + 4, eb + 0), mfma(d0, w + 8, eb + 4, d0), mfma(d1, w + 12, eb + 4, d1)]


def pack4(k, d0, d1):
    return [cvt(k, d0, d0 + 1), cvt(k + 1, d0 + 2, d0 + 3), cvt(k + 2, d1, d1 + 1), cvt(k + 3, d1 + 2, d1 + 3)]


def kv_tile(t, eb, pd):
    d0, d1 = pd.next(), pd.next()
    L = proj_t(WK, eb, d0, d1) + pack4(KP + 4 * t, d0, d1)
    d0, d1 = pd.next(), pd.next()
    L += [mfma(d0, eb + 0, WV + 0), mfma(d1, eb + 0, WV + 4), mfma(d0, eb + 4, WV + 8, d0), mfma(d1, eb + 4, WV + 12, d1)]
    for u, d in ((0, d0), (1, d1)):
        v = VP[u] + 2 * t
        L += [cvt(v, d, d + 1), cvt(v + 1, d + 2, d + 3)]
    return L


def q_proj(eb, pd, q):
    d0, d1 = pd.next(), pd.next()
    return proj_t(WQ, eb, d0, d1) + pack4(q, d0, d1)


def out_pack(o):
    L = [cvt(o + j, o + 2 * j, o + 2 * j + 1) for j in range(4)]
    L += [valu(f"v_pk_max_i16 v{o + j}, v{o + j}, 0", vr(o + j), vr(o + j)) for j in range(4)]
    return L


def main_program():
    L = []
    eb = Ring(EB); pd = Ring(PD); qp = Ring(QP); sb = Ring(SB); pt = Ring(PT)
    oa = Ring(OA); la = Ring(LA); sr = Ring(S_RING)
    Q = {}; O = {}; LL = {}
    st = {'lprev': None, 'n': 0}
    done_kv = set()
    vm_marks = {}

    six = []

    def nvm():
        return sum(1 for x in L if x.kind in ('dma', 'store')) + 6 * sum(1 for x in L if any(x is y for y in six))

    FREE = 'free' if opt('freeds', 1) else ''
    gate = {}
    rdw = {}

    def sync(text, fake=()):
        return Ins(text, 'sync', list(fake), [], tag=FREE)

    def readE(it, t):
        e = eb.next()
        off = (it % 3) * BSTR + t * 2048
        X = []
        if it == 0 and t in (2, 4) and ('s', t) not in st:
            st[('s', t)] = 1
            X.append(sync(f"s_waitcnt vmcnt({(4 if t == 2 else 2) + nvm()})\n    s_barrier", vr(e, 4)))
            gate[0, t] = gate[0, t + 1] = X[-1]
        if it > 0 and ('b', it) not in st:
            st[('b', it)] = 1
            n = nvm() - vm_marks[it]
            txt = f"s_waitcnt vmcnt({n})\n    s_barrier"
            if PRIO and not PP:
                txt += f"\n    s_setprio {3 - it}"
            if STAMP:
                txt += f"\n    s_memtime s[{68 + 2 * it}:{69 + 2 * it}]\n    s_waitcnt lgkmcnt(0)"
            X.append(sync(txt, vr(e, 4)))
            for tt in range(6):
                gate[it, tt] = X[-1]
            X[-1].order_after += rdw.get(it - 2, [])
            if BD and it + 1 < NIT and not (BD == 2 and it == 1):
                D = []
                for m in range(3):
                    D += dma_pair(it + 1, m, S_T0)
                X[-1].text += "\n" + "\n".join(finalize(D)[0])
                X[-1].defs += ['m0', 'scc', f's{S_T0}']
                six.append(X[-1])
                vm_marks[it + 1] = nvm() + 6
        R = [Ins(f"ds_read_b128 {r4(e)}, v{V_LA[0]} offset:{off}", 'dsr', vr(e, 4), vr(V_LA[0]), tag=FREE),
             Ins(f"ds_read_b128 {r4(e + 4)}, v{V_LA[1]} offset:{off}", 'dsr', vr(e + 4, 4), vr(V_LA[1]), tag=FREE),
             Ins("wait", 'wait', vr(e, 8), vr(e, 8))]
        if (it, t) in gate:
            R[0].order_after.append(gate[it, t]); R[1].order_after.append(gate[it, t])
        rdw.setdefault(it, []).append(R[2])
        X += R
        return e, X

    def qproj(it, i, e):
        Q[it, i] = qp.next()
        return q_proj(e, pd, Q[it, i])

    def kv(it, t):
        if (it, t) in done_kv or t > 5:
            return []
        done_kv.add((it, t))
        e, X = readE(it, t)
        if t < G:
            X += qproj(it, t, e)
        return X + kv_tile(t, e, pd)

    def step(it, i, p):
        X = []
        q = Q[it, i]
        if p == 0:
            O[it, i] = oa.next(); LL[it, i] = la.next()
        o = O[it, i]; l = LL[it, i]
        if p < 3:
            b = sb.next()
            X += [mfma(b, KP + 8 * p, q, CB), mfma(b + 4, KP + 8 * p + 4, q, CB)]
            X += [vexp(b + j, b + j) for j in (2, 3, 0, 1, 4, 5, 6, 7)]
            X += [cvt(b + 3, b + 2, b + 3), cvt(b + 2, b, b + 1), cvt(b + 4, b + 4, b + 5), cvt(b + 5, b + 6, b + 7)]
            z = p == 0
            X += [mfma(o, VP[0] + 4 * p, b + 2, None if z else o), mfma(o + 4, VP[1] + 4 * p, b + 2, None if z else o + 4),
                  mfma(l, ONES, b + 2, None if z else l)]
        else:
            s_ = pd.next(); pp = pt.next()
            X += [mfma(s_, KP + 24, q, CB), vexp(s_ + it, s_ + it)]
            X.append(cvt(pp + (it >> 1), s_ + it, None) if it % 2 == 0 else cvt(pp + (it >> 1), None, s_ + it))
            X += [mfmas(l, ONES, pp, l), mfmas(o, VP[0] + 12, pp, o), mfmas(o + 4, VP[1] + 12, pp, o + 4)]
        return X

    def lrange(l):
        X = []
        st['n'] += 1
        if st['n'] % 2 == 0:
            lp = st['lprev']
            X.append(valu(f"v_max3_f32 v{V_LMAX}, v{V_LMAX}, v{lp}, v{l}", vr(V_LMAX), vr(V_LMAX) + vr(lp) + vr(l)))
            X.append(valu(f"v_min3_f32 v{V_LMIN}, v{V_LMIN}, v{lp}, v{l}", vr(V_LMIN), vr(V_LMIN) + vr(lp) + vr(l)))
        st['lprev'] = l
        return X

    def lrange1(l):
        return [valu(f"v_max_f32 v{V_LMAX}, v{V_LMAX}, v{l}", vr(V_LMAX), vr(V_LMAX) + vr(l)),
                valu(f"v_min_f32 v{V_LMIN}, v{V_LMIN}, v{l}", vr(V_LMIN), vr(V_LMIN) + vr(l))]

    def res(it, i):
        e, X = readE(it, i)
        r = sb.next() if RSB else RA[0]
        return r, X + proj_t(WR, e, r, r + 4)

    def fin(it, i, r):
        o = O[it, i]; l = LL[it, i]; inv = l + 1
        X = [Ins(f"v_rcp_f32 v{inv}, v{l}", 'trans', vr(inv), vr(l))]
        X += [valu(f"v_fma_f32 v{o + j}, v{o + j}, v{inv}, v{r + j}", vr(o + j), vr(o + j) + vr(inv) + vr(r + j)) for j in range(8)]
        X += out_pack(o)
        so = sr.next()
        X.append(salu(f"s_add_u32 s{so}, s{S_CUR}, {it * ITSTR + i * 2048}", [f's{so}', 'scc'], []))
        X.append(Ins(f"buffer_store_dwordx4 {r4(o)}, v{V_ST}, s[{S_O}:{S_O + 3}], s{so} offen {STF}", 'store', [], vr(o, 4) + vr(V_ST) + [f's{so}']))
        return X + lrange(l)

    def tailq_scores(it):
        X = []
        xs = sb.next()
        for t in range(7):
            d = pd.next()
            X += [mfma(d, QT, KP + 4 * t, CB), vexp(xs + t, d + it)]
        X.append(valu(f"v_cndmask_b32 v{xs + 6}, 0, v{xs + 6}, s[{S_TM[it]}:{S_TM[it] + 1}]", vr(xs + 6), vr(xs + 6)))
        for k in range(4):
            X.append(cvt(xs + 2 * k, xs + 2 * k, xs + 2 * k + 1 if k < 3 else None))
            X.append(Ins(f"ds_write_b16 v{V_XW}, v{xs + 2 * k} offset:{64 * k}", 'dsw', [], vr(V_XW) + vr(xs + 2 * k)))
            if k < 3:
                X.append(Ins(f"ds_write_b16_d16_hi v{V_XW}, v{xs + 2 * k} offset:{64 * k + 32}", 'dsw', [], vr(V_XW) + vr(xs + 2 * k)))
        return X

    def tailq_pv(it):
        X = []
        o = oa.next(); l = la.next()
        b0 = eb.next(); b1 = eb.next()
        pr = [b0, b0 + 4, b1, b1 + 4]
        for p in range(3):
            X.append(Ins(f"ds_read2_b64 {r4(pr[p])}, v{V_XR} offset0:{8 * p} offset1:{8 * p + 4}", 'dsr', vr(pr[p], 4), vr(V_XR)))
        X.append(Ins(f"ds_read_b64 {r2(pr[3])}, v{V_XR} offset:192", 'dsr', vr(pr[3], 2), vr(V_XR)))
        X.append(Ins("wait", 'wait', vr(b0, 8) + vr(b1, 6), vr(b0, 8) + vr(b1, 6)))
        for p in range(3):
            z = p == 0
            X += [mfma(l, ONES, pr[p], None if z else l), mfma(o, VP[0] + 4 * p, pr[p], None if z else o),
                  mfma(o + 4, VP[1] + 4 * p, pr[p], None if z else o + 4)]
        X += [mfmas(l, ONES, pr[3], l), mfmas(o, VP[0] + 12, pr[3], o), mfmas(o + 4, VP[1] + 12, pr[3], o + 4)]
        inv = l + 1
        X.append(Ins(f"v_rcp_f32 v{inv}, v{l}", 'trans', vr(inv), vr(l)))
        X.append(valu(f"v_cndmask_b32 v{inv}, 0, v{inv}, s[{S_TM[it]}:{S_TM[it] + 1}]", vr(inv), vr(inv)))
        X += [valu(f"v_fma_f32 v{RT + j}, v{o + j}, v{inv}, v{RT + j}", vr(RT + j), vr(o + j) + vr(inv) + vr(RT + j)) for j in range(8)]
        return X + lrange(l)

    def dma(it, m):
        X = dma_pair(it, m, sr.next())
        X[0].order_after.append(L[-1])
        return X

    et = RA[0]

    def tail_proj():
        X = [Ins(f"s_waitcnt vmcnt({nvm()})", 'sync', vr(et, 8), [], tag=FREE)]
        X[0].order_after.append(L[-1])
        return X + kv_tile(6, et, pd) + q_proj(et, pd, QT) + proj_t(WR, et, RT, RT + 4)

    def tail_store():
        x = pd.next()
        x0, x1, x2, x3 = x, x + 1, x + 2, x + 3
        so = sr.next(); s1 = sr.next(); s2_ = sr.next()
        X = out_pack(RT)
        X += [valu(f"v_mbcnt_lo_u32_b32 v{x0}, -1, 0", vr(x0), []),
              valu(f"v_mbcnt_hi_u32_b32 v{x0}, -1, v{x0}", vr(x0), vr(x0)),
              valu(f"v_lshrrev_b32 v{x1}, 4, v{x0}", vr(x1), vr(x0)),
              valu(f"v_bfe_u32 v{x2}, v{x0}, 2, 2", vr(x2), vr(x0)),
              valu(f"v_and_b32 v{x0}, 3, v{x0}", vr(x0), vr(x0)),
              salu(f"s_mov_b32 s{s1}, {ITSTR}", [f's{s1}'], []),
              valu(f"v_mul_lo_u32 v{x3}, v{x0}, s{s1}", vr(x3), vr(x0) + [f's{s1}']),
              valu(f"v_lshl_add_u32 v{x3}, v{x2}, 7, v{x3}", vr(x3), vr(x2) + vr(x3)),
              valu(f"v_lshl_add_u32 v{x3}, v{x1}, 4, v{x3}", vr(x3), vr(x1) + vr(x3)),
              salu(f"s_lshl_b32 s{s2_}, s{S_HEAD}, 6", [f's{s2_}', 'scc'], []),
              salu(f"s_add_u32 s{so}, s{S_CUR}, s{s2_}", [f's{so}', 'scc'], [f's{s2_}']),
              salu(f"s_add_u32 s{so}, s{so}, {96 * 128}", [f's{so}', 'scc'], [f's{so}']),
              Ins(f"buffer_store_dwordx4 {r4(RT)}, v{x3}, s[{S_O}:{S_O + 3}], s{so} offen {STF}", 'store', [], vr(RT, 4) + vr(x3) + [f's{so}'])]
        return X
    for it in range(NIT):
        dq = []
        if it == 0:
            dq = [(1, 0), (1, 1), (1, 2)] + ([] if BD == 1 else [(2, 0), (2, 1), (2, 2)])
        elif it == 2 and not E3E and not BD:
            dq = [(3, 0), (3, 1), (3, 2)]

        def pop_dma():
            if dq:
                b, m = dq.pop(0)
                X = dma(b, m)
                L.extend(X)
                if m == 2:
                    vm_marks[b] = nvm()
        L += kv(it, 0)
        if it == 0 and E1E >= 2:
            pop_dma()
        L += kv(it, 1)
        if it == 0 and E1E >= 2:
            pop_dma()
        if it == 2:
            for pp in PT:
                L.append(valu(f"v_mov_b32 v{pp}, 0", vr(pp), []))
        for p in range(4):
            nxt = [t for t in (2 * p + 2, 2 * p + 3) if t < 6]
            for i in range(G):
                L += step(it, i, p)
                if it > 0 or ((BD == 1 or len(dq) > 3) and (p >= 2 or E1E)):
                    pop_dma()
                if nxt:
                    L += kv(it, nxt.pop(0))
            if p == 1 and it == 0:
                L += tail_proj()
            if p == 2:
                e, X = readE(it, G)
                L += X + qproj(it, G, e)
        for i in range(G):
            if QAH == 2 and i == 0:
                e, X = readE(it, G + 1)
                L += X + qproj(it, G + 1, e)
            r, X = res(it, i)
            L += X + fin(it, i, r)
        for i in range(G, 6):
            if PP and f"{it}{i}" in PP.split('_'):
                x = salu(f"s_setprio {2 - PP.split('_').index(f'{it}{i}')}", [], [])
                x.order_after.append(L[-1])
                L.append(x)
            for p in range(4):
                L += step(it, i, p)
                if p == 2:
                    pop_dma()
                if QAH == 1 and p == 0 and i < 5:
                    e, X = readE(it, i + 1)
                    L += X + qproj(it, i + 1, e)
                if QAH == 2 and p == QP2 and i < 4:
                    e, X = readE(it, i + 2)
                    L += X + qproj(it, i + 2, e)
                if i == TQI and p == 1:
                    L += tailq_scores(it)
                if p == 1:
                    r, X = res(it, i)
                    L += X
                if i == 5 and it + 1 < NIT:
                    for t in (2 * p, 2 * p + 1):
                        if t < (AH if it > 0 else AH0):
                            L += kv(it + 1, t)
                    if E3E and not BD and it == 1 and p < 3:
                        dq.append((3, p))
                        pop_dma()
            L += fin(it, i, r)
            if i == TQI:
                L += tailq_pv(it)
                if it == NIT - 1:
                    L += tail_store()
        assert not dq
    return L


def safe_program():
    L = []
    pd = Ring(PD)
    e = EB[0]; q = QP[0]; r = RT; o = OA[0]; l = LA[0]; s6 = OA[1]; pp = PT[0]
    m = LA[1]; m2 = LA[1] + 1
    va, vt, vst = V_XW, V_XR, V_DMA

    def load(t):
        a_ = va if t < 6 else vt
        X = [salu(f"s_add_u32 s{S_T0}, s{S_T2}, {t * 2048}", [f's{S_T0}', 'scc'], [])]
        X.append(Ins(f"buffer_load_dwordx4 {r4(e)}, v{a_}, s[{S_E}:{S_E + 3}], s{S_T0} offen\n"
                     f"    buffer_load_dwordx4 {r4(e + 4)}, v{a_}, s[{S_E}:{S_E + 3}], s{S_T0} offen offset:64\n"
                     f"    s_waitcnt vmcnt(0)", 'load', vr(e, 8), vr(a_) + [f's{S_T0}']))
        return X
    for t in range(7):
        L += load(t) + kv_tile(t, e, pd)
    for i in range(7):
        L += load(i) + q_proj(e, pd, q) + proj_t(WR, e, r, r + 4)
        for p in range(3):
            b = SB[p]
            L += [mfma(b, KP + 8 * p, q), mfma(b + 4, KP + 8 * p + 4, q)]
        L.append(mfma(s6, KP + 24, q))
        regs = [SB[p] + j for p in range(3) for j in range(8)]
        L.append(valu(f"v_mov_b32 v{m}, v{s6}", vr(m), vr(s6)))
        for k in range(0, 24, 2):
            L.append(valu(f"v_max3_f32 v{m}, v{m}, v{regs[k]}, v{regs[k + 1]}", vr(m), vr(m) + vr(regs[k]) + vr(regs[k + 1])))
        for sw in ("v_permlane16_swap_b32", "v_permlane32_swap_b32"):
            L.append(valu(f"v_mov_b32 v{m2}, v{m}", vr(m2), vr(m)))
            L.append(Ins(f"{sw} v{m}, v{m2}", 'perm', vr(m) + vr(m2), vr(m) + vr(m2)))
            L.append(valu(f"v_max_f32 v{m}, v{m}, v{m2}", vr(m), vr(m) + vr(m2)))
        for x in regs + [s6]:
            L.append(valu(f"v_sub_f32 v{x}, v{x}, v{m}", vr(x), vr(x) + vr(m)))
            L.append(vexp(x, x))
        for p in range(3):
            b = SB[p]
            L += [cvt(b + 3, b + 2, b + 3), cvt(b + 2, b, b + 1), cvt(b + 4, b + 4, b + 5), cvt(b + 5, b + 6, b + 7)]
            z = p == 0
            L += [mfma(o, VP[0] + 4 * p, b + 2, None if z else o), mfma(o + 4, VP[1] + 4 * p, b + 2, None if z else o + 4),
                  mfma(l, ONES, b + 2, None if z else l)]
        L.append(cvt(pp, s6, None))
        L += [mfmas(o, VP[0] + 12, pp, o), mfmas(o + 4, VP[1] + 12, pp, o + 4), mfmas(l, ONES, pp, l)]
        inv = l + 1
        L.append(Ins(f"v_rcp_f32 v{inv}, v{l}", 'trans', vr(inv), vr(l)))
        L += [valu(f"v_fma_f32 v{o + j}, v{o + j}, v{inv}, v{r + j}", vr(o + j), vr(o + j) + vr(inv) + vr(r + j)) for j in range(8)]
        L += out_pack(o)
        a_ = V_ST if i < 6 else vst
        L.append(salu(f"s_add_u32 s{S_T1}, s{S_T2}, {i * 2048}", [f's{S_T1}', 'scc'], []))
        L.append(Ins(f"buffer_store_dwordx4 {r4(o)}, v{a_}, s[{S_O}:{S_O + 3}], s{S_T1} offen {STF}", 'store', [], vr(o, 4) + vr(a_) + [f's{S_T1}']))
    return L


def lane_ids(a, lane, g, c):
    a(f"    v_mbcnt_lo_u32_b32 v{lane}, -1, 0")
    a(f"    v_mbcnt_hi_u32_b32 v{lane}, -1, v{lane}")
    a(f"    v_lshrrev_b32 v{g}, 4, v{lane}")
    a(f"    v_and_b32 v{c}, 15, v{lane}")


def prologue():
    P = []
    a = P.append
    a(f"    s_cmp_ge_u32 s2, {NWG}")
    a("    s_cbranch_scc1 L_done")
    if PRIO:
        a("    s_setprio 3")
    if STAMP:
        a("    s_memtime s[64:65]")
        a("    s_memrealtime s[66:67]")
        a("    s_load_dwordx2 s[90:91], s[0:1], 56")
        a("    s_getreg_b32 s93, hwreg(HW_REG_HW_ID)")
        a("    s_getreg_b32 s92, hwreg(HW_REG_XCC_ID)")
    a("    v_lshrrev_b32 v1, 6, v0")
    a("    s_load_dwordx2 s[4:5], s[0:1], 0")
    a("    s_load_dwordx2 s[26:27], s[0:1], 40")
    a(f"    v_readfirstlane_b32 s{S_WAVE}, v1")
    a("    v_and_b32 v2, 63, v0")
    a("    v_and_b32 v1, 1, v1")
    a("    v_lshrrev_b32 v3, 4, v2")
    a(f"    s_lshl_b32 s{S_T0}, s{S_WAVE}, 3")
    a(f"    s_add_u32 s20, s0, s{S_T0}")
    a("    s_addc_u32 s21, s1, 0")
    a("    s_load_dwordx2 s[6:7], s[20:21], 8")
    a(f"    s_and_b32 s{S_HEAD}, s{S_WAVE}, 1")
    a(f"    s_lshr_b32 s{S_PAIR}, s{S_WAVE}, 1")
    a("    v_and_b32 v4, 15, v2")
    a(f"    v_lshlrev_b32 v{LA[0] + 1}, 4, v2")
    a(f"    s_mul_i32 s{S_LDSP}, s{S_PAIR}, {PSTR}")
    a(f"    s_lshl_b32 s{S_T0}, s{S_HEAD}, 10")
    a(f"    s_add_u32 s{S_LDSH}, s{S_LDSP}, s{S_T0}")
    a("    v_lshrrev_b32 v6, 3, v2")
    a("    v_and_b32 v7, 7, v2")
    a("    v_lshrrev_b32 v10, 1, v6")
    a("    v_xor_b32 v7, v7, v10")
    a("    v_lshlrev_b32 v10, 7, v6")
    a("    v_lshl_add_u32 v10, v7, 4, v10")
    a("    v_lshlrev_b32 v11, 6, v1")
    a("    v_xor_b32 v11, v10, v11")
    a(f"    v_lshl_add_u32 v{V_DMA}, v1, 10, v11")
    a("    v_and_b32 v7, 3, v4")
    a(f"    s_mov_b32 s{S_T0}, {ITSTR}")
    a(f"    v_mul_lo_u32 v7, v7, s{S_T0}")
    a("    v_lshrrev_b32 v6, 2, v4")
    a("    v_lshl_add_u32 v7, v6, 7, v7")
    a("    v_lshl_add_u32 v9, v3, 4, v7")
    if MAP == 2:
        a(f"    s_and_b32 s{S_CUR}, s2, 7")
        a(f"    s_lshl_b32 s{S_CUR}, s{S_CUR}, 6")
        a(f"    s_lshr_b32 s{S_T1}, s2, 3")
        a(f"    s_add_u32 s{S_CUR}, s{S_CUR}, s{S_T1}")
        a(f"    s_lshl_b32 s{S_CUR}, s{S_CUR}, 3")
    elif MAP == 1:
        a(f"    s_lshl_b32 s{S_CUR}, s2, 3")
    else:
        a(f"    s_lshl_b32 s{S_CUR}, s2, 1")
    a(f"    s_add_u32 s{S_CUR}, s{S_CUR}, s{S_PAIR}")
    a(f"    s_mul_i32 s{S_CUR}, s{S_CUR}, 12800")
    a(f"    s_lshl_b32 s{S_T1}, s{S_WAVE}, 13")
    a(f"    s_add_u32 s{S_T1}, s{S_T1}, {WOFF[0]}")
    a(f"    s_cmp_eq_u32 s{S_WAVE}, 3")
    a(f"    s_cselect_b32 s{S_T1}, {WOFF[3]}, s{S_T1}")
    a(f"    s_mov_b32 s{S_W + 2}, 8192"); a(f"    s_mov_b32 s{S_W + 3}, 0x00020000")
    a(f"    s_mov_b32 s{S_E + 2}, {EBYTES}"); a(f"    s_mov_b32 s{S_E + 3}, 0x00020000")
    a(f"    s_mov_b32 s{S_O + 2}, {EBYTES}"); a(f"    s_mov_b32 s{S_O + 3}, 0x00020000")
    a(f"    s_movk_i32 s{S_T2}, 4096")
    a(f"    s_mov_b32 m0, s{S_T1}")
    a(f"    s_add_u32 s{S_RING[3]}, s{S_CUR}, {96 * 128}")
    a("    s_waitcnt lgkmcnt(0)")
    if STAMP:
        a("    s_memtime s[84:85]")
    a(f"    s_mov_b32 s{S_W}, s6"); a(f"    s_and_b32 s{S_W + 1}, s7, 0xffff")
    a(f"    s_mov_b32 s{S_E}, s4"); a(f"    s_and_b32 s{S_E + 1}, s5, 0xffff")
    a(f"    s_mov_b32 s{S_O}, s26"); a(f"    s_and_b32 s{S_O + 1}, s27, 0xffff")
    wl = [f"    s_mov_b32 m0, s{S_T1}", "    s_nop 0"]
    for k in range(4):
        wl.append(f"    buffer_load_dwordx4 v{LA[0] + 1}, s[{S_W}:{S_W + 3}], 0 offen offset:{k * 1024} lds")
    wl += [f"    s_add_u32 m0, s{S_T1}, 4096", "    s_nop 0"]
    for k in range(4):
        wl.append(f"    buffer_load_dwordx4 v{LA[0] + 1}, s[{S_W}:{S_W + 3}], s{S_T2} offen offset:{k * 1024} lds")
    if DELAY >= 2:
        a(f"    s_cmp_ge_u32 s2, {NWG // 2}")
        a("    s_cbranch_scc1 L_lateW")
    P.extend(wl)
    if DELAY >= 2:
        a("L_lateW:")
    et = RA[0]
    e0 = []
    for m in range(3):
        e0 += finalize(dma_pair(0, m, S_RING[m]))[0]
    e0 += [f"    buffer_load_dwordx4 {r4(et)}, v{LA[0]}, s[{S_E}:{S_E + 3}], s{S_RING[3]} offen",
           f"    buffer_load_dwordx4 {r4(et + 4)}, v{LA[0]}, s[{S_E}:{S_E + 3}], s{S_RING[3]} offen offset:64"]
    a(f"    v_mov_b32 v{LA[0]}, v9")
    if DELAY in (1, 4):
        a(f"    s_cmp_ge_u32 s2, {NWG // 2}")
        a("    s_cbranch_scc1 L_late0")
    if PRIO:
        a("    s_setprio 2")
    P.extend(e0)
    if PRIO:
        a("    s_setprio 3")
    if DELAY in (1, 4):
        a("L_late0:")
    a("    v_lshlrev_b32 v5, 7, v4")
    a("    v_lshl_add_u32 v5, v3, 4, v5")
    a(f"    v_lshl_add_u32 v{V_ST}, v1, 6, v5")
    a("    v_lshrrev_b32 v7, 1, v4")
    a("    v_xor_b32 v7, v3, v7")
    a("    v_lshlrev_b32 v6, 7, v4")
    a("    v_lshl_add_u32 v6, v7, 4, v6")
    a(f"    v_add_u32 v{V_LA[0]}, s{S_LDSP}, v6")
    a(f"    v_xor_b32 v{V_LA[1]}, 64, v{V_LA[0]}")
    a(f"    s_mul_i32 s{S_T0}, s{S_WAVE}, {4 * XROW}")
    a(f"    s_add_u32 s{S_T0}, s{S_T0}, {XSCR}")
    a(f"    v_mul_u32_u24 v6, {XROW}, v3")
    a("    v_lshl_add_u32 v6, v4, 1, v6")
    a(f"    v_add_u32 v{V_XW}, s{S_T0}, v6")
    a("    v_lshrrev_b32 v6, 2, v4")
    a(f"    v_mul_u32_u24 v6, {XROW}, v6")
    a("    v_lshl_add_u32 v6, v3, 3, v6")
    a(f"    v_add_u32 v{V_XR}, s{S_T0}, v6")
    for k in range(4):
        a(f"    v_mov_b32 v{ONES + k}, 0x3f803f80")
        a(f"    v_mov_b32 v{CB + k}, 0x{f32bits(-BSHIFT):08x}")
        a(f"    s_mov_b32 s{S_TM[k]}, 0x{0x11111111 << k:08x}")
        a(f"    s_mov_b32 s{S_TM[k] + 1}, 0x{0x11111111 << k:08x}")
    for pp in PT:
        a(f"    v_mov_b32 v{pp + 1}, 0")
    A0, A1, A2 = OA[0], OA[0] + 1, OA[0] + 2
    a("    v_lshrrev_b32 v10, 2, v4")
    a("    v_lshl_add_u32 v10, v3, 3, v10")
    a("    v_and_b32 v11, 3, v4")
    a("    v_lshlrev_b32 v12, 6, v10")
    a("    v_lshl_add_u32 v12, v1, 12, v12")
    a(f"    v_add_u32 v12, {WOFF[0]}, v12")
    a(f"    v_lshl_add_u32 v{A0}, v11, 3, v12")
    a(f"    v_lshl_add_u32 v{A1}, v11, 4, v12")
    a("    v_lshlrev_b32 v12, 7, v10")
    a("    v_lshl_add_u32 v12, v1, 6, v12")
    a("    v_lshl_add_u32 v12, v11, 4, v12")
    a(f"    v_add_u32 v{A2}, {WOFF[3]}, v12")
    a(f"    v_mov_b32 v{V_LMAX}, 0")
    a(f"    v_mov_b32 v{V_LMIN}, 1.0")
    if DELAY:
        a(f"    s_cmp_ge_u32 s2, {NWG // 2}")
        a("    s_cbranch_scc1 L_late1")
        a("    s_waitcnt vmcnt(8)")
        a("    s_barrier")
        a("    s_branch L_late2")
        a("L_late1:")
        if DELAY == 1:
            a("    s_waitcnt vmcnt(0)")
            a("    s_barrier")
            P.extend(e0)
        elif DELAY == 4:
            P.extend(e0[-2:])
            a("    s_waitcnt vmcnt(0)")
            P.extend(wl)
            P.extend(e0)
            a("    s_waitcnt vmcnt(8)")
            a("    s_barrier")
        else:
            if DELAY == 2:
                a("    s_waitcnt vmcnt(7)")
            P.extend(wl)
            a("    s_waitcnt vmcnt(0)")
            a("    s_barrier")
        a("L_late2:")
    else:
        a("    s_waitcnt vmcnt(8)")
        a("    s_barrier")
    if STAMP:
        a("    s_memtime s[86:87]")
        a("    s_waitcnt lgkmcnt(0)")

    def trread(base, moff, addr, tstride, rowb):
        for s_ in range(2):
            for t in range(2):
                for half in range(2):
                    off = moff + (32 * s_ + 4 * half) * rowb + t * tstride
                    a(f"    ds_read_b64_tr_b16 {r2(base + 8 * s_ + 4 * t + 2 * half)}, v{addr} offset:{off}")
    trread(WQ, 0, A0, 32, 64)
    trread(WK, 8192, A0, 32, 64)
    trread(WV, 16384, A1, 8, 64)
    trread(WR, 0, A2, 8, 128)
    a("    s_waitcnt lgkmcnt(15)")
    a("    s_waitcnt lgkmcnt(12)")
    t0, t1 = OA[1], OA[1] + 1
    a(f"    s_mov_b32 s{S_T0}, 0x{f32bits(CSCALE):08x}")
    for k in range(16):
        a(f"    v_lshlrev_b32 v{t0}, 16, v{WQ + k}")
        a(f"    v_and_b32 v{t1}, 0xffff0000, v{WQ + k}")
        a(f"    v_mul_f32 v{t0}, s{S_T0}, v{t0}")
        a(f"    v_mul_f32 v{t1}, s{S_T0}, v{t1}")
        a(f"    v_cvt_pk_bf16_f32 v{WQ + k}, v{t0}, v{t1}")
    a(f"    s_mov_b32 s{S_LO}, 0x{f32bits(L_LO):08x}")
    a(f"    s_mov_b32 s{S_HI}, 0x{f32bits(L_HI):08x}")
    a("    s_waitcnt vmcnt(6) lgkmcnt(0)")
    a("    s_barrier")
    if STAMP:
        a("    s_memtime s[68:69]")
        a("    s_waitcnt lgkmcnt(0)")
    return P


DOC = """
Generated by the author's own script (list scheduler + wait-state checker); no compiler output.
Work split : workgroup = 4 waves = 2 batches x 2 heads, each wave does 4 batches (b = wg*2 + pair + it*1024), fully unrolled.
Data flow  : e rows 0..95 -> LDS (LDS-DMA, XOR-swizzled, 3 buffers per pair); weights -> registers via ds_read_b64_tr_b16.
             K^T/Q^T/res^T = W^T x E^T and V = E x Wv with 16x16x32 MFMA; accumulator layouts chain directly into
             S^T = K x Q^T and O^T = V^T x P^T (only v_cvt_pk between them). Row sums come from an all-ones MFMA.
             Rows 96..99 of the wave's four batches share one extra 16-column tile.
Softmax    : fast path uses p = 2^(s*log2e/sqrt(32) - 60) (constant shift fed through the MFMA C operand). Every row sum is
             range-checked at run time ([2^-76, 1]); if any row leaves that window the wave redoes its batches in L_safe
             with the true row maximum subtracted.
"""


def main():
    out = []
    a = out.append
    hdr = open('standalone__attention_interact_autoint__recsys.s.ref').read().split('\n')
    for line in hdr:
        if line.startswith('; @launch'):
            a(f"; @launch grid=({NWG},1,1) block=(256,1,1) lds={LDS_TOTAL}")
        elif line.startswith(';'):
            a(line)
        else:
            break
    a('.amdgcn_target "amdgcn-amd-amdhsa--gfx950"')
    for line in DOC.strip().split("\n"):
        a("; " + line)
    a(".text")
    a(f".globl {KN}")
    a(".p2align 8")
    a(f".type {KN},@function")
    a(f"{KN}:")
    out += prologue()
    body = main_program()
    if NOSCHED:
        sched, est = body, 0
    else:
        best = None
        for sd in range(opt('seed', 0), opt('seed', 0) + opt('tries', 1)):
            sc, es = schedule3(body, window=WINDOW, noise=float(opts.get('noise', 0)), seed=sd, pool_lo=opt('pool', 64), horizon=opt('hor', 48), prebuilt=best is not None)
            ln, _ = finalize(sc)
            T2 = sim2.simulate(ln, nwaves=2)[0]
            if best is None or T2 < best[0]:
                best = (T2, sc, es, sd)
        _, sched, est, sd = best
    lines, nnop = finalize(sched)
    msg = ""
    for nw in (1, 2):
        T, done, busy = sim2.simulate(lines, nwaves=nw)
        msg += f"sim{nw}: {T / (4 * nw):.0f}/unit (busy {busy / (4 * nw):.0f}) "
    sys.stderr.write(msg + f"| {len(body)} instrs, {nnop} nops, vgprs {A.n}\n")
    out += lines
    a(f"    v_cmp_lt_f32 vcc, s{S_HI}, v{V_LMAX}")
    a(f"    v_cmp_gt_f32 s[28:29], s{S_LO}, v{V_LMIN}")
    a("    s_nop 1")
    a("    s_or_b64 vcc, vcc, s[28:29]")
    if FORCE_SAFE:
        a("    s_branch L_safe")
    a("    s_cbranch_scc1 L_safe")
    a("L_end:")
    if STAMP:
        a("    s_memtime s[76:77]")
        a("    s_waitcnt vmcnt(0)")
        a("    s_memtime s[78:79]")
        a("    s_memrealtime s[80:81]")
        a("    s_waitcnt lgkmcnt(0)")
        a(f"    s_lshl_b32 s82, s2, 2")
        a(f"    s_add_u32 s82, s82, s{S_WAVE}")
        a(f"    s_lshl_b32 s82, s82, 6")
        a(f"    v_mov_b32 v2, s82")
        regs = [92, 93, 64, 66, 68, 68, 70, 72, 74, 76, 78, 80, 84, 86, 68]
        for k, r in enumerate(regs):
            a(f"    v_mov_b32 v3, s{r}")
            a(f"    global_store_dword v2, v3, s[90:91] offset:{4 * k}")
    a("L_done:")
    a("    s_endpgm")
    a("L_safe:")
    a("    s_waitcnt vmcnt(0)")
    x0, x1, x2, x3 = PD[0], PD[0] + 1, PD[0] + 2, PD[0] + 3
    lane_ids(a, x0, x1, x2)
    a(f"    v_and_b32 v{x0}, 3, v{x2}")
    a(f"    v_lshrrev_b32 v{x2}, 2, v{x2}")
    a(f"    v_lshlrev_b32 v{x2}, 7, v{x2}")
    a(f"    v_lshl_add_u32 v{x2}, v{x1}, 4, v{x2}")
    a(f"    s_lshl_b32 s{S_T0}, s{S_HEAD}, 6")
    a(f"    v_cmp_ne_u32 vcc, 0, v{x0}")
    a(f"    v_mov_b32 v{x3}, 0x7f000000")
    a(f"    v_subrev_u32 v{V_XW}, s{S_T0}, v{V_ST}")
    a(f"    v_cndmask_b32 v{V_XR}, v{x2}, v{x3}, vcc")
    a(f"    v_add_u32 v{V_DMA}, s{S_T0}, v{V_XR}")
    a(f"    v_mov_b32 v{PT[0] + 1}, 0")
    a(f"    s_mov_b32 s{S_T2}, s{S_CUR}")
    a(f"    s_mov_b32 s{S_IT}, 0")
    a("L_safe_loop:")
    lines, _ = finalize(safe_program())
    out += lines
    a("    s_nop 7")
    a(f"    s_add_u32 s{S_T2}, s{S_T2}, {ITSTR}")
    a(f"    s_add_u32 s{S_IT}, s{S_IT}, 1")
    a(f"    s_cmp_lt_u32 s{S_IT}, {NIT}")
    a("    s_cbranch_scc1 L_safe_loop")
    a("    s_branch L_end")
    a('.section .rodata,"a"')
    a(".p2align 6")
    a(f".amdhsa_kernel {KN}")
    a(f"  .amdhsa_next_free_vgpr {NVGPR}")
    a(f"  .amdhsa_next_free_sgpr {100 if STAMP else 64}")
    a(f"  .amdhsa_accum_offset {NVGPR}")
    a("  .amdhsa_group_segment_fixed_size 0")
    a("  .amdhsa_kernarg_size 64")
    a("  .amdhsa_user_sgpr_count 2")
    a("  .amdhsa_user_sgpr_kernarg_segment_ptr 1")
    a("  .amdhsa_system_sgpr_workgroup_id_x 1")
    a(".end_amdhsa_kernel")
    open(sys.argv[1], 'w').write("\n".join(out) + "\n")


main()
```

```python
import sys, struct, math
sys.path.insert(0, 'gen')
from sched import Ins, vr, finalize
from sched3 import schedule3
import sim2

KN = "standalone__attention_interact_autoint__recsys_kernel"
NWG = 512
NIT = 4
EBYTES = 4096 * 100 * 64 * 2
ITSTR = NWG * 2 * 12800
BSTR = 12288
PSTR = 3 * BSTR
LDS_TOTAL = 81920
XSCR = 2 * PSTR
XROW = 224
WOFF = [BSTR, BSTR + 8192, BSTR + 16384, PSTR + BSTR]

opts = dict(a.split('=') for a in sys.argv[2:]) if len(sys.argv) > 2 else {}
def opt(k, d): return int(opts.get(k, d))
G = 2
MAP = opt('map', 0)
if MAP:
    ITSTR = 2 * 12800
TQI = opt('tqi', 3)
AH = opt('ah', 4)
QAH = opt('qah', 2)
QP2 = opt('qp2', 2)
E1E = opt('e1e', 0)
E3E = opt('e3e', 1)
AH0 = opt('ah0', 4)
BD = opt('bd', 2)
OT = opt('ot', 0)
DELAY = opt('delay', 3)
PP = opts.get('pp', '')
FORCE_SAFE = opt('force_safe', 0)
NOSCHED = opt('nosched', 0)
WINDOW = opt('window', 300)
STAMP = opt('stamp', 0)
PRIO = opt('prio', 1)
RSB = opt('rsb', 0)
STF = opts.get('stf', 'sc1').replace('+', ' ')
LDF = opts.get('ldf', 'nt').replace('+', ' ')
NOMEM = opt('nomem', 0)


def f32bits(x):
    return struct.unpack('<I', struct.pack('<f', x))[0]


class Alloc:
    def __init__(self, start):
        self.n = start

    def get(self, k, align=2):
        self.n = (self.n + align - 1) // align * align
        r = self.n
        self.n += k
        return r


A = Alloc(2)
WQ = A.get(16); WK = A.get(16); WV = A.get(16); WR = A.get(16)
KP = A.get(28)
VP = [A.get(14), A.get(14)]
QT = A.get(4)
RT = A.get(8)
EB = [A.get(8) for _ in range(opt('neb', 2))]
PD = [A.get(4) for _ in range(opt('npd', 4))]
QP = [A.get(4) for _ in range(opt('nq', 3))]
SB = [A.get(8) for _ in range(opt('nsb', 3))]
PT = [A.get(2) for _ in range(opt('npt', 2))]
OA = [A.get(8) for _ in range(opt('no', 2))]
RA = [] if RSB else [A.get(8)]
LA = [A.get(4) for _ in range(opt('no', 2))]
ONES = A.get(4)
CB = A.get(4)
V_LA = [A.get(1, 1) for _ in range(2)]
V_DMA = A.get(1, 1)
V_ST = A.get(1, 1)
V_XW = A.get(1, 1)
V_XR = A.get(1, 1)
V_LMAX = 0
V_LMIN = 1
assert A.n <= 256, A.n
NVGPR = 256

S_E = 8; S_O = 12; S_W = 16
S_HEAD = 32; S_CUR = 33; S_IT = 35
S_RING = list(range(36, 44))
S_T0 = 45; S_T1 = 46; S_T2 = 47
S_LO = 48; S_HI = 49; S_WAVE = 52; S_PAIR = 53; S_LDSP = 54; S_LDSH = 55
S_TM = [56, 58, 60, 62]

BSHIFT = 60.0
L_LO = 2.0 ** -76
L_HI = 1.0
CSCALE = math.log2(math.e) / math.sqrt(32.0)


def r4(a): return f"v[{a}:{a + 3}]"
def r2(a): return f"v[{a}:{a + 1}]"


def mfma(d, a, b, c=None):
    if c is None:
        return Ins(f"v_mfma_f32_16x16x32_bf16 {r4(d)}, {r4(a)}, {r4(b)}, 0", 'mfma', vr(d, 4), vr(a, 4) + vr(b, 4))
    return Ins(f"v_mfma_f32_16x16x32_bf16 {r4(d)}, {r4(a)}, {r4(b)}, {r4(c)}", 'mfma', vr(d, 4), vr(a, 4) + vr(b, 4), vr(c, 4))


def mfmas(d, a, b, c):
    return Ins(f"v_mfma_f32_16x16x16_bf16 {r4(d)}, {r2(a)}, {r2(b)}, {r4(c)}", 'mfmas', vr(d, 4), vr(a, 2) + vr(b, 2), vr(c, 4))


def cvt(d, a, b):
    sa = "0" if a is None else f"v{a}"
    sb_ = "0" if b is None else f"v{b}"
    return Ins(f"v_cvt_pk_bf16_f32 v{d}, {sa}, {sb_}", 'valu', vr(d), ([] if a is None else vr(a)) + ([] if b is None else vr(b)))


def vexp(d, a):
    return Ins(f"v_exp_f32 v{d}, v{a}", 'trans', vr(d), vr(a))


def valu(text, defs, uses):
    return Ins(text, 'valu', defs, uses)


def salu(text, defs, uses):
    return Ins(text, 'salu', defs, uses)


class Ring:
    def __init__(self, items):
        self.items = items
        self.i = 0

    def next(self):
        r = self.items[self.i % len(self.items)]
        self.i += 1
        return r


SRD_E = [f's{S_E + i}' for i in range(4)]
SRD_O = [f's{S_O + i}' for i in range(4)]


def dma_pair(it, m, so):
    return [salu(f"s_add_u32 m0, s{S_LDSH}, {(it % 3) * BSTR + m * 4096}", ['m0', 'scc'], []),
            salu(f"s_add_u32 s{so}, s{S_CUR}, {it * ITSTR + m * 4096}", [f's{so}', 'scc'], []),
            Ins(f"buffer_load_dwordx4 v{V_DMA}, s[{S_E}:{S_E + 3}], s{so} offen {LDF} lds", 'dma', [], vr(V_DMA) + [f's{so}', 'm0']),
            Ins(f"buffer_load_dwordx4 v{V_DMA}, s[{S_E}:{S_E + 3}], s{so} offen offset:2048 {LDF} lds", 'dma', [], vr(V_DMA) + [f's{so}', 'm0'])]


def proj_t(w, eb, d0, d1):
    return [mfma(d0, w + 0, eb + 0), mfma(d1, w + 4, eb + 0), mfma(d0, w + 8, eb + 4, d0), mfma(d1, w + 12, eb + 4, d1)]


def pack4(k, d0, d1):
    return [cvt(k, d0, d0 + 1), cvt(k + 1, d0 + 2, d0 + 3), cvt(k + 2, d1, d1 + 1), cvt(k + 3, d1 + 2, d1 + 3)]


def kv_tile(t, eb, pd):
    d0, d1 = pd.next(), pd.next()
    L = proj_t(WK, eb, d0, d1) + pack4(KP + 4 * t, d0, d1)
    d0, d1 = pd.next(), pd.next()
    L += [mfma(d0, eb + 0, WV + 0), mfma(d1, eb + 0, WV + 4), mfma(d0, eb + 4, WV + 8, d0), mfma(d1, eb + 4, WV + 12, d1)]
    for u, d in ((0, d0), (1, d1)):
        v = VP[u] + 2 * t
        L += [cvt(v, d, d + 1), cvt(v + 1, d + 2, d + 3)]
    return L


def q_proj(eb, pd, q):
    d0, d1 = pd.next(), pd.next()
    return proj_t(WQ, eb, d0, d1) + pack4(q, d0, d1)


def out_pack(o):
    L = [cvt(o + j, o + 2 * j, o + 2 * j + 1) for j in range(4)]
    L += [valu(f"v_pk_max_i16 v{o + j}, v{o + j}, 0", vr(o + j), vr(o + j)) for j in range(4)]
    return L


def main_program():
    L = []
    eb = Ring(EB); pd = Ring(PD); qp = Ring(QP); sb = Ring(SB); pt = Ring(PT)
    oa = Ring(OA); la = Ring(LA); sr = Ring(S_RING)
    Q = {}; O = {}; LL = {}
    st = {'lprev': None, 'n': 0}
    done_kv = set()
    vm_marks = {}

    six = []

    def nvm():
        return sum(1 for x in L if x.kind in ('dma', 'store')) + 6 * sum(1 for x in L if any(x is y for y in six))

    FREE = 'free' if opt('freeds', 1) else ''
    gate = {}
    rdw = {}

    def sync(text, fake=()):
        return Ins(text, 'sync', list(fake), [], tag=FREE)

    def readE(it, t):
        e = eb.next()
        off = (it % 3) * BSTR + t * 2048
        X = []
        if it == 0 and t in (2, 4) and ('s', t) not in st:
            st[('s', t)] = 1
            X.append(sync(f"s_waitcnt vmcnt({(4 if t == 2 else 2) + OT + nvm()})\n    s_barrier", vr(e, 4)))
            gate[0, t] = gate[0, t + 1] = X[-1]
        if it > 0 and ('b', it) not in st:
            st[('b', it)] = 1
            n = nvm() - vm_marks[it]
            txt = f"s_waitcnt vmcnt({n})\n    s_barrier"
            if PRIO and not PP:
                txt += f"\n    s_setprio {3 - it}"
            if STAMP:
                txt += f"\n    s_memtime s[{68 + 2 * it}:{69 + 2 * it}]\n    s_waitcnt lgkmcnt(0)"
            X.append(sync(txt, vr(e, 4)))
            for tt in range(6):
                gate[it, tt] = X[-1]
            X[-1].order_after += rdw.get(it - 2, [])
            if BD and it + 1 < NIT and not (BD == 2 and it == 1):
                D = []
                for m in range(3):
                    D += dma_pair(it + 1, m, S_T0)
                X[-1].text += "\n" + "\n".join(finalize(D)[0])
                X[-1].defs += ['m0', 'scc', f's{S_T0}']
                six.append(X[-1])
                vm_marks[it + 1] = nvm() + 6
        R = [Ins(f"ds_read_b128 {r4(e)}, v{V_LA[0]} offset:{off}", 'dsr', vr(e, 4), vr(V_LA[0]), tag=FREE),
             Ins(f"ds_read_b128 {r4(e + 4)}, v{V_LA[1]} offset:{off}", 'dsr', vr(e + 4, 4), vr(V_LA[1]), tag=FREE),
             Ins("wait", 'wait', vr(e, 8), vr(e, 8))]
        if (it, t) in gate:
            R[0].order_after.append(gate[it, t]); R[1].order_after.append(gate[it, t])
        rdw.setdefault(it, []).append(R[2])
        X += R
        return e, X

    def qproj(it, i, e):
        Q[it, i] = qp.next()
        return q_proj(e, pd, Q[it, i])

    def kv(it, t):
        if (it, t) in done_kv or t > 5:
            return []
        done_kv.add((it, t))
        e, X = readE(it, t)
        if t < G:
            X += qproj(it, t, e)
        return X + kv_tile(t, e, pd)

    def step(it, i, p):
        X = []
        q = Q[it, i]
        if p == 0:
            O[it, i] = oa.next(); LL[it, i] = la.next()
        o = O[it, i]; l = LL[it, i]
        if p < 3:
            b = sb.next()
            X += [mfma(b, KP + 8 * p, q, CB), mfma(b + 4, KP + 8 * p + 4, q, CB)]
            X += [vexp(b + j, b + j) for j in (2, 3, 0, 1, 4, 5, 6, 7)]
            X += [cvt(b + 3, b + 2, b + 3), cvt(b + 2, b, b + 1), cvt(b + 4, b + 4, b + 5), cvt(b + 5, b + 6, b + 7)]
            z = p == 0
            X += [mfma(o, VP[0] + 4 * p, b + 2, None if z else o), mfma(o + 4, VP[1] + 4 * p, b + 2, None if z else o + 4),
                  mfma(l, ONES, b + 2, None if z else l)]
        else:
            s_ = pd.next(); pp = pt.next()
            X += [mfma(s_, KP + 24, q, CB), vexp(s_ + it, s_ + it)]
            X.append(cvt(pp + (it >> 1), s_ + it, None) if it % 2 == 0 else cvt(pp + (it >> 1), None, s_ + it))
            X += [mfmas(l, ONES, pp, l), mfmas(o, VP[0] + 12, pp, o), mfmas(o + 4, VP[1] + 12, pp, o + 4)]
        return X

    def lrange(l):
        X = []
        st['n'] += 1
        if st['n'] % 2 == 0:
            lp = st['lprev']
            X.append(valu(f"v_max3_f32 v{V_LMAX}, v{V_LMAX}, v{lp}, v{l}", vr(V_LMAX), vr(V_LMAX) + vr(lp) + vr(l)))
            X.append(valu(f"v_min3_f32 v{V_LMIN}, v{V_LMIN}, v{lp}, v{l}", vr(V_LMIN), vr(V_LMIN) + vr(lp) + vr(l)))
        st['lprev'] = l
        return X

    def lrange1(l):
        return [valu(f"v_max_f32 v{V_LMAX}, v{V_LMAX}, v{l}", vr(V_LMAX), vr(V_LMAX) + vr(l)),
                valu(f"v_min_f32 v{V_LMIN}, v{V_LMIN}, v{l}", vr(V_LMIN), vr(V_LMIN) + vr(l))]

    def res(it, i):
        e, X = readE(it, i)
        r = sb.next() if RSB else RA[0]
        return r, X + proj_t(WR, e, r, r + 4)

    def fin(it, i, r):
        o = O[it, i]; l = LL[it, i]; inv = l + 1
        X = [Ins(f"v_rcp_f32 v{inv}, v{l}", 'trans', vr(inv), vr(l))]
        X += [valu(f"v_fma_f32 v{o + j}, v{o + j}, v{inv}, v{r + j}", vr(o + j), vr(o + j) + vr(inv) + vr(r + j)) for j in range(8)]
        X += out_pack(o)
        so = sr.next()
        X.append(salu(f"s_add_u32 s{so}, s{S_CUR}, {it * ITSTR + i * 2048}", [f's{so}', 'scc'], []))
        X.append(Ins(f"buffer_store_dwordx4 {r4(o)}, v{V_ST}, s[{S_O}:{S_O + 3}], s{so} offen {STF}", 'store', [], vr(o, 4) + vr(V_ST) + [f's{so}']))
        return X + lrange(l)

    def tailq_scores(it):
        X = []
        xs = sb.next()
        for t in range(7):
            d = pd.next()
            X += [mfma(d, QT, KP + 4 * t, CB), vexp(xs + t, d + it)]
        X.append(valu(f"v_cndmask_b32 v{xs + 6}, 0, v{xs + 6}, s[{S_TM[it]}:{S_TM[it] + 1}]", vr(xs + 6), vr(xs + 6)))
        for k in range(4):
            X.append(cvt(xs + 2 * k, xs + 2 * k, xs + 2 * k + 1 if k < 3 else None))
            X.append(Ins(f"ds_write_b16 v{V_XW}, v{xs + 2 * k} offset:{64 * k}", 'dsw', [], vr(V_XW) + vr(xs + 2 * k)))
            if k < 3:
                X.append(Ins(f"ds_write_b16_d16_hi v{V_XW}, v{xs + 2 * k} offset:{64 * k + 32}", 'dsw', [], vr(V_XW) + vr(xs + 2 * k)))
        return X

    def tailq_pv(it):
        X = []
        o = oa.next(); l = la.next()
        b0 = eb.next(); b1 = eb.next()
        pr = [b0, b0 + 4, b1, b1 + 4]
        for p in range(3):
            X.append(Ins(f"ds_read2_b64 {r4(pr[p])}, v{V_XR} offset0:{8 * p} offset1:{8 * p + 4}", 'dsr', vr(pr[p], 4), vr(V_XR)))
        X.append(Ins(f"ds_read_b64 {r2(pr[3])}, v{V_XR} offset:192", 'dsr', vr(pr[3], 2), vr(V_XR)))
        X.append(Ins("wait", 'wait', vr(b0, 8) + vr(b1, 6), vr(b0, 8) + vr(b1, 6)))
        for p in range(3):
            z = p == 0
            X += [mfma(l, ONES, pr[p], None if z else l), mfma(o, VP[0] + 4 * p, pr[p], None if z else o),
                  mfma(o + 4, VP[1] + 4 * p, pr[p], None if z else o + 4)]
        X += [mfmas(l, ONES, pr[3], l), mfmas(o, VP[0] + 12, pr[3], o), mfmas(o + 4, VP[1] + 12, pr[3], o + 4)]
        inv = l + 1
        X.append(Ins(f"v_rcp_f32 v{inv}, v{l}", 'trans', vr(inv), vr(l)))
        X.append(valu(f"v_cndmask_b32 v{inv}, 0, v{inv}, s[{S_TM[it]}:{S_TM[it] + 1}]", vr(inv), vr(inv)))
        X += [valu(f"v_fma_f32 v{RT + j}, v{o + j}, v{inv}, v{RT + j}", vr(RT + j), vr(o + j) + vr(inv) + vr(RT + j)) for j in range(8)]
        return X + lrange(l)

    def dma(it, m):
        X = dma_pair(it, m, sr.next())
        X[0].order_after.append(L[-1])
        return X

    et = RA[0]

    def tail_proj():
        X = [Ins(f"s_waitcnt vmcnt({nvm()})", 'sync', vr(et, 8) + vr(QT), [], tag=FREE)]
        X[0].order_after.append(L[-1])
        return X + kv_tile(6, et, pd) + q_proj(et, pd, QT) + proj_t(WR, et, RT, RT + 4)

    def tail_store():
        x = pd.next()
        x0, x1, x2, x3 = x, x + 1, x + 2, x + 3
        so = sr.next(); s1 = sr.next(); s2_ = sr.next()
        X = out_pack(RT)
        X += [valu(f"v_mbcnt_lo_u32_b32 v{x0}, -1, 0", vr(x0), []),
              valu(f"v_mbcnt_hi_u32_b32 v{x0}, -1, v{x0}", vr(x0), vr(x0)),
              valu(f"v_lshrrev_b32 v{x1}, 4, v{x0}", vr(x1), vr(x0)),
              valu(f"v_bfe_u32 v{x2}, v{x0}, 2, 2", vr(x2), vr(x0)),
              valu(f"v_and_b32 v{x0}, 3, v{x0}", vr(x0), vr(x0)),
              salu(f"s_mov_b32 s{s1}, {ITSTR}", [f's{s1}'], []),
              valu(f"v_mul_lo_u32 v{x3}, v{x0}, s{s1}", vr(x3), vr(x0) + [f's{s1}']),
              valu(f"v_lshl_add_u32 v{x3}, v{x2}, 7, v{x3}", vr(x3), vr(x2) + vr(x3)),
              valu(f"v_lshl_add_u32 v{x3}, v{x1}, 4, v{x3}", vr(x3), vr(x1) + vr(x3)),
              salu(f"s_lshl_b32 s{s2_}, s{S_HEAD}, 6", [f's{s2_}', 'scc'], []),
              salu(f"s_add_u32 s{so}, s{S_CUR}, s{s2_}", [f's{so}', 'scc'], [f's{s2_}']),
              salu(f"s_add_u32 s{so}, s{so}, {96 * 128}", [f's{so}', 'scc'], [f's{so}']),
              Ins(f"buffer_store_dwordx4 {r4(RT)}, v{x3}, s[{S_O}:{S_O + 3}], s{so} offen {STF}", 'store', [], vr(RT, 4) + vr(x3) + [f's{so}'])]
        return X
    for it in range(NIT):
        dq = []
        if it == 0:
            dq = [(1, 0), (1, 1), (1, 2)] + ([] if BD == 1 else [(2, 0), (2, 1), (2, 2)])
        elif it == 2 and not E3E and not BD:
            dq = [(3, 0), (3, 1), (3, 2)]

        def pop_dma():
            if dq:
                b, m = dq.pop(0)
                X = dma(b, m)
                L.extend(X)
                if m == 2:
                    vm_marks[b] = nvm()
        L += kv(it, 0)
        if it == 0 and E1E >= 2:
            pop_dma()
        L += kv(it, 1)
        if it == 0 and E1E >= 2:
            pop_dma()
        if it == 2:
            for pp in PT:
                L.append(valu(f"v_mov_b32 v{pp}, 0", vr(pp), []))
        for p in range(4):
            nxt = [t for t in (2 * p + 2, 2 * p + 3) if t < 6]
            for i in range(G):
                L += step(it, i, p)
                if it > 0 or ((BD == 1 or len(dq) > 3) and (p >= 2 or E1E)):
                    pop_dma()
                if nxt:
                    L += kv(it, nxt.pop(0))
            if p == 1 and it == 0:
                L += tail_proj()
            if p == 2:
                e, X = readE(it, G)
                L += X + qproj(it, G, e)
        for i in range(G):
            if QAH == 2 and i == 0:
                e, X = readE(it, G + 1)
                L += X + qproj(it, G + 1, e)
            r, X = res(it, i)
            L += X + fin(it, i, r)
        for i in range(G, 6):
            if PP and f"{it}{i}" in PP.split('_'):
                x = salu(f"s_setprio {2 - PP.split('_').index(f'{it}{i}')}", [], [])
                x.order_after.append(L[-1])
                L.append(x)
            for p in range(4):
                L += step(it, i, p)
                if p == 2:
                    pop_dma()
                if QAH == 1 and p == 0 and i < 5:
                    e, X = readE(it, i + 1)
                    L += X + qproj(it, i + 1, e)
                if QAH == 2 and p == QP2 and i < 4:
                    e, X = readE(it, i + 2)
                    L += X + qproj(it, i + 2, e)
                if i == TQI and p == 1:
                    L += tailq_scores(it)
                if p == 1:
                    r, X = res(it, i)
                    L += X
                if i == 5 and it + 1 < NIT:
                    for t in (2 * p, 2 * p + 1):
                        if t < (AH if it > 0 else AH0):
                            L += kv(it + 1, t)
                    if E3E and not BD and it == 1 and p < 3:
                        dq.append((3, p))
                        pop_dma()
            L += fin(it, i, r)
            if i == TQI:
                L += tailq_pv(it)
                if it == NIT - 1:
                    L += tail_store()
        assert not dq
    return L


def safe_program():
    L = []
    pd = Ring(PD)
    e = EB[0]; q = QP[0]; r = RT; o = OA[0]; l = LA[0]; s6 = OA[1]; pp = PT[0]
    m = LA[1]; m2 = LA[1] + 1
    va, vt, vst = V_XW, V_XR, V_DMA

    def load(t):
        a_ = va if t < 6 else vt
        X = [salu(f"s_add_u32 s{S_T0}, s{S_T2}, {t * 2048}", [f's{S_T0}', 'scc'], [])]
        X.append(Ins(f"buffer_load_dwordx4 {r4(e)}, v{a_}, s[{S_E}:{S_E + 3}], s{S_T0} offen\n"
                     f"    buffer_load_dwordx4 {r4(e + 4)}, v{a_}, s[{S_E}:{S_E + 3}], s{S_T0} offen offset:64\n"
                     f"    s_waitcnt vmcnt(0)", 'load', vr(e, 8), vr(a_) + [f's{S_T0}']))
        return X
    for t in range(7):
        L += load(t) + kv_tile(t, e, pd)
    for i in range(7):
        L += load(i) + q_proj(e, pd, q) + proj_t(WR, e, r, r + 4)
        for p in range(3):
            b = SB[p]
            L += [mfma(b, KP + 8 * p, q), mfma(b + 4, KP + 8 * p + 4, q)]
        L.append(mfma(s6, KP + 24, q))
        regs = [SB[p] + j for p in range(3) for j in range(8)]
        L.append(valu(f"v_mov_b32 v{m}, v{s6}", vr(m), vr(s6)))
        for k in range(0, 24, 2):
            L.append(valu(f"v_max3_f32 v{m}, v{m}, v{regs[k]}, v{regs[k + 1]}", vr(m), vr(m) + vr(regs[k]) + vr(regs[k + 1])))
        for sw in ("v_permlane16_swap_b32", "v_permlane32_swap_b32"):
            L.append(valu(f"v_mov_b32 v{m2}, v{m}", vr(m2), vr(m)))
            L.append(Ins(f"{sw} v{m}, v{m2}", 'perm', vr(m) + vr(m2), vr(m) + vr(m2)))
            L.append(valu(f"v_max_f32 v{m}, v{m}, v{m2}", vr(m), vr(m) + vr(m2)))
        for x in regs + [s6]:
            L.append(valu(f"v_sub_f32 v{x}, v{x}, v{m}", vr(x), vr(x) + vr(m)))
            L.append(vexp(x, x))
        for p in range(3):
            b = SB[p]
            L += [cvt(b + 3, b + 2, b + 3), cvt(b + 2, b, b + 1), cvt(b + 4, b + 4, b + 5), cvt(b + 5, b + 6, b + 7)]
            z = p == 0
            L += [mfma(o, VP[0] + 4 * p, b + 2, None if z else o), mfma(o + 4, VP[1] + 4 * p, b + 2, None if z else o + 4),
                  mfma(l, ONES, b + 2, None if z else l)]
        L.append(cvt(pp, s6, None))
        L += [mfmas(o, VP[0] + 12, pp, o), mfmas(o + 4, VP[1] + 12, pp, o + 4), mfmas(l, ONES, pp, l)]
        inv = l + 1
        L.append(Ins(f"v_rcp_f32 v{inv}, v{l}", 'trans', vr(inv), vr(l)))
        L += [valu(f"v_fma_f32 v{o + j}, v{o + j}, v{inv}, v{r + j}", vr(o + j), vr(o + j) + vr(inv) + vr(r + j)) for j in range(8)]
        L += out_pack(o)
        a_ = V_ST if i < 6 else vst
        L.append(salu(f"s_add_u32 s{S_T1}, s{S_T2}, {i * 2048}", [f's{S_T1}', 'scc'], []))
        L.append(Ins(f"buffer_store_dwordx4 {r4(o)}, v{a_}, s[{S_O}:{S_O + 3}], s{S_T1} offen {STF}", 'store', [], vr(o, 4) + vr(a_) + [f's{S_T1}']))
    return L


def lane_ids(a, lane, g, c):
    a(f"    v_mbcnt_lo_u32_b32 v{lane}, -1, 0")
    a(f"    v_mbcnt_hi_u32_b32 v{lane}, -1, v{lane}")
    a(f"    v_lshrrev_b32 v{g}, 4, v{lane}")
    a(f"    v_and_b32 v{c}, 15, v{lane}")


def prologue():
    P = []
    a = P.append
    a(f"    s_cmp_ge_u32 s2, {NWG}")
    a("    s_cbranch_scc1 L_done")
    if PRIO:
        a("    s_setprio 3")
    if STAMP:
        a("    s_memtime s[64:65]")
        a("    s_memrealtime s[66:67]")
        a("    s_load_dwordx2 s[90:91], s[0:1], 56")
        a("    s_getreg_b32 s93, hwreg(HW_REG_HW_ID)")
        a("    s_getreg_b32 s92, hwreg(HW_REG_XCC_ID)")
    a("    v_lshrrev_b32 v1, 6, v0")
    a("    s_load_dwordx2 s[4:5], s[0:1], 0")
    a("    s_load_dwordx2 s[26:27], s[0:1], 40")
    a(f"    v_readfirstlane_b32 s{S_WAVE}, v1")
    a("    v_and_b32 v2, 63, v0")
    a("    v_and_b32 v1, 1, v1")
    a("    v_lshrrev_b32 v3, 4, v2")
    a(f"    s_lshl_b32 s{S_T0}, s{S_WAVE}, 3")
    a(f"    s_add_u32 s20, s0, s{S_T0}")
    a("    s_addc_u32 s21, s1, 0")
    a("    s_load_dwordx2 s[6:7], s[20:21], 8")
    a(f"    s_and_b32 s{S_HEAD}, s{S_WAVE}, 1")
    a(f"    s_lshr_b32 s{S_PAIR}, s{S_WAVE}, 1")
    a("    v_and_b32 v4, 15, v2")
    a(f"    v_lshlrev_b32 v{LA[0] + 1}, 4, v2")
    a(f"    s_mul_i32 s{S_LDSP}, s{S_PAIR}, {PSTR}")
    a(f"    s_lshl_b32 s{S_T0}, s{S_HEAD}, 10")
    a(f"    s_add_u32 s{S_LDSH}, s{S_LDSP}, s{S_T0}")
    a("    v_lshrrev_b32 v6, 3, v2")
    a("    v_and_b32 v7, 7, v2")
    a("    v_lshrrev_b32 v10, 1, v6")
    a("    v_xor_b32 v7, v7, v10")
    a("    v_lshlrev_b32 v10, 7, v6")
    a("    v_lshl_add_u32 v10, v7, 4, v10")
    a("    v_lshlrev_b32 v11, 6, v1")
    a("    v_xor_b32 v11, v10, v11")
    a(f"    v_lshl_add_u32 v{V_DMA}, v1, 10, v11")
    a("    v_and_b32 v7, 3, v4")
    a(f"    s_mov_b32 s{S_T0}, {ITSTR}")
    a(f"    v_mul_lo_u32 v7, v7, s{S_T0}")
    a("    v_lshrrev_b32 v6, 2, v4")
    a("    v_lshl_add_u32 v7, v6, 7, v7")
    a("    v_lshl_add_u32 v9, v3, 4, v7")
    if MAP == 2:
        a(f"    s_and_b32 s{S_CUR}, s2, 7")
        a(f"    s_lshl_b32 s{S_CUR}, s{S_CUR}, 6")
        a(f"    s_lshr_b32 s{S_T1}, s2, 3")
        a(f"    s_add_u32 s{S_CUR}, s{S_CUR}, s{S_T1}")
        a(f"    s_lshl_b32 s{S_CUR}, s{S_CUR}, 3")
    elif MAP == 1:
        a(f"    s_lshl_b32 s{S_CUR}, s2, 3")
    else:
        a(f"    s_lshl_b32 s{S_CUR}, s2, 1")
    a(f"    s_add_u32 s{S_CUR}, s{S_CUR}, s{S_PAIR}")
    a(f"    s_mul_i32 s{S_CUR}, s{S_CUR}, 12800")
    a(f"    s_lshl_b32 s{S_T1}, s{S_WAVE}, 13")
    a(f"    s_add_u32 s{S_T1}, s{S_T1}, {WOFF[0]}")
    a(f"    s_cmp_eq_u32 s{S_WAVE}, 3")
    a(f"    s_cselect_b32 s{S_T1}, {WOFF[3]}, s{S_T1}")
    a(f"    s_mov_b32 s{S_W + 2}, 8192"); a(f"    s_mov_b32 s{S_W + 3}, 0x00020000")
    a(f"    s_mov_b32 s{S_E + 2}, {EBYTES}"); a(f"    s_mov_b32 s{S_E + 3}, 0x00020000")
    a(f"    s_mov_b32 s{S_O + 2}, {EBYTES}"); a(f"    s_mov_b32 s{S_O + 3}, 0x00020000")
    a(f"    s_movk_i32 s{S_T2}, 4096")
    a(f"    s_mov_b32 m0, s{S_T1}")
    a(f"    s_add_u32 s{S_RING[3]}, s{S_CUR}, {96 * 128}")
    a("    s_waitcnt lgkmcnt(0)")
    if STAMP:
        a("    s_memtime s[84:85]")
    a(f"    s_mov_b32 s{S_W}, s6"); a(f"    s_and_b32 s{S_W + 1}, s7, 0xffff")
    a(f"    s_mov_b32 s{S_E}, s4"); a(f"    s_and_b32 s{S_E + 1}, s5, 0xffff")
    a(f"    s_mov_b32 s{S_O}, s26"); a(f"    s_and_b32 s{S_O + 1}, s27, 0xffff")
    wl = [f"    s_mov_b32 m0, s{S_T1}", "    s_nop 0"]
    for k in range(4):
        wl.append(f"    buffer_load_dwordx4 v{LA[0] + 1}, s[{S_W}:{S_W + 3}], 0 offen offset:{k * 1024} lds")
    wl += [f"    s_add_u32 m0, s{S_T1}, 4096", "    s_nop 0"]
    for k in range(4):
        wl.append(f"    buffer_load_dwordx4 v{LA[0] + 1}, s[{S_W}:{S_W + 3}], s{S_T2} offen offset:{k * 1024} lds")
    if DELAY >= 2:
        a(f"    s_cmp_ge_u32 s2, {NWG // 2}")
        a("    s_cbranch_scc1 L_lateW")
    P.extend(wl)
    if DELAY >= 2:
        a("L_lateW:")
    et = RA[0]
    e0 = []
    for m in range(3):
        e0 += finalize(dma_pair(0, m, S_RING[m]))[0]
    e0 += [f"    buffer_load_dwordx4 {r4(et)}, v{LA[0]}, s[{S_E}:{S_E + 3}], s{S_RING[3]} offen",
           f"    buffer_load_dwordx4 {r4(et + 4)}, v{LA[0]}, s[{S_E}:{S_E + 3}], s{S_RING[3]} offen offset:64"]
    if OT:
        e0.append(f"    buffer_load_dword v{QT}, v{LA[0]}, s[{S_O}:{S_O + 3}], s{S_RING[3]} offen")
    a(f"    v_mov_b32 v{LA[0]}, v9")
    if DELAY in (1, 4):
        a(f"    s_cmp_ge_u32 s2, {NWG // 2}")
        a("    s_cbranch_scc1 L_late0")
    if PRIO:
        a("    s_setprio 2")
    P.extend(e0)
    if PRIO:
        a("    s_setprio 3")
    if DELAY in (1, 4):
        a("L_late0:")
    a("    v_lshlrev_b32 v5, 7, v4")
    a("    v_lshl_add_u32 v5, v3, 4, v5")
    a(f"    v_lshl_add_u32 v{V_ST}, v1, 6, v5")
    a("    v_lshrrev_b32 v7, 1, v4")
    a("    v_xor_b32 v7, v3, v7")
    a("    v_lshlrev_b32 v6, 7, v4")
    a("    v_lshl_add_u32 v6, v7, 4, v6")
    a(f"    v_add_u32 v{V_LA[0]}, s{S_LDSP}, v6")
    a(f"    v_xor_b32 v{V_LA[1]}, 64, v{V_LA[0]}")
    a(f"    s_mul_i32 s{S_T0}, s{S_WAVE}, {4 * XROW}")
    a(f"    s_add_u32 s{S_T0}, s{S_T0}, {XSCR}")
    a(f"    v_mul_u32_u24 v6, {XROW}, v3")
    a("    v_lshl_add_u32 v6, v4, 1, v6")
    a(f"    v_add_u32 v{V_XW}, s{S_T0}, v6")
    a("    v_lshrrev_b32 v6, 2, v4")
    a(f"    v_mul_u32_u24 v6, {XROW}, v6")
    a("    v_lshl_add_u32 v6, v3, 3, v6")
    a(f"    v_add_u32 v{V_XR}, s{S_T0}, v6")
    for k in range(4):
        a(f"    v_mov_b32 v{ONES + k}, 0x3f803f80")
        a(f"    v_mov_b32 v{CB + k}, 0x{f32bits(-BSHIFT):08x}")
        a(f"    s_mov_b32 s{S_TM[k]}, 0x{0x11111111 << k:08x}")
        a(f"    s_mov_b32 s{S_TM[k] + 1}, 0x{0x11111111 << k:08x}")
    for pp in PT:
        a(f"    v_mov_b32 v{pp + 1}, 0")
    A0, A1, A2 = OA[0], OA[0] + 1, OA[0] + 2
    a("    v_lshrrev_b32 v10, 2, v4")
    a("    v_lshl_add_u32 v10, v3, 3, v10")
    a("    v_and_b32 v11, 3, v4")
    a("    v_lshlrev_b32 v12, 6, v10")
    a("    v_lshl_add_u32 v12, v1, 12, v12")
    a(f"    v_add_u32 v12, {WOFF[0]}, v12")
    a(f"    v_lshl_add_u32 v{A0}, v11, 3, v12")
    a(f"    v_lshl_add_u32 v{A1}, v11, 4, v12")
    a("    v_lshlrev_b32 v12, 7, v10")
    a("    v_lshl_add_u32 v12, v1, 6, v12")
    a("    v_lshl_add_u32 v12, v11, 4, v12")
    a(f"    v_add_u32 v{A2}, {WOFF[3]}, v12")
    a(f"    v_mov_b32 v{V_LMAX}, 0")
    a(f"    v_mov_b32 v{V_LMIN}, 1.0")
    if DELAY:
        a(f"    s_cmp_ge_u32 s2, {NWG // 2}")
        a("    s_cbranch_scc1 L_late1")
        a(f"    s_waitcnt vmcnt({8 + OT})")
        a("    s_barrier")
        a("    s_branch L_late2")
        a("L_late1:")
        if DELAY == 1:
            a("    s_waitcnt vmcnt(0)")
            a("    s_barrier")
            P.extend(e0)
        elif DELAY == 4:
            P.extend(e0[-2:])
            a("    s_waitcnt vmcnt(0)")
            P.extend(wl)
            P.extend(e0)
            a("    s_waitcnt vmcnt(8)")
            a("    s_barrier")
        else:
            if DELAY == 2:
                a("    s_waitcnt vmcnt(7)")
            P.extend(wl)
            a("    s_waitcnt vmcnt(0)")
            a("    s_barrier")
        a("L_late2:")
    else:
        a("    s_waitcnt vmcnt(8)")
        a("    s_barrier")
    if STAMP:
        a("    s_memtime s[86:87]")
        a("    s_waitcnt lgkmcnt(0)")

    def trread(base, moff, addr, tstride, rowb):
        for s_ in range(2):
            for t in range(2):
                for half in range(2):
                    off = moff + (32 * s_ + 4 * half) * rowb + t * tstride
                    a(f"    ds_read_b64_tr_b16 {r2(base + 8 * s_ + 4 * t + 2 * half)}, v{addr} offset:{off}")
    trread(WQ, 0, A0, 32, 64)
    trread(WK, 8192, A0, 32, 64)
    trread(WV, 16384, A1, 8, 64)
    trread(WR, 0, A2, 8, 128)
    a("    s_waitcnt lgkmcnt(15)")
    a("    s_waitcnt lgkmcnt(12)")
    t0, t1 = OA[1], OA[1] + 1
    a(f"    s_mov_b32 s{S_T0}, 0x{f32bits(CSCALE):08x}")
    for k in range(16):
        a(f"    v_lshlrev_b32 v{t0}, 16, v{WQ + k}")
        a(f"    v_and_b32 v{t1}, 0xffff0000, v{WQ + k}")
        a(f"    v_mul_f32 v{t0}, s{S_T0}, v{t0}")
        a(f"    v_mul_f32 v{t1}, s{S_T0}, v{t1}")
        a(f"    v_cvt_pk_bf16_f32 v{WQ + k}, v{t0}, v{t1}")
    a(f"    s_mov_b32 s{S_LO}, 0x{f32bits(L_LO):08x}")
    a(f"    s_mov_b32 s{S_HI}, 0x{f32bits(L_HI):08x}")
    a(f"    s_waitcnt vmcnt({6 + OT}) lgkmcnt(0)")
    a("    s_barrier")
    if STAMP:
        a("    s_memtime s[68:69]")
        a("    s_waitcnt lgkmcnt(0)")
    return P


DOC = """
Generated by the author's own script (list scheduler + wait-state checker); no compiler output.
Work split : workgroup = 4 waves = 2 batches x 2 heads, each wave does 4 batches (b = wg*2 + pair + it*1024), fully unrolled.
Data flow  : e rows 0..95 -> LDS (LDS-DMA, XOR-swizzled, 3 buffers per pair); weights -> registers via ds_read_b64_tr_b16.
             K^T/Q^T/res^T = W^T x E^T and V = E x Wv with 16x16x32 MFMA; accumulator layouts chain directly into
             S^T = K x Q^T and O^T = V^T x P^T (only v_cvt_pk between them). Row sums come from an all-ones MFMA.
             Rows 96..99 of the wave's four batches share one extra 16-column tile.
Softmax    : fast path uses p = 2^(s*log2e/sqrt(32) - 60) (constant shift fed through the MFMA C operand). Every row sum is
             range-checked at run time ([2^-76, 1]); if any row leaves that window the wave redoes its batches in L_safe
             with the true row maximum subtracted.
"""


def main():
    out = []
    a = out.append
    hdr = open('standalone__attention_interact_autoint__recsys.s.ref').read().split('\n')
    for line in hdr:
        if line.startswith('; @launch'):
            a(f"; @launch grid=({NWG},1,1) block=(256,1,1) lds={LDS_TOTAL}")
        elif line.startswith(';'):
            a(line)
        else:
            break
    a('.amdgcn_target "amdgcn-amd-amdhsa--gfx950"')
    for line in DOC.strip().split("\n"):
        a("; " + line)
    a(".text")
    a(f".globl {KN}")
    a(".p2align 8")
    a(f".type {KN},@function")
    a(f"{KN}:")
    out += prologue()
    body = main_program()
    if NOSCHED:
        sched, est = body, 0
    else:
        best = None
        for sd in range(opt('seed', 0), opt('seed', 0) + opt('tries', 1)):
            sc, es = schedule3(body, window=WINDOW, noise=float(opts.get('noise', 0)), seed=sd, pool_lo=opt('pool', 64), horizon=opt('hor', 48), prebuilt=best is not None)
            ln, _ = finalize(sc)
            T2 = sim2.simulate(ln, nwaves=2)[0]
            if best is None or T2 < best[0]:
                best = (T2, sc, es, sd)
        _, sched, est, sd = best
    lines, nnop = finalize(sched)
    msg = ""
    for nw in (1, 2):
        T, done, busy = sim2.simulate(lines, nwaves=nw)
        msg += f"sim{nw}: {T / (4 * nw):.0f}/unit (busy {busy / (4 * nw):.0f}) "
    sys.stderr.write(msg + f"| {len(body)} instrs, {nnop} nops, vgprs {A.n}\n")
    out += lines
    a(f"    v_cmp_lt_f32 vcc, s{S_HI}, v{V_LMAX}")
    a(f"    v_cmp_gt_f32 s[28:29], s{S_LO}, v{V_LMIN}")
    a("    s_nop 1")
    a("    s_or_b64 vcc, vcc, s[28:29]")
    if FORCE_SAFE:
        a("    s_branch L_safe")
    a("    s_cbranch_scc1 L_safe")
    a("L_end:")
    if STAMP:
        a("    s_memtime s[76:77]")
        a("    s_waitcnt vmcnt(0)")
        a("    s_memtime s[78:79]")
        a("    s_memrealtime s[80:81]")
        a("    s_waitcnt lgkmcnt(0)")
        a(f"    s_lshl_b32 s82, s2, 2")
        a(f"    s_add_u32 s82, s82, s{S_WAVE}")
        a(f"    s_lshl_b32 s82, s82, 6")
        a(f"    v_mov_b32 v2, s82")
        regs = [92, 93, 64, 66, 68, 68, 70, 72, 74, 76, 78, 80, 84, 86, 68]
        for k, r in enumerate(regs):
            a(f"    v_mov_b32 v3, s{r}")
            a(f"    global_store_dword v2, v3, s[90:91] offset:{4 * k}")
    a("L_done:")
    a("    s_endpgm")
    a("L_safe:")
    a("    s_waitcnt vmcnt(0)")
    x0, x1, x2, x3 = PD[0], PD[0] + 1, PD[0] + 2, PD[0] + 3
    lane_ids(a, x0, x1, x2)
    a(f"    v_and_b32 v{x0}, 3, v{x2}")
    a(f"    v_lshrrev_b32 v{x2}, 2, v{x2}")
    a(f"    v_lshlrev_b32 v{x2}, 7, v{x2}")
    a(f"    v_lshl_add_u32 v{x2}, v{x1}, 4, v{x2}")
    a(f"    s_lshl_b32 s{S_T0}, s{S_HEAD}, 6")
    a(f"    v_cmp_ne_u32 vcc, 0, v{x0}")
    a(f"    v_mov_b32 v{x3}, 0x7f000000")
    a(f"    v_subrev_u32 v{V_XW}, s{S_T0}, v{V_ST}")
    a(f"    v_cndmask_b32 v{V_XR}, v{x2}, v{x3}, vcc")
    a(f"    v_add_u32 v{V_DMA}, s{S_T0}, v{V_XR}")
    a(f"    v_mov_b32 v{PT[0] + 1}, 0")
    a(f"    s_mov_b32 s{S_T2}, s{S_CUR}")
    a(f"    s_mov_b32 s{S_IT}, 0")
    a("L_safe_loop:")
    lines, _ = finalize(safe_program())
    out += lines
    a("    s_nop 7")
    a(f"    s_add_u32 s{S_T2}, s{S_T2}, {ITSTR}")
    a(f"    s_add_u32 s{S_IT}, s{S_IT}, 1")
    a(f"    s_cmp_lt_u32 s{S_IT}, {NIT}")
    a("    s_cbranch_scc1 L_safe_loop")
    a("    s_branch L_end")
    a('.section .rodata,"a"')
    a(".p2align 6")
    a(f".amdhsa_kernel {KN}")
    a(f"  .amdhsa_next_free_vgpr {NVGPR}")
    a(f"  .amdhsa_next_free_sgpr {100 if STAMP else 64}")
    a(f"  .amdhsa_accum_offset {NVGPR}")
    a("  .amdhsa_group_segment_fixed_size 0")
    a("  .amdhsa_kernarg_size 64")
    a("  .amdhsa_user_sgpr_count 2")
    a("  .amdhsa_user_sgpr_kernarg_segment_ptr 1")
    a("  .amdhsa_system_sgpr_workgroup_id_x 1")
    a(".end_amdhsa_kernel")
    open(sys.argv[1], 'w').write("\n".join(out) + "\n")


main()
```

```python
PORT = {'valu': 4, 'trans': 8, 'mfma': 8, 'mfmas': 4, 'mfma32': 8, 'mfma32s': 4, 'perm': 8,
        'wait': 4, 'bar': 4, 'dma6': 4, 'sync': 8, 'dsr': 4, 'dsw': 4, 'store': 4, 'dma': 4, 'salu': 4, 'load': 4}
PIPE = {'mfma': 16, 'mfmas': 16, 'mfma32': 32, 'mfma32s': 32}
MF = set(PIPE)
VAL = {'valu', 'trans', 'perm'}


class Ins:
    __slots__ = ('text', 'kind', 'defs', 'uses', 'cuses', 'idx', 'prio', 'preds', 'succs', 'npred', 'ready', 'tag', 'order_after', 'after_ds', 'lat')

    def __init__(self, text, kind, defs=(), uses=(), cuses=(), tag=''):
        self.text = text
        self.kind = kind
        self.defs = list(defs)
        self.uses = list(uses)
        self.cuses = list(cuses)
        self.tag = tag
        self.order_after = []
        self.after_ds = []
        self.lat = 0

    def __repr__(self):
        return self.text


def vr(a, n=1):
    return [f'v{a + i}' for i in range(n)]


def passes(kind):
    return 8 if kind in ('mfma32', 'mfma32s') else 4


def ws_needed(p, c, reg, rel):
    pk, ck = p.kind, c.kind
    isv = reg[0] == 'v' and reg != 'vcc'
    if pk in MF:
        big = passes(pk) == 8
        if rel == 'raw':
            return 12 if big else 8
        if rel == 'rawc':
            if ck == pk and p.defs == c.cuses:
                return 0
            return 10 if big else 6
        if rel == 'waw':
            if ck in MF:
                if passes(ck) < passes(pk):
                    return 10
                return 0
            return 12 if big else 8
        if rel == 'warc':
            if ck in MF:
                return 0
            return 7 if big else 3
        if rel == 'war':
            return 0
    if pk in VAL:
        if isv:
            if rel in ('raw', 'rawc'):
                if ck in MF:
                    return 2
                if ck == 'perm':
                    return 2
                if pk == 'trans' and ck != 'trans':
                    return 1
                if 'dpp' in c.text:
                    return 2
                if 'readfirstlane' in c.text or 'readlane' in c.text:
                    return 1
                return 0
            return 0
        else:
            if rel == 'raw':
                if ck in VAL:
                    return 2
                if ck in ('store', 'dma', 'load'):
                    return 5
                return 1
            return 0
    if pk == 'store' and rel == 'war' and isv:
        return 2
    if pk == 'salu' and reg == 'm0' and rel == 'raw':
        return 1
    return 0


def lat_cycles(p, c, rel):
    pk, ck = p.kind, c.kind
    if rel in ('raw', 'rawc'):
        if pk == 'dsr':
            return 140
        if pk in MF:
            if rel == 'rawc' and ck == pk and p.defs == c.cuses:
                return PIPE[pk]
            return 36 if PIPE[pk] == 16 else 52
        if pk == 'trans':
            return 8
        if pk in VAL:
            return 4
    return PORT[pk]


def build_deps(ins):
    last_def = {}
    readers = {}
    edges = []
    for i, x in enumerate(ins):
        x.idx = i
        x.preds = []
        x.succs = []
    for x in ins:
        for r in x.uses:
            if r in last_def:
                edges.append((last_def[r], x, r, 'raw'))
        for r in x.cuses:
            if r in last_def:
                edges.append((last_def[r], x, r, 'rawc'))
        for r in x.defs:
            if r in last_def:
                edges.append((last_def[r], x, r, 'waw'))
            for (y, how) in readers.get(r, []):
                if y is not x:
                    edges.append((y, x, r, how))
        for y in x.order_after:
            edges.append((y, x, 'order', 'order'))
        for r in x.defs:
            last_def[r] = x
            readers[r] = []
        for r in x.uses:
            readers.setdefault(r, []).append((x, 'war'))
        for r in x.cuses:
            readers.setdefault(r, []).append((x, 'warc'))
    prev = {}
    for x in ins:
        cl = ([] if x.tag == 'free' else ['ds']) if x.kind in ('dsr', 'dsw') else (['vm'] if x.kind in ('store', 'dma', 'load', 'dma6') else ((['vm'] if x.tag == 'free' else ['ds', 'vm']) if x.kind == 'sync' else []))
        for cls in cl:
            if cls in prev:
                edges.append((prev[cls], x, 'order', 'order'))
            prev[cls] = x
    agg = {}
    for p, c, r, rel in edges:
        if rel == 'order':
            w, l = 0, max(PORT[p.kind], c.lat if p in c.after_ds else 0)
        else:
            w = ws_needed(p, c, r, rel)
            l = max(lat_cycles(p, c, rel), 4 * (w + 1) if w else 0)
        k = (p.idx, c.idx)
        ow, ol = agg.get(k, (0, 0))
        agg[k] = (max(ow, w), max(ol, l))
    for (pi, ci), (w, l) in agg.items():
        ins[pi].succs.append((ins[ci], w, l))
        ins[ci].preds.append((ins[pi], w, l))


def schedule(ins, window=400, verbose=False):
    build_deps(ins)
    for x in reversed(ins):
        x.prio = PORT[x.kind] + max([s.prio + l for s, w, l in x.succs], default=0)
    for x in ins:
        x.npred = len(x.preds)
        x.ready = 0
    out = []
    pos = {}
    avail = [x for x in ins if x.npred == 0]
    t = 0
    pipe_free = 0
    done = 0
    n = len(ins)
    lowest = 0
    sched = [False] * n
    while done < n:
        while lowest < n and sched[lowest]:
            lowest += 1
        best = None
        bestkey = None
        for x in avail:
            if x.idx > lowest + window:
                continue
            st = max(t, x.ready)
            if x.kind in MF:
                st = max(st, pipe_free)
            need = 0
            for p, w, l in x.preds:
                if w:
                    gap = len(out) - pos[p.idx] - 1
                    need = max(need, w - gap)
            if need > 0:
                st = max(st, t + 4 * need)
            key = (st - t > 0, st - t if st > t else 0, -x.prio, x.idx)
            if bestkey is None or key < bestkey:
                best, bestkey, bst = x, key, st
        x = best
        avail.remove(x)
        t = bst
        pos[x.idx] = len(out)
        out.append(x)
        sched[x.idx] = True
        if x.kind in MF:
            pipe_free = t + PIPE[x.kind]
        for s, w, l in x.succs:
            s.ready = max(s.ready, t + l)
            s.npred -= 1
            if s.npred == 0:
                avail.append(s)
        t += PORT[x.kind]
        done += 1
    if verbose:
        print(f"; scheduled {n} instrs, est {t} cycles")
    return out, t


def finalize(ins, entry_pessimistic=True):
    lines = []
    emitted = []
    posn = 0
    last_def = {}
    readers = {}
    ds_out = []
    pend = {}
    nnop = 0
    for x in ins:
        needidx = -1
        for r in x.uses + x.cuses + x.defs:
            if r in pend:
                y = pend[r]
                if y in ds_out:
                    needidx = max(needidx, ds_out.index(y))
        for y in x.after_ds:
            if y in ds_out:
                needidx = max(needidx, ds_out.index(y))
        if needidx >= 0:
            remain = len(ds_out) - needidx - 1
            assert remain <= 15
            lines.append(f"    s_waitcnt lgkmcnt({remain})")
            posn += 1
            for y in ds_out[:needidx + 1]:
                for r in y.defs:
                    if pend.get(r) is y:
                        del pend[r]
            ds_out = ds_out[needidx + 1:]
        need = 0

        def chk(p, ppos, r, rel):
            nonlocal need
            w = ws_needed(p, x, r, rel)
            gap = posn - ppos - 1
            if w - gap > need:
                need = w - gap
        for r in x.uses:
            if r in last_def:
                chk(*last_def[r], r, 'raw')
        for r in x.cuses:
            if r in last_def:
                chk(*last_def[r], r, 'rawc')
        for r in x.defs:
            if r in last_def:
                chk(*last_def[r], r, 'waw')
            for (y, ypos, how) in readers.get(r, []):
                chk(y, ypos, r, how)
        while need > 0:
            k = min(need, 16)
            lines.append(f"    s_nop {k - 1}")
            posn += k
            need -= k
            nnop += k
        if x.kind == 'wait':
            continue
        lines.append("    " + x.text)
        for r in x.defs:
            last_def[r] = (x, posn)
            readers[r] = []
        for r in x.uses:
            readers.setdefault(r, []).append((x, posn, 'war'))
        for r in x.cuses:
            readers.setdefault(r, []).append((x, posn, 'warc'))
        posn += 1
        if x.kind in ('dsr', 'dsw'):
            ds_out.append(x)
            if len(ds_out) > 15:
                lines.append(f"    s_waitcnt lgkmcnt(14)")
                posn += 1
                for y in ds_out[:-14]:
                    for r in y.defs:
                        if pend.get(r) is y:
                            del pend[r]
                ds_out = ds_out[-14:]
            if x.kind == 'dsr':
                for r in x.defs:
                    pend[r] = x
    return lines, nnop
```

```python
import sys, struct, math
sys.path.insert(0, 'gen')
from sched import Ins, vr, finalize
from sched3 import schedule3
import sim2

KN = "standalone__attention_interact_autoint__recsys_kernel"
NWG = 512
NIT = 4
EBYTES = 4096 * 100 * 64 * 2
ITSTR = NWG * 2 * 12800
BSTR = 12288
PSTR = 3 * BSTR
LDS_TOTAL = 81920
STG = 2 * PSTR
XSCR = STG + 4096
XROW = 224
WOFF = [BSTR, BSTR + 8192, BSTR + 16384, PSTR + BSTR]

opts = dict(a.split('=') for a in sys.argv[2:]) if len(sys.argv) > 2 else {}
def opt(k, d): return int(opts.get(k, d))
G = 2
MAP = opt('map', 0)
if MAP:
    ITSTR = 2 * 12800
TQI = opt('tqi', 3)
AH = opt('ah', 4)
QAH = opt('qah', 2)
QP2 = opt('qp2', 2)
E1E = opt('e1e', 0)
E3E = opt('e3e', 1)
AH0 = opt('ah0', 4)
BD = opt('bd', 2)
OT = opt('ot', 0)
XBP = opt('xbp', 0)
DELAY = opt('delay', 3)
PP = opts.get('pp', '')
FORCE_SAFE = opt('force_safe', 0)
NOSCHED = opt('nosched', 0)
WINDOW = opt('window', 300)
STAMP = opt('stamp', 0)
PRIO = opt('prio', 1)
RSB = opt('rsb', 0)
STF = opts.get('stf', 'sc1').replace('+', ' ')
LDF = opts.get('ldf', 'nt').replace('+', ' ')
NOMEM = opt('nomem', 0)


def f32bits(x):
    return struct.unpack('<I', struct.pack('<f', x))[0]


class Alloc:
    def __init__(self, start):
        self.n = start

    def get(self, k, align=2):
        self.n = (self.n + align - 1) // align * align
        r = self.n
        self.n += k
        return r


A = Alloc(2)
WQ = A.get(16); WK = A.get(16); WV = A.get(16); WR = A.get(16)
KP = A.get(28)
VP = [A.get(14), A.get(14)]
QT = A.get(4)
RT = A.get(8)
EB = [A.get(8) for _ in range(opt('neb', 2))]
PD = [A.get(4) for _ in range(opt('npd', 4))]
QP = [A.get(4) for _ in range(opt('nq', 3))]
SB = [A.get(8) for _ in range(opt('nsb', 3))]
PT = [A.get(2) for _ in range(opt('npt', 1))]
OB = [A.get(4) for _ in range(opt('nob', 5))]
OA = [OB[0], OB[2]]
RA = [] if RSB else [A.get(8)]
LA = [A.get(4) for _ in range(opt('no', 2))]
ONES = A.get(4)
CB = A.get(4)
V_LA = [A.get(1, 1) for _ in range(2)]
V_DMA = A.get(1, 1)
V_ST = A.get(1, 1)
V_XW = A.get(1, 1)
V_XR = A.get(1, 1)
V_SW = A.get(1, 1)
V_SR = A.get(1, 1)
V_LMAX = 0
V_LMIN = 1
assert A.n <= 256, A.n
NVGPR = 256

S_E = 8; S_O = 12; S_W = 16
S_HEAD = 32; S_CUR = 33; S_IT = 35
S_RING = list(range(36, 44))
S_T0 = 45; S_T1 = 46; S_T2 = 47
S_LO = 48; S_HI = 49; S_WAVE = 52; S_PAIR = 53; S_LDSP = 54; S_LDSH = 55
S_XM = 50
S_TM = [56, 58, 60, 62]

BSHIFT = 60.0
L_LO = 2.0 ** -76
L_HI = 1.0
CSCALE = math.log2(math.e) / math.sqrt(32.0)


def r4(a): return f"v[{a}:{a + 3}]"
def r2(a): return f"v[{a}:{a + 1}]"


def mfma(d, a, b, c=None):
    if c is None:
        return Ins(f"v_mfma_f32_16x16x32_bf16 {r4(d)}, {r4(a)}, {r4(b)}, 0", 'mfma', vr(d, 4), vr(a, 4) + vr(b, 4))
    return Ins(f"v_mfma_f32_16x16x32_bf16 {r4(d)}, {r4(a)}, {r4(b)}, {r4(c)}", 'mfma', vr(d, 4), vr(a, 4) + vr(b, 4), vr(c, 4))


def mfmas(d, a, b, c):
    return Ins(f"v_mfma_f32_16x16x16_bf16 {r4(d)}, {r2(a)}, {r2(b)}, {r4(c)}", 'mfmas', vr(d, 4), vr(a, 2) + vr(b, 2), vr(c, 4))


def cvt(d, a, b):
    sa = "0" if a is None else f"v{a}"
    sb_ = "0" if b is None else f"v{b}"
    return Ins(f"v_cvt_pk_bf16_f32 v{d}, {sa}, {sb_}", 'valu', vr(d), ([] if a is None else vr(a)) + ([] if b is None else vr(b)))


def vexp(d, a):
    return Ins(f"v_exp_f32 v{d}, v{a}", 'trans', vr(d), vr(a))


def valu(text, defs, uses):
    return Ins(text, 'valu', defs, uses)


def salu(text, defs, uses):
    return Ins(text, 'salu', defs, uses)


class Ring:
    def __init__(self, items):
        self.items = items
        self.i = 0

    def next(self):
        r = self.items[self.i % len(self.items)]
        self.i += 1
        return r


SRD_E = [f's{S_E + i}' for i in range(4)]
SRD_O = [f's{S_O + i}' for i in range(4)]


def dma_pair(it, m, so):
    return [salu(f"s_add_u32 m0, s{S_LDSH}, {(it % 3) * BSTR + m * 4096}", ['m0', 'scc'], []),
            salu(f"s_add_u32 s{so}, s{S_CUR}, {it * ITSTR + m * 4096}", [f's{so}', 'scc'], []),
            Ins(f"buffer_load_dwordx4 v{V_DMA}, s[{S_E}:{S_E + 3}], s{so} offen {LDF} lds", 'dma', [], vr(V_DMA) + [f's{so}', 'm0']),
            Ins(f"buffer_load_dwordx4 v{V_DMA}, s[{S_E}:{S_E + 3}], s{so} offen offset:2048 {LDF} lds", 'dma', [], vr(V_DMA) + [f's{so}', 'm0'])]


def proj_t(w, eb, d0, d1):
    return [mfma(d0, w + 0, eb + 0), mfma(d1, w + 4, eb + 0), mfma(d0, w + 8, eb + 4, d0), mfma(d1, w + 12, eb + 4, d1)]


def pack4(k, d0, d1):
    return [cvt(k, d0, d0 + 1), cvt(k + 1, d0 + 2, d0 + 3), cvt(k + 2, d1, d1 + 1), cvt(k + 3, d1 + 2, d1 + 3)]


def kv_tile(t, eb, pd):
    d0, d1 = pd.next(), pd.next()
    L = proj_t(WK, eb, d0, d1) + pack4(KP + 4 * t, d0, d1)
    d0, d1 = pd.next(), pd.next()
    L += [mfma(d0, eb + 0, WV + 0), mfma(d1, eb + 0, WV + 4), mfma(d0, eb + 4, WV + 8, d0), mfma(d1, eb + 4, WV + 12, d1)]
    for u, d in ((0, d0), (1, d1)):
        v = VP[u] + 2 * t
        L += [cvt(v, d, d + 1), cvt(v + 1, d + 2, d + 3)]
    return L


def q_proj(eb, pd, q):
    d0, d1 = pd.next(), pd.next()
    return proj_t(WQ, eb, d0, d1) + pack4(q, d0, d1)


def out_pack(o):
    L = [cvt(o + j, o + 2 * j, o + 2 * j + 1) for j in range(4)]
    L += [valu(f"v_pk_max_i16 v{o + j}, v{o + j}, 0", vr(o + j), vr(o + j)) for j in range(4)]
    return L


def main_program():
    L = []
    eb = Ring(EB); pd = Ring(PD); qp = Ring(QP); sb = Ring(SB); pt = Ring(PT)
    la = Ring(LA); sr = Ring(S_RING)
    ofree = list(OB)
    pend_x = []
    xs_ = {'slot': 0, 'lastread': [], 'lastbar': None}
    Q = {}; O = {}; LL = {}
    st = {'lprev': None, 'n': 0}
    done_kv = set()
    vm_marks = {}

    six = []

    def nvm():
        return sum(1 for x in L if x.kind in ('dma', 'store')) + 6 * sum(1 for x in L if any(x is y for y in six))

    FREE = 'free' if opt('freeds', 1) else ''
    gate = {}
    rdw = {}

    def sync(text, fake=()):
        return Ins(text, 'sync', list(fake), [], tag=FREE)

    def readE(it, t):
        e = eb.next()
        off = (it % 3) * BSTR + t * 2048
        X = []
        if it == 0 and t in (2, 4) and ('s', t) not in st:
            st[('s', t)] = 1
            X.append(sync(f"s_waitcnt vmcnt({(4 if t == 2 else 2) + OT + nvm()})\n    s_barrier", vr(e, 4)))
            gate[0, t] = gate[0, t + 1] = X[-1]
        if it > 0 and ('b', it) not in st:
            st[('b', it)] = 1
            n = nvm() - vm_marks[it]
            txt = f"s_waitcnt vmcnt({n})\n    s_barrier"
            if PRIO and not PP:
                txt += f"\n    s_setprio {3 - it}"
            if STAMP:
                txt += f"\n    s_memtime s[{68 + 2 * it}:{69 + 2 * it}]\n    s_waitcnt lgkmcnt(0)"
            X.append(sync(txt, vr(e, 4)))
            for tt in range(6):
                gate[it, tt] = X[-1]
            X[-1].order_after += rdw.get(it - 2, [])
            if BD and it + 1 < NIT and not (BD == 2 and it == 1):
                D = []
                for m in range(3):
                    D += dma_pair(it + 1, m, S_T0)
                X[-1].text += "\n" + "\n".join(finalize(D)[0])
                X[-1].defs += ['m0', 'scc', f's{S_T0}']
                six.append(X[-1])
                vm_marks[it + 1] = nvm() + 6
        R = [Ins(f"ds_read_b128 {r4(e)}, v{V_LA[0]} offset:{off}", 'dsr', vr(e, 4), vr(V_LA[0]), tag=FREE),
             Ins(f"ds_read_b128 {r4(e + 4)}, v{V_LA[1]} offset:{off}", 'dsr', vr(e + 4, 4), vr(V_LA[1]), tag=FREE),
             Ins("wait", 'wait', vr(e, 8), vr(e, 8))]
        if (it, t) in gate:
            R[0].order_after.append(gate[it, t]); R[1].order_after.append(gate[it, t])
        rdw.setdefault(it, []).append(R[2])
        X += R

        return e, X

    def qproj(it, i, e):
        Q[it, i] = qp.next()
        return q_proj(e, pd, Q[it, i])

    def kv(it, t):
        if (it, t) in done_kv or t > 5:
            return []
        done_kv.add((it, t))
        e, X = readE(it, t)
        if t < G:
            X += qproj(it, t, e)
        return X + kv_tile(t, e, pd)

    def step(it, i, p):
        X = []
        q = Q[it, i]
        if p == 0:
            O[it, i] = (ofree.pop(0), ofree.pop(0)); LL[it, i] = la.next()
        o, o2 = O[it, i]; l = LL[it, i]
        if p < 3:
            b = sb.next()
            X += [mfma(b, KP + 8 * p, q, CB), mfma(b + 4, KP + 8 * p + 4, q, CB)]
            X += [vexp(b + j, b + j) for j in (2, 3, 0, 1, 4, 5, 6, 7)]
            X += [cvt(b + 3, b + 2, b + 3), cvt(b + 2, b, b + 1), cvt(b + 4, b + 4, b + 5), cvt(b + 5, b + 6, b + 7)]
            z = p == 0
            X += [mfma(o, VP[0] + 4 * p, b + 2, None if z else o), mfma(o2, VP[1] + 4 * p, b + 2, None if z else o2),
                  mfma(l, ONES, b + 2, None if z else l)]
        else:
            s_ = pd.next(); pp = pt.next()
            X += [mfma(s_, KP + 24, q, CB), vexp(s_ + it, s_ + it)]
            X.append(cvt(pp + (it >> 1), s_ + it, None) if it % 2 == 0 else cvt(pp + (it >> 1), None, s_ + it))
            X += [mfmas(l, ONES, pp, l), mfmas(o, VP[0] + 12, pp, o), mfmas(o2, VP[1] + 12, pp, o2)]
        return X

    def lrange(l):
        X = []
        st['n'] += 1
        if st['n'] % 2 == 0:
            lp = st['lprev']
            X.append(valu(f"v_max3_f32 v{V_LMAX}, v{V_LMAX}, v{lp}, v{l}", vr(V_LMAX), vr(V_LMAX) + vr(lp) + vr(l)))
            X.append(valu(f"v_min3_f32 v{V_LMIN}, v{V_LMIN}, v{lp}, v{l}", vr(V_LMIN), vr(V_LMIN) + vr(lp) + vr(l)))
        st['lprev'] = l
        return X

    def lrange1(l):
        return [valu(f"v_max_f32 v{V_LMAX}, v{V_LMAX}, v{l}", vr(V_LMAX), vr(V_LMAX) + vr(l)),
                valu(f"v_min_f32 v{V_LMIN}, v{V_LMIN}, v{l}", vr(V_LMIN), vr(V_LMIN) + vr(l))]

    def res(it, i):
        e, X = readE(it, i)
        r = sb.next() if RSB else RA[0]
        return r, X + proj_t(WR, e, r, r + 4)

    def fin(it, i, r):
        o, o2 = O[it, i]; l = LL[it, i]; inv = l + 1
        og = [o, o + 1, o + 2, o + 3, o2, o2 + 1, o2 + 2, o2 + 3]
        X = [Ins(f"v_rcp_f32 v{inv}, v{l}", 'trans', vr(inv), vr(l))]
        X += [valu(f"v_fma_f32 v{og[j]}, v{og[j]}, v{inv}, v{r + j}", vr(og[j]), vr(og[j]) + vr(inv) + vr(r + j)) for j in range(8)]
        X += [cvt(o + j, og[2 * j], og[2 * j + 1]) for j in range(4)]
        X += [valu(f"v_pk_max_i16 v{o + j}, v{o + j}, 0", vr(o + j), vr(o + j)) for j in range(4)]
        ofree.append(o2)
        assert not pend_x
        slot = xs_['slot']; xs_['slot'] ^= 1
        w = Ins(f"s_mov_b64 exec, s[{S_XM}:{S_XM + 1}]\n    ds_write_b128 v{V_SW}, {r4(o)} offset:{slot * 1024}\n    s_mov_b64 exec, -1", 'dsw', [], vr(o, 4) + vr(V_SW), tag=FREE)
        if xs_['lastbar'] is not None:
            w.order_after.append(xs_['lastbar'])
        X.append(w)
        pend_x.append((it, i, o, slot, w))
        return X + lrange(l)

    def after_barrier(bar):
        X = []
        bar.order_after += xs_['lastread']; bar.after_ds += xs_['lastread']
        if xs_['lastbar'] is not None:
            bar.order_after.append(xs_['lastbar'])
        xs_['lastbar'] = bar
        xs_['lastread'] = []
        while pend_x:
            it, i, o, slot, w = pend_x.pop()
            bar.order_after.append(w); bar.after_ds.append(w); bar.lat = opt('blat', 150)
            rd = Ins(f"s_mov_b64 exec, s[{S_XM}:{S_XM + 1}]\n    ds_read_b128 {r4(o)}, v{V_SR} offset:{slot * 1024}\n    s_mov_b64 exec, -1", 'dsr', vr(o, 4), vr(V_SR) + vr(o, 4), tag=FREE)
            rd.order_after.append(bar)
            xs_['lastread'].append(rd)
            so = sr.next()
            X += [rd, salu(f"s_add_u32 s{so}, s{S_CUR}, {it * ITSTR + i * 2048}", [f's{so}', 'scc'], []),
                  Ins(f"buffer_store_dwordx4 {r4(o)}, v{V_ST}, s[{S_O}:{S_O + 3}], s{so} offen {STF}", 'store', [], vr(o, 4) + vr(V_ST) + [f's{so}'])]
            ofree.append(o)
        return X

    def xbar():
        if not pend_x:
            return []
        b = Ins("s_barrier", 'bar', [], [])
        return [b] + after_barrier(b)

    def tailq_scores(it):
        X = []
        xs = sb.next()
        for t in range(7):
            d = pd.next()
            X += [mfma(d, QT, KP + 4 * t, CB), vexp(xs + t, d + it)]
        X.append(valu(f"v_cndmask_b32 v{xs + 6}, 0, v{xs + 6}, s[{S_TM[it]}:{S_TM[it] + 1}]", vr(xs + 6), vr(xs + 6)))
        for k in range(4):
            X.append(cvt(xs + 2 * k, xs + 2 * k, xs + 2 * k + 1 if k < 3 else None))
            X.append(Ins(f"ds_write_b16 v{V_XW}, v{xs + 2 * k} offset:{64 * k}", 'dsw', [], vr(V_XW) + vr(xs + 2 * k)))
            if k < 3:
                X.append(Ins(f"ds_write_b16_d16_hi v{V_XW}, v{xs + 2 * k} offset:{64 * k + 32}", 'dsw', [], vr(V_XW) + vr(xs + 2 * k)))
        return X

    def tailq_pv(it):
        X = []
        o = ofree.pop(0); o2 = ofree.pop(0); l = la.next()
        og = [o, o + 1, o + 2, o + 3, o2, o2 + 1, o2 + 2, o2 + 3]
        ofree.extend([o, o2])
        b0 = eb.next(); b1 = eb.next()
        pr = [b0, b0 + 4, b1, b1 + 4]
        for p in range(3):
            X.append(Ins(f"ds_read2_b64 {r4(pr[p])}, v{V_XR} offset0:{8 * p} offset1:{8 * p + 4}", 'dsr', vr(pr[p], 4), vr(V_XR)))
        X.append(Ins(f"ds_read_b64 {r2(pr[3])}, v{V_XR} offset:192", 'dsr', vr(pr[3], 2), vr(V_XR)))
        X.append(Ins("wait", 'wait', vr(b0, 8) + vr(b1, 6), vr(b0, 8) + vr(b1, 6)))
        for p in range(3):
            z = p == 0
            X += [mfma(l, ONES, pr[p], None if z else l), mfma(o, VP[0] + 4 * p, pr[p], None if z else o),
                  mfma(o2, VP[1] + 4 * p, pr[p], None if z else o2)]
        X += [mfmas(l, ONES, pr[3], l), mfmas(o, VP[0] + 12, pr[3], o), mfmas(o2, VP[1] + 12, pr[3], o2)]
        inv = l + 1
        X.append(Ins(f"v_rcp_f32 v{inv}, v{l}", 'trans', vr(inv), vr(l)))
        X.append(valu(f"v_cndmask_b32 v{inv}, 0, v{inv}, s[{S_TM[it]}:{S_TM[it] + 1}]", vr(inv), vr(inv)))
        X += [valu(f"v_fma_f32 v{RT + j}, v{og[j]}, v{inv}, v{RT + j}", vr(RT + j), vr(og[j]) + vr(inv) + vr(RT + j)) for j in range(8)]
        return X + lrange(l)

    def dma(it, m):
        X = dma_pair(it, m, sr.next())
        X[0].order_after.append(L[-1])
        return X

    et = RA[0]

    def tail_proj():
        X = [Ins(f"s_waitcnt vmcnt({nvm()})", 'sync', vr(et, 8) + vr(QT), [], tag=FREE)]
        X[0].order_after.append(L[-1])
        return X + kv_tile(6, et, pd) + q_proj(et, pd, QT) + proj_t(WR, et, RT, RT + 4)

    def tail_store():
        x = pd.next()
        x0, x1, x2, x3 = x, x + 1, x + 2, x + 3
        so = sr.next(); s1 = sr.next(); s2_ = sr.next()
        X = out_pack(RT)
        X += [valu(f"v_mbcnt_lo_u32_b32 v{x0}, -1, 0", vr(x0), []),
              valu(f"v_mbcnt_hi_u32_b32 v{x0}, -1, v{x0}", vr(x0), vr(x0)),
              valu(f"v_lshrrev_b32 v{x1}, 4, v{x0}", vr(x1), vr(x0)),
              valu(f"v_bfe_u32 v{x2}, v{x0}, 2, 2", vr(x2), vr(x0)),
              valu(f"v_and_b32 v{x0}, 3, v{x0}", vr(x0), vr(x0)),
              salu(f"s_mov_b32 s{s1}, {ITSTR}", [f's{s1}'], []),
              valu(f"v_mul_lo_u32 v{x3}, v{x0}, s{s1}", vr(x3), vr(x0) + [f's{s1}']),
              valu(f"v_lshl_add_u32 v{x3}, v{x2}, 7, v{x3}", vr(x3), vr(x2) + vr(x3)),
              valu(f"v_lshl_add_u32 v{x3}, v{x1}, 4, v{x3}", vr(x3), vr(x1) + vr(x3)),
              salu(f"s_lshl_b32 s{s2_}, s{S_HEAD}, 6", [f's{s2_}', 'scc'], []),
              salu(f"s_add_u32 s{so}, s{S_CUR}, s{s2_}", [f's{so}', 'scc'], [f's{s2_}']),
              salu(f"s_add_u32 s{so}, s{so}, {96 * 128}", [f's{so}', 'scc'], [f's{so}']),
              Ins(f"buffer_store_dwordx4 {r4(RT)}, v{x3}, s[{S_O}:{S_O + 3}], s{so} offen {STF}", 'store', [], vr(RT, 4) + vr(x3) + [f's{so}'])]
        return X
    for it in range(NIT):
        dq = []
        if it == 0:
            dq = [(1, 0), (1, 1), (1, 2)] + ([] if BD == 1 else [(2, 0), (2, 1), (2, 2)])
        elif it == 2 and not E3E and not BD:
            dq = [(3, 0), (3, 1), (3, 2)]

        def pop_dma():
            if dq:
                b, m = dq.pop(0)
                X = dma(b, m)
                L.extend(X)
                if m == 2:
                    vm_marks[b] = nvm()
        L += kv(it, 0)
        if it == 0 and E1E >= 2:
            pop_dma()
        L += kv(it, 1)
        if it == 0 and E1E >= 2:
            pop_dma()
        if it == 2:
            for pp in PT:
                L.append(valu(f"v_mov_b32 v{pp}, 0", vr(pp), []))
        for p in range(4):
            nxt = [t for t in (2 * p + 2, 2 * p + 3) if t < 6]
            for i in range(G):
                L += step(it, i, p)
                if p == 0 and i == 1:
                    L += xbar()
                if it > 0 or ((BD == 1 or len(dq) > 3) and (p >= 2 or E1E)):
                    pop_dma()
                if nxt:
                    L += kv(it, nxt.pop(0))
            if p == 1 and it == 0:
                L += tail_proj()
            if p == 2:
                e, X = readE(it, G)
                L += X + qproj(it, G, e)
        for i in range(G):
            if QAH == 2 and i == 0:
                e, X = readE(it, G + 1)
                L += X + qproj(it, G + 1, e)
            r, X = res(it, i)
            L += X + xbar() + fin(it, i, r)
        for i in range(G, 6):
            if PP and f"{it}{i}" in PP.split('_'):
                x = salu(f"s_setprio {2 - PP.split('_').index(f'{it}{i}')}", [], [])
                x.order_after.append(L[-1])
                L.append(x)
            for p in range(4):
                L += step(it, i, p)
                if p == XBP:
                    L += xbar()
                if p == 2:
                    pop_dma()
                if QAH == 1 and p == 0 and i < 5:
                    e, X = readE(it, i + 1)
                    L += X + qproj(it, i + 1, e)
                if QAH == 2 and p == QP2 and i < 4:
                    e, X = readE(it, i + 2)
                    L += X + qproj(it, i + 2, e)
                if i == TQI and p == 1:
                    L += tailq_scores(it)
                if p == 1:
                    r, X = res(it, i)
                    L += X
                if i == 5 and it + 1 < NIT:
                    for t in (2 * p, 2 * p + 1):
                        if t < (AH if it > 0 else AH0):
                            L += kv(it + 1, t)
                    if E3E and not BD and it == 1 and p < 3:
                        dq.append((3, p))
                        pop_dma()
            L += fin(it, i, r)
            if i == TQI:
                L += tailq_pv(it)
                if it == NIT - 1:
                    L += tail_store()
        assert not dq
    L += xbar()
    return L


def safe_program():
    L = []
    pd = Ring(PD)
    e = EB[0]; q = QP[0]; r = RT; o = OA[0]; l = LA[0]; s6 = OA[1]; pp = PT[0]
    m = LA[1]; m2 = LA[1] + 1
    va, vt, vst = V_XW, V_XR, V_DMA

    def load(t):
        a_ = va if t < 6 else vt
        X = [salu(f"s_add_u32 s{S_T0}, s{S_T2}, {t * 2048}", [f's{S_T0}', 'scc'], [])]
        X.append(Ins(f"buffer_load_dwordx4 {r4(e)}, v{a_}, s[{S_E}:{S_E + 3}], s{S_T0} offen\n"
                     f"    buffer_load_dwordx4 {r4(e + 4)}, v{a_}, s[{S_E}:{S_E + 3}], s{S_T0} offen offset:64\n"
                     f"    s_waitcnt vmcnt(0)", 'load', vr(e, 8), vr(a_) + [f's{S_T0}']))
        return X
    for t in range(7):
        L += load(t) + kv_tile(t, e, pd)
    for i in range(7):
        L += load(i) + q_proj(e, pd, q) + proj_t(WR, e, r, r + 4)
        for p in range(3):
            b = SB[p]
            L += [mfma(b, KP + 8 * p, q), mfma(b + 4, KP + 8 * p + 4, q)]
        L.append(mfma(s6, KP + 24, q))
        regs = [SB[p] + j for p in range(3) for j in range(8)]
        L.append(valu(f"v_mov_b32 v{m}, v{s6}", vr(m), vr(s6)))
        for k in range(0, 24, 2):
            L.append(valu(f"v_max3_f32 v{m}, v{m}, v{regs[k]}, v{regs[k + 1]}", vr(m), vr(m) + vr(regs[k]) + vr(regs[k + 1])))
        for sw in ("v_permlane16_swap_b32", "v_permlane32_swap_b32"):
            L.append(valu(f"v_mov_b32 v{m2}, v{m}", vr(m2), vr(m)))
            L.append(Ins(f"{sw} v{m}, v{m2}", 'perm', vr(m) + vr(m2), vr(m) + vr(m2)))
            L.append(valu(f"v_max_f32 v{m}, v{m}, v{m2}", vr(m), vr(m) + vr(m2)))
        for x in regs + [s6]:
            L.append(valu(f"v_sub_f32 v{x}, v{x}, v{m}", vr(x), vr(x) + vr(m)))
            L.append(vexp(x, x))
        for p in range(3):
            b = SB[p]
            L += [cvt(b + 3, b + 2, b + 3), cvt(b + 2, b, b + 1), cvt(b + 4, b + 4, b + 5), cvt(b + 5, b + 6, b + 7)]
            z = p == 0
            L += [mfma(o, VP[0] + 4 * p, b + 2, None if z else o), mfma(o + 4, VP[1] + 4 * p, b + 2, None if z else o + 4),
                  mfma(l, ONES, b + 2, None if z else l)]
        L.append(cvt(pp, s6, None))
        L += [mfmas(o, VP[0] + 12, pp, o), mfmas(o + 4, VP[1] + 12, pp, o + 4), mfmas(l, ONES, pp, l)]
        inv = l + 1
        L.append(Ins(f"v_rcp_f32 v{inv}, v{l}", 'trans', vr(inv), vr(l)))
        L += [valu(f"v_fma_f32 v{o + j}, v{o + j}, v{inv}, v{r + j}", vr(o + j), vr(o + j) + vr(inv) + vr(r + j)) for j in range(8)]
        L += out_pack(o)
        a_ = V_ST if i < 6 else vst
        L.append(salu(f"s_add_u32 s{S_T1}, s{S_T2}, {i * 2048}", [f's{S_T1}', 'scc'], []))
        L.append(Ins(f"buffer_store_dwordx4 {r4(o)}, v{a_}, s[{S_O}:{S_O + 3}], s{S_T1} offen {STF}", 'store', [], vr(o, 4) + vr(a_) + [f's{S_T1}']))
    return L


def lane_ids(a, lane, g, c):
    a(f"    v_mbcnt_lo_u32_b32 v{lane}, -1, 0")
    a(f"    v_mbcnt_hi_u32_b32 v{lane}, -1, v{lane}")
    a(f"    v_lshrrev_b32 v{g}, 4, v{lane}")
    a(f"    v_and_b32 v{c}, 15, v{lane}")


def prologue():
    P = []
    a = P.append
    a(f"    s_cmp_ge_u32 s2, {NWG}")
    a("    s_cbranch_scc1 L_done")
    if PRIO:
        a("    s_setprio 3")
    if STAMP:
        a("    s_memtime s[64:65]")
        a("    s_memrealtime s[66:67]")
        a("    s_load_dwordx2 s[90:91], s[0:1], 56")
        a("    s_getreg_b32 s93, hwreg(HW_REG_HW_ID)")
        a("    s_getreg_b32 s92, hwreg(HW_REG_XCC_ID)")
    a("    v_lshrrev_b32 v1, 6, v0")
    a("    s_load_dwordx2 s[4:5], s[0:1], 0")
    a("    s_load_dwordx2 s[26:27], s[0:1], 40")
    a(f"    v_readfirstlane_b32 s{S_WAVE}, v1")
    a("    v_and_b32 v2, 63, v0")
    a("    v_and_b32 v1, 1, v1")
    a("    v_lshrrev_b32 v3, 4, v2")
    a(f"    s_lshl_b32 s{S_T0}, s{S_WAVE}, 3")
    a(f"    s_add_u32 s20, s0, s{S_T0}")
    a("    s_addc_u32 s21, s1, 0")
    a("    s_load_dwordx2 s[6:7], s[20:21], 8")
    a(f"    s_and_b32 s{S_HEAD}, s{S_WAVE}, 1")
    a(f"    s_lshr_b32 s{S_PAIR}, s{S_WAVE}, 1")
    a("    v_and_b32 v4, 15, v2")
    a(f"    v_lshlrev_b32 v{LA[0] + 1}, 4, v2")
    a(f"    s_mul_i32 s{S_LDSP}, s{S_PAIR}, {PSTR}")
    a(f"    s_lshl_b32 s{S_T0}, s{S_HEAD}, 10")
    a(f"    s_add_u32 s{S_LDSH}, s{S_LDSP}, s{S_T0}")
    a("    v_lshrrev_b32 v6, 3, v2")
    a("    v_and_b32 v7, 7, v2")
    a("    v_lshrrev_b32 v10, 1, v6")
    a("    v_xor_b32 v7, v7, v10")
    a("    v_lshlrev_b32 v10, 7, v6")
    a("    v_lshl_add_u32 v10, v7, 4, v10")
    a("    v_lshlrev_b32 v11, 6, v1")
    a("    v_xor_b32 v11, v10, v11")
    a(f"    v_lshl_add_u32 v{V_DMA}, v1, 10, v11")
    a("    v_and_b32 v7, 3, v4")
    a(f"    s_mov_b32 s{S_T0}, {ITSTR}")
    a(f"    v_mul_lo_u32 v7, v7, s{S_T0}")
    a("    v_lshrrev_b32 v6, 2, v4")
    a("    v_lshl_add_u32 v7, v6, 7, v7")
    a("    v_lshl_add_u32 v9, v3, 4, v7")
    if MAP == 2:
        a(f"    s_and_b32 s{S_CUR}, s2, 7")
        a(f"    s_lshl_b32 s{S_CUR}, s{S_CUR}, 6")
        a(f"    s_lshr_b32 s{S_T1}, s2, 3")
        a(f"    s_add_u32 s{S_CUR}, s{S_CUR}, s{S_T1}")
        a(f"    s_lshl_b32 s{S_CUR}, s{S_CUR}, 3")
    elif MAP == 1:
        a(f"    s_lshl_b32 s{S_CUR}, s2, 3")
    else:
        a(f"    s_lshl_b32 s{S_CUR}, s2, 1")
    a(f"    s_add_u32 s{S_CUR}, s{S_CUR}, s{S_PAIR}")
    a(f"    s_mul_i32 s{S_CUR}, s{S_CUR}, 12800")
    a(f"    s_lshl_b32 s{S_T1}, s{S_WAVE}, 13")
    a(f"    s_add_u32 s{S_T1}, s{S_T1}, {WOFF[0]}")
    a(f"    s_cmp_eq_u32 s{S_WAVE}, 3")
    a(f"    s_cselect_b32 s{S_T1}, {WOFF[3]}, s{S_T1}")
    a(f"    s_mov_b32 s{S_W + 2}, 8192"); a(f"    s_mov_b32 s{S_W + 3}, 0x00020000")
    a(f"    s_mov_b32 s{S_E + 2}, {EBYTES}"); a(f"    s_mov_b32 s{S_E + 3}, 0x00020000")
    a(f"    s_mov_b32 s{S_O + 2}, {EBYTES}"); a(f"    s_mov_b32 s{S_O + 3}, 0x00020000")
    a(f"    s_movk_i32 s{S_T2}, 4096")
    a(f"    s_mov_b32 m0, s{S_T1}")
    a(f"    s_add_u32 s{S_RING[3]}, s{S_CUR}, {96 * 128}")
    a("    s_waitcnt lgkmcnt(0)")
    if STAMP:
        a("    s_memtime s[84:85]")
    a(f"    s_mov_b32 s{S_W}, s6"); a(f"    s_and_b32 s{S_W + 1}, s7, 0xffff")
    a(f"    s_mov_b32 s{S_E}, s4"); a(f"    s_and_b32 s{S_E + 1}, s5, 0xffff")
    a(f"    s_mov_b32 s{S_O}, s26"); a(f"    s_and_b32 s{S_O + 1}, s27, 0xffff")
    wl = [f"    s_mov_b32 m0, s{S_T1}", "    s_nop 0"]
    for k in range(4):
        wl.append(f"    buffer_load_dwordx4 v{LA[0] + 1}, s[{S_W}:{S_W + 3}], 0 offen offset:{k * 1024} lds")
    wl += [f"    s_add_u32 m0, s{S_T1}, 4096", "    s_nop 0"]
    for k in range(4):
        wl.append(f"    buffer_load_dwordx4 v{LA[0] + 1}, s[{S_W}:{S_W + 3}], s{S_T2} offen offset:{k * 1024} lds")
    if DELAY >= 2:
        a(f"    s_cmp_ge_u32 s2, {NWG // 2}")
        a("    s_cbranch_scc1 L_lateW")
    P.extend(wl)
    if DELAY >= 2:
        a("L_lateW:")
    et = RA[0]
    e0 = []
    for m in range(3):
        e0 += finalize(dma_pair(0, m, S_RING[m]))[0]
    e0 += [f"    buffer_load_dwordx4 {r4(et)}, v{LA[0]}, s[{S_E}:{S_E + 3}], s{S_RING[3]} offen",
           f"    buffer_load_dwordx4 {r4(et + 4)}, v{LA[0]}, s[{S_E}:{S_E + 3}], s{S_RING[3]} offen offset:64"]
    if OT:
        e0.append(f"    buffer_load_dword v{QT}, v{LA[0]}, s[{S_O}:{S_O + 3}], s{S_RING[3]} offen")
    a(f"    v_mov_b32 v{LA[0]}, v9")
    if DELAY in (1, 4):
        a(f"    s_cmp_ge_u32 s2, {NWG // 2}")
        a("    s_cbranch_scc1 L_late0")
    if PRIO:
        a("    s_setprio 2")
    P.extend(e0)
    if PRIO:
        a("    s_setprio 3")
    if DELAY in (1, 4):
        a("L_late0:")
    a("    v_and_b32 v5, 7, v4")
    a("    v_lshl_add_u32 v6, v1, 3, v5")
    a("    v_lshlrev_b32 v6, 7, v6")
    a("    v_lshl_add_u32 v6, v3, 4, v6")
    a("    v_lshrrev_b32 v7, 3, v4")
    a(f"    v_lshl_add_u32 v{V_ST}, v7, 6, v6")
    a(f"    v_cmp_ne_u32 s[{S_XM}:{S_XM + 1}], v7, v1")
    a("    v_lshl_add_u32 v5, v3, 3, v5")
    a("    v_lshlrev_b32 v5, 4, v5")
    a(f"    s_lshl_b32 s{S_T0}, s{S_PAIR}, 11")
    a(f"    s_add_u32 s{S_T0}, s{S_T0}, {STG}")
    a(f"    v_add_u32 v5, s{S_T0}, v5")
    a(f"    v_lshl_add_u32 v{V_SW}, v1, 9, v5")
    a(f"    v_xor_b32 v{V_SR}, 512, v{V_SW}")
    a("    v_lshrrev_b32 v7, 1, v4")
    a("    v_xor_b32 v7, v3, v7")
    a("    v_lshlrev_b32 v6, 7, v4")
    a("    v_lshl_add_u32 v6, v7, 4, v6")
    a(f"    v_add_u32 v{V_LA[0]}, s{S_LDSP}, v6")
    a(f"    v_xor_b32 v{V_LA[1]}, 64, v{V_LA[0]}")
    a(f"    s_mul_i32 s{S_T0}, s{S_WAVE}, {4 * XROW}")
    a(f"    s_add_u32 s{S_T0}, s{S_T0}, {XSCR}")
    a(f"    v_mul_u32_u24 v6, {XROW}, v3")
    a("    v_lshl_add_u32 v6, v4, 1, v6")
    a(f"    v_add_u32 v{V_XW}, s{S_T0}, v6")
    a("    v_lshrrev_b32 v6, 2, v4")
    a(f"    v_mul_u32_u24 v6, {XROW}, v6")
    a("    v_lshl_add_u32 v6, v3, 3, v6")
    a(f"    v_add_u32 v{V_XR}, s{S_T0}, v6")
    for k in range(4):
        a(f"    v_mov_b32 v{ONES + k}, 0x3f803f80")
        a(f"    v_mov_b32 v{CB + k}, 0x{f32bits(-BSHIFT):08x}")
        a(f"    s_mov_b32 s{S_TM[k]}, 0x{0x11111111 << k:08x}")
        a(f"    s_mov_b32 s{S_TM[k] + 1}, 0x{0x11111111 << k:08x}")
    for pp in PT:
        a(f"    v_mov_b32 v{pp + 1}, 0")
    A0, A1, A2 = OA[0], OA[0] + 1, OA[0] + 2
    a("    v_lshrrev_b32 v10, 2, v4")
    a("    v_lshl_add_u32 v10, v3, 3, v10")
    a("    v_and_b32 v11, 3, v4")
    a("    v_lshlrev_b32 v12, 6, v10")
    a("    v_lshl_add_u32 v12, v1, 12, v12")
    a(f"    v_add_u32 v12, {WOFF[0]}, v12")
    a(f"    v_lshl_add_u32 v{A0}, v11, 3, v12")
    a(f"    v_lshl_add_u32 v{A1}, v11, 4, v12")
    a("    v_lshlrev_b32 v12, 7, v10")
    a("    v_lshl_add_u32 v12, v1, 6, v12")
    a("    v_lshl_add_u32 v12, v11, 4, v12")
    a(f"    v_add_u32 v{A2}, {WOFF[3]}, v12")
    a(f"    v_mov_b32 v{V_LMAX}, 0")
    a(f"    v_mov_b32 v{V_LMIN}, 1.0")
    if DELAY:
        a(f"    s_cmp_ge_u32 s2, {NWG // 2}")
        a("    s_cbranch_scc1 L_late1")
        a(f"    s_waitcnt vmcnt({8 + OT})")
        a("    s_barrier")
        a("    s_branch L_late2")
        a("L_late1:")
        if DELAY == 1:
            a("    s_waitcnt vmcnt(0)")
            a("    s_barrier")
            P.extend(e0)
        elif DELAY == 4:
            P.extend(e0[-2:])
            a("    s_waitcnt vmcnt(0)")
            P.extend(wl)
            P.extend(e0)
            a("    s_waitcnt vmcnt(8)")
            a("    s_barrier")
        else:
            if DELAY == 2:
                a("    s_waitcnt vmcnt(7)")
            P.extend(wl)
            a("    s_waitcnt vmcnt(0)")
            a("    s_barrier")
        a("L_late2:")
    else:
        a("    s_waitcnt vmcnt(8)")
        a("    s_barrier")
    if STAMP:
        a("    s_memtime s[86:87]")
        a("    s_waitcnt lgkmcnt(0)")

    def trread(base, moff, addr, tstride, rowb):
        for s_ in range(2):
            for t in range(2):
                for half in range(2):
                    off = moff + (32 * s_ + 4 * half) * rowb + t * tstride
                    a(f"    ds_read_b64_tr_b16 {r2(base + 8 * s_ + 4 * t + 2 * half)}, v{addr} offset:{off}")
    trread(WQ, 0, A0, 32, 64)
    trread(WK, 8192, A0, 32, 64)
    trread(WV, 16384, A1, 8, 64)
    trread(WR, 0, A2, 8, 128)
    a("    s_waitcnt lgkmcnt(15)")
    a("    s_waitcnt lgkmcnt(12)")
    t0, t1 = OA[1], OA[1] + 1
    a(f"    s_mov_b32 s{S_T0}, 0x{f32bits(CSCALE):08x}")
    for k in range(16):
        a(f"    v_lshlrev_b32 v{t0}, 16, v{WQ + k}")
        a(f"    v_and_b32 v{t1}, 0xffff0000, v{WQ + k}")
        a(f"    v_mul_f32 v{t0}, s{S_T0}, v{t0}")
        a(f"    v_mul_f32 v{t1}, s{S_T0}, v{t1}")
        a(f"    v_cvt_pk_bf16_f32 v{WQ + k}, v{t0}, v{t1}")
    a(f"    s_mov_b32 s{S_LO}, 0x{f32bits(L_LO):08x}")
    a(f"    s_mov_b32 s{S_HI}, 0x{f32bits(L_HI):08x}")
    a(f"    s_waitcnt vmcnt({6 + OT}) lgkmcnt(0)")
    a("    s_barrier")
    if STAMP:
        a("    s_memtime s[68:69]")
        a("    s_waitcnt lgkmcnt(0)")
    return P


DOC = """
Generated by the author's own script (list scheduler + wait-state checker); no compiler output.
Work split : workgroup = 4 waves = 2 batches x 2 heads, each wave does 4 batches (b = wg*2 + pair + it*1024), fully unrolled.
Data flow  : e rows 0..95 -> LDS (LDS-DMA, XOR-swizzled, 3 buffers per pair); weights -> registers via ds_read_b64_tr_b16.
             K^T/Q^T/res^T = W^T x E^T and V = E x Wv with 16x16x32 MFMA; accumulator layouts chain directly into
             S^T = K x Q^T and O^T = V^T x P^T (only v_cvt_pk between them). Row sums come from an all-ones MFMA.
             Rows 96..99 of the wave's four batches share one extra 16-column tile.
Softmax    : fast path uses p = 2^(s*log2e/sqrt(32) - 60) (constant shift fed through the MFMA C operand). Every row sum is
             range-checked at run time ([2^-76, 1]); if any row leaves that window the wave redoes its batches in L_safe
             with the true row maximum subtracted.
"""


def main():
    out = []
    a = out.append
    hdr = open('standalone__attention_interact_autoint__recsys.s.ref').read().split('\n')
    for line in hdr:
        if line.startswith('; @launch'):
            a(f"; @launch grid=({NWG},1,1) block=(256,1,1) lds={LDS_TOTAL}")
        elif line.startswith(';'):
            a(line)
        else:
            break
    a('.amdgcn_target "amdgcn-amd-amdhsa--gfx950"')
    for line in DOC.strip().split("\n"):
        a("; " + line)
    a(".text")
    a(f".globl {KN}")
    a(".p2align 8")
    a(f".type {KN},@function")
    a(f"{KN}:")
    out += prologue()
    body = main_program()
    if NOSCHED:
        sched, est = body, 0
    else:
        best = None
        for sd in range(opt('seed', 0), opt('seed', 0) + opt('tries', 1)):
            sc, es = schedule3(body, window=WINDOW, noise=float(opts.get('noise', 0)), seed=sd, pool_lo=opt('pool', 64), horizon=opt('hor', 48), prebuilt=best is not None)
            ln, _ = finalize(sc)
            T2 = sim2.simulate(ln, nwaves=2)[0]
            if best is None or T2 < best[0]:
                best = (T2, sc, es, sd)
        _, sched, est, sd = best
    lines, nnop = finalize(sched)
    msg = ""
    for nw in (1, 2):
        T, done, busy = sim2.simulate(lines, nwaves=nw)
        msg += f"sim{nw}: {T / (4 * nw):.0f}/unit (busy {busy / (4 * nw):.0f}) "
    sys.stderr.write(msg + f"| {len(body)} instrs, {nnop} nops, vgprs {A.n}\n")
    out += lines
    a(f"    v_cmp_lt_f32 vcc, s{S_HI}, v{V_LMAX}")
    a(f"    v_cmp_gt_f32 s[28:29], s{S_LO}, v{V_LMIN}")
    a("    s_waitcnt vmcnt(0)")
    a("    s_barrier")
    a("    s_or_b64 vcc, vcc, s[28:29]")
    if FORCE_SAFE:
        a("    s_branch L_safe")
    a("    s_cbranch_scc1 L_safe")
    a("L_end:")
    if STAMP:
        a("    s_memtime s[76:77]")
        a("    s_waitcnt vmcnt(0)")
        a("    s_memtime s[78:79]")
        a("    s_memrealtime s[80:81]")
        a("    s_waitcnt lgkmcnt(0)")
        a(f"    s_lshl_b32 s82, s2, 2")
        a(f"    s_add_u32 s82, s82, s{S_WAVE}")
        a(f"    s_lshl_b32 s82, s82, 6")
        a(f"    v_mov_b32 v2, s82")
        regs = [92, 93, 64, 66, 68, 68, 70, 72, 74, 76, 78, 80, 84, 86, 68]
        for k, r in enumerate(regs):
            a(f"    v_mov_b32 v3, s{r}")
            a(f"    global_store_dword v2, v3, s[90:91] offset:{4 * k}")
    a("L_done:")
    a("    s_endpgm")
    a("L_safe:")
    a("    s_waitcnt vmcnt(0)")
    x0, x1, x2, x3 = PD[0], PD[0] + 1, PD[0] + 2, PD[0] + 3
    lane_ids(a, x0, x1, x2)
    a(f"    v_lshlrev_b32 v{V_XW}, 7, v{x2}")
    a(f"    v_lshl_add_u32 v{V_XW}, v{x1}, 4, v{V_XW}")
    a(f"    v_and_b32 v{x0}, 3, v{x2}")
    a(f"    v_lshrrev_b32 v{x2}, 2, v{x2}")
    a(f"    v_lshlrev_b32 v{x2}, 7, v{x2}")
    a(f"    v_lshl_add_u32 v{x2}, v{x1}, 4, v{x2}")
    a(f"    s_lshl_b32 s{S_T0}, s{S_HEAD}, 6")
    a(f"    v_cmp_ne_u32 vcc, 0, v{x0}")
    a(f"    v_mov_b32 v{x3}, 0x7f000000")
    a(f"    v_add_u32 v{V_ST}, s{S_T0}, v{V_XW}")
    a(f"    v_cndmask_b32 v{V_XR}, v{x2}, v{x3}, vcc")
    a(f"    v_add_u32 v{V_DMA}, s{S_T0}, v{V_XR}")
    a(f"    v_mov_b32 v{PT[0] + 1}, 0")
    a(f"    s_mov_b32 s{S_T2}, s{S_CUR}")
    a(f"    s_mov_b32 s{S_IT}, 0")
    a("L_safe_loop:")
    lines, _ = finalize(safe_program())
    out += lines
    a("    s_nop 7")
    a(f"    s_add_u32 s{S_T2}, s{S_T2}, {ITSTR}")
    a(f"    s_add_u32 s{S_IT}, s{S_IT}, 1")
    a(f"    s_cmp_lt_u32 s{S_IT}, {NIT}")
    a("    s_cbranch_scc1 L_safe_loop")
    a("    s_branch L_end")
    a('.section .rodata,"a"')
    a(".p2align 6")
    a(f".amdhsa_kernel {KN}")
    a(f"  .amdhsa_next_free_vgpr {NVGPR}")
    a(f"  .amdhsa_next_free_sgpr {100 if STAMP else 64}")
    a(f"  .amdhsa_accum_offset {NVGPR}")
    a("  .amdhsa_group_segment_fixed_size 0")
    a("  .amdhsa_kernarg_size 64")
    a("  .amdhsa_user_sgpr_count 2")
    a("  .amdhsa_user_sgpr_kernarg_segment_ptr 1")
    a("  .amdhsa_system_sgpr_workgroup_id_x 1")
    a(".end_amdhsa_kernel")
    open(sys.argv[1], 'w').write("\n".join(out) + "\n")


main()
```
